```python
import torch

def _softmax(x, axis=-1):
    return torch.softmax(x, dim=axis)
def _gelu(x):
    return torch.nn.functional.gelu(x, approximate="tanh")
def _silu(x):
    return torch.nn.functional.silu(x)
def _sigmoid(x):
    return torch.sigmoid(x)
def _layernorm(x, axis=-1, eps=1e-5):
    m = x.mean(dim=axis, keepdim=True)
    v = x.var(dim=axis, keepdim=True, unbiased=False)
    return (x - m) / torch.sqrt(v + eps)
def _scatter_add(tgt, idx, src, axis=0):
    return tgt.clone().index_add_(axis, idx, src)
def _segment_sum(src, seg, n):
    out = torch.zeros((n,) + src.shape[1:], dtype=src.dtype)
    return out.index_add_(0, seg, src)
def _pad(x, pw):
    flat = tuple(v for pair in reversed(pw) for v in pair)
    return torch.nn.functional.pad(x, flat)

kernel_name = 'standalone__mha_block_cached__near_ridge'

def setup_inputs():

    _w = (lambda a: (lambda t: t.to(torch.bfloat16) if t.is_floating_point() else t)(torch.as_tensor(a)))
    B, Sq, D = 16, 144, 448
    H, Sk, Dh = 16, 512, 256
    return {
        "x": _w((lambda *s: torch.randn(*s, dtype=torch.bfloat16) * 0.8)(B, Sq, D)),
        "k_cache": _w((lambda *s: torch.randn(*s, dtype=torch.bfloat16) * 0.8)(B, H, Sk, Dh)),
        "v_cache": _w((lambda *s: torch.randn(*s, dtype=torch.bfloat16) * 0.05)(B, H, Sk, Dh)),
        "wq": _w((lambda *s: torch.randn(*s, dtype=torch.bfloat16) * 0.8)(D, H * Dh) * (D ** -0.5)),
        "wo": _w((lambda *s: torch.randn(*s, dtype=torch.bfloat16) * 0.05)(H * Dh, D) * ((H * Dh) ** -0.5)),
    }

def reference(x, k_cache, v_cache, wq, wo):
    B, Sq, D = x.shape
    H, Dh = 16, 256
    q = (lambda x, *d: x.permute(*d))((x @ wq).reshape(B, Sq, H, Dh), 0, 2, 1, 3)
    scores = torch.einsum("bhqd,bhkd->bhqk", q, k_cache) * (Dh ** -0.5)
    p = _softmax(scores, axis=-1)
    o = torch.einsum("bhqk,bhkd->bhqd", p, v_cache)
    return (lambda x, *d: x.permute(*d))(o, 0, 2, 1, 3).reshape(B, Sq, H * Dh) @ wo
```

```python
import math, sys, os

OUT = sys.argv[1] if len(sys.argv) > 1 else "standalone__mha_block_cached__near_ridge.s"

HEADER = """; Kernarg layout for this problem (64 bytes, ptrs only, base s[0:1]):
; @launch kernel=attn_kernel grid=(256,1,1) block=(256,1,1) lds=163840
; @launch kernel=oproj_kernel grid=(256,1,1) block=(256,1,1) lds=114688
.amdgcn_target "amdgcn-amd-amdhsa--gfx950"
.text
"""


class Em:
    def __init__(self):
        self.lines = []
        self.vm = []
        self.lg = []
        self.n = 0

    def e(self, s):
        self.lines.append("  " + s)
        self.n += 1

    def raw(self, s):
        self.lines.append(s)

    def vmem(self, s, tag):
        self.e(s)
        self.vm.append(tag)

    def ds(self, s, tag):
        self.e(s)
        self.lg.append(tag)

    def wait_vm(self, tag):
        idx = max([i for i, t in enumerate(self.vm) if t == tag], default=-1)
        if idx < 0:
            return
        n = len(self.vm) - 1 - idx
        n = min(n, 63)
        self.e(f"s_waitcnt vmcnt({n})")
        self.vm = self.vm[len(self.vm) - n:] if n > 0 else []

    def wait_lg(self, tag):
        idx = max([i for i, t in enumerate(self.lg) if t == tag], default=-1)
        if idx < 0:
            return
        n = len(self.lg) - 1 - idx
        n = min(n, 15)
        self.e(f"s_waitcnt lgkmcnt({n})")
        self.lg = self.lg[len(self.lg) - n:] if n > 0 else []

    def nop(self, states):
        while states > 0:
            k = min(states, 16)
            self.e(f"s_nop {k-1}")
            self.n += k - 1
            states -= k


def vr(b, n=1):
    return f"v{b}" if n == 1 else f"v[{b}:{b+n-1}]"


def ar(b, n=1):
    return f"a{b}" if n == 1 else f"a[{b}:{b+n-1}]"


S_X, S_K, S_V, S_W, S_O = 8, 12, 16, 20, 24
S_WAVE = 28
S_C = 29
S_KVA, S_KVB = 30, 31
S_XQ = 32
S_OQ = 36
S_T = 40
S_T2 = 41
V_LANE = 1
V_ADDR = 2
V_WA, V_WB = 10, 11
V_KVA, V_KVB = 12, 13
V_XO = 14
V_ST = 15
V_SACC = 16
V_M = 40
V_L = 43
V_MC = 46
V_T = 50
V_BIG = 64
A_FR = 192
NSLOT = 10
NW0 = 5
NK0 = 5
DREAD = 5


def k1_variant(em, NT, role):
    e = em.e
    chunks = [("W", i) for i in range(14)] + [("K", i) for i in range(16)] + [("V", i) for i in range(16)]
    nsteps = len(chunks)
    slot_of = {}
    init = [("W", i) for i in range(NW0)] + [("K", i) for i in range(NK0)]
    for s, c in enumerate(init):
        slot_of[c] = s
    later = [c for c in chunks if c not in slot_of]

    wcls = {"A": (0, 2), "B": (1, 3)}.get(role)

    def w_rows(cw):
        return [0, 2, 8, 10][cw]

    def issue(chunk, mode):
        kind, ci = chunk
        slot = slot_of[chunk]
        tag = f"{kind}{ci}"
        if kind == "W":
            if wcls is None:
                return
            for k, cw in enumerate(wcls):
                vo = (V_WA, V_WB)[k]
                for jr in (0, 4, 16, 20):
                    e(f"s_mov_b32 m0, {slot*16384 + (w_rows(cw)+jr)*512}")
                    e(f"s_mov_b32 s{S_T}, {(ci*32 + jr)*8192}")
                    em.vmem(f"buffer_load_dwordx4 v{vo}, s[{S_W}:{S_W+3}], s{S_T} offen lds", tag)
        else:
            srd = S_K if kind == "K" else S_V
            if mode == "init":
                if role != "C":
                    return
                cl = [(V_KVA, S_KVA), (V_KVB, S_KVB)]
            else:
                cl = [(V_KVA, S_KVA)]
            for vo, sc in cl:
                for jj in range(4):
                    e(f"s_add_u32 m0, s{sc}, {slot*16384 + jj*4096}")
                    e(f"s_mov_b32 s{S_T}, {ci*16384 + jj*4096}")
                    em.vmem(f"buffer_load_dwordx4 v{vo}, s[{srd}:{srd+3}], s{S_T} offen lds", tag)

    for qt in range(NT):
        for c in range(14):
            em.vmem(f"buffer_load_dwordx4 {ar((qt*14+c)*4,4)}, v{V_XO}, s[{S_X}:{S_X+3}], s{S_XQ+qt} offen offset:{c*64}", "x")
    for c in init:
        issue(c, "init")

    st = {"base": 0}

    def set_addr(kind):
        t0, t1, t2, t3 = V_T, V_T + 1, V_T + 2, V_T + 3
        e(f"v_lshrrev_b32 v{t0}, 4, v{V_LANE}")
        e(f"v_bfe_u32 v{t1}, v{V_LANE}, 2, 2")
        e(f"v_and_b32 v{t2}, 3, v{V_LANE}")
        if kind == "W":
            e(f"v_lshl_add_u32 v{t3}, v{t0}, 3, v{t1}")
            e(f"v_lshlrev_b32 v{t3}, 9, v{t3}")
            e(f"v_and_b32 v{t0}, 1, v{t0}")
            e(f"v_lshl_add_u32 v{t0}, v{t0}, 2, v{t1}")
            e(f"v_lshl_add_u32 v{t3}, v{t0}, 5, v{t3}")
            e(f"v_lshl_add_u32 v{t3}, v{t2}, 3, v{t3}")
            nb, sh = 8, 5
        elif kind == "V":
            e(f"v_lshl_add_u32 v{t0}, v{t0}, 2, v{t1}")
            e(f"v_lshlrev_b32 v{t3}, 9, v{t0}")
            e(f"v_and_b32 v{t0}, 7, v{t0}")
            e(f"v_lshl_add_u32 v{t3}, v{t0}, 5, v{t3}")
            e(f"v_lshl_add_u32 v{t3}, v{t2}, 3, v{t3}")
            nb, sh = 8, 5
        else:
            e(f"v_and_b32 v{t1}, 15, v{V_LANE}")
            e(f"v_lshlrev_b32 v{t3}, 9, v{t1}")
            e(f"v_and_b32 v{t1}, 7, v{t1}")
            e(f"v_lshlrev_b32 v{t1}, 1, v{t1}")
            e(f"v_xor_b32 v{t1}, v{t0}, v{t1}")
            e(f"v_lshl_add_u32 v{t3}, v{t1}, 4, v{t3}")
            nb, sh = 4, 6
        for b in range(nb):
            e(f"v_xor_b32 v{V_ADDR+b}, {b << sh}, v{t3}")
        st["base"] = 0
        st["nb"] = nb

    def set_base(grp):
        if grp != st["base"]:
            d = (grp - st["base"]) * 65536
            for b in range(st["nb"]):
                e(f"v_add_u32 v{V_ADDR+b}, {d & 0xffffffff}, v{V_ADDR+b}")
            st["base"] = grp

    def frag_reg(G):
        return A_FR + (G % 16) * 4

    def reads(G):
        i, f = divmod(G, 16)
        kind, ci = chunks[i]
        slot = slot_of[chunks[i]]
        if f == 0:
            if i == 0 or chunks[i - 1][0] != kind:
                set_addr(kind)
            set_base(slot >> 2)
        sb = (slot & 3) * 16384
        fr = frag_reg(G)
        tag = f"F{G}"
        if kind == "K":
            kt, ks = f >> 3, f & 7
            a, b = ks >> 2, ks & 3
            em.ds(f"ds_read_b128 {ar(fr,4)}, v{V_ADDR+b} offset:{sb + kt*8192 + a*256}", tag)
        else:
            a, b = f >> 3, f & 7
            second = 2048 if kind == "W" else 8192
            em.ds(f"ds_read_b64_tr_b16 {ar(fr,2)}, v{V_ADDR+b} offset:{sb + a*256}", tag)
            em.ds(f"ds_read_b64_tr_b16 {ar(fr+2,2)}, v{V_ADDR+b} offset:{sb + a*256 + second}", tag)

    def big(qt, idx):
        return V_BIG + (qt * 16 + idx) * 4

    def sacc(kt, qt):
        return V_SACC + (kt * 3 + qt) * 4

    last_mfma_n = {}

    def s_process(ci, kt):
        gap = em.n - last_mfma_n[("S", kt)]
        if gap < 9:
            em.nop(9 - gap)
        for qt in range(NT):
            a = sacc(kt, qt)
            if ci == 0 and kt == 0:
                e(f"v_max_f32 v{V_M+qt}, v{a}, v{a+1}")
                e(f"v_max3_f32 v{V_M+qt}, v{a+2}, v{a+3}, v{V_M+qt}")
            else:
                e(f"v_max3_f32 v{V_M+qt}, v{a}, v{a+1}, v{V_M+qt}")
                e(f"v_max3_f32 v{V_M+qt}, v{a+2}, v{a+3}, v{V_M+qt}")
            e(f"v_cvt_pk_bf16_f32 v{big(qt,ci)+2*kt}, v{a}, v{a+1}")
            e(f"v_cvt_pk_bf16_f32 v{big(qt,ci)+2*kt+1}, v{a+2}, v{a+3}")

    def q_convert():
        gap = em.n - last_mfma_n["W"]
        if gap < 9:
            em.nop(9 - gap)
        blocks = [(qt, s) for qt in range(NT) for s in range(8)]
        for bi in range(0, len(blocks), 2):
            pair = blocks[bi:bi + 2]
            for pi, (qt, s) in enumerate(pair):
                t = V_T + pi * 4
                p0, p1 = big(qt, 2 * s), big(qt, 2 * s + 1)
                e(f"v_cvt_pk_bf16_f32 v{t}, v{p0}, v{p0+1}")
                e(f"v_cvt_pk_bf16_f32 v{t+1}, v{p0+2}, v{p0+3}")
                e(f"v_cvt_pk_bf16_f32 v{t+2}, v{p1}, v{p1+1}")
                e(f"v_cvt_pk_bf16_f32 v{t+3}, v{p1+2}, v{p1+3}")
            em.nop(2)
            for pi, _ in enumerate(pair):
                t = V_T + pi * 4
                e(f"v_permlane32_swap_b32 v{t}, v{t+2}")
                e(f"v_permlane32_swap_b32 v{t+1}, v{t+3}")
            em.nop(2)
            for pi, _ in enumerate(pair):
                t = V_T + pi * 4
                e(f"v_permlane16_swap_b32 v{t}, v{t+2}")
                e(f"v_permlane16_swap_b32 v{t+1}, v{t+3}")
            em.nop(1)
            for pi, (qt, s) in enumerate(pair):
                t = V_T + pi * 4
                for j in range(4):
                    e(f"v_accvgpr_write_b32 a{(qt*8+s)*4+j}, v{t+j}")
        em.nop(2)

    def max_reduce():
        for qt in range(NT):
            e(f"v_mov_b32 v{V_T+qt}, v{V_M+qt}")
        em.nop(2)
        for qt in range(NT):
            e(f"v_permlane32_swap_b32 v{V_T+qt}, v{V_M+qt}")
        em.nop(1)
        for qt in range(NT):
            e(f"v_max_f32 v{V_M+qt}, v{V_M+qt}, v{V_T+qt}")
        for qt in range(NT):
            e(f"v_mov_b32 v{V_T+qt}, v{V_M+qt}")
        em.nop(2)
        for qt in range(NT):
            e(f"v_permlane16_swap_b32 v{V_T+qt}, v{V_M+qt}")
        em.nop(1)
        for qt in range(NT):
            e(f"v_max_f32 v{V_M+qt}, v{V_M+qt}, v{V_T+qt}")
        for qt in range(NT):
            e(f"v_mul_f32 v{V_MC+qt}, s{S_C}, v{V_M+qt}")
            e(f"v_mov_b32 v{V_L+qt}, 0")

    def p_items(ci):
        items = []
        k = 0
        for j in range(4):
            for qt in range(NT):
                R = big(qt, ci) + j
                ta, tb = V_T + (k % 4) * 2, V_T + (k % 4) * 2 + 1
                k += 1
                items.append([
                    f"v_lshlrev_b32 v{ta}, 16, v{R}",
                    f"v_and_b32 v{tb}, 0xffff0000, v{R}",
                    f"v_fma_f32 v{ta}, v{ta}, s{S_C}, -v{V_MC+qt}",
                    f"v_fma_f32 v{tb}, v{tb}, s{S_C}, -v{V_MC+qt}",
                    f"v_exp_f32 v{ta}, v{ta}",
                    f"v_exp_f32 v{tb}, v{tb}",
                    f"v_add_f32 v{V_L+qt}, v{V_L+qt}, v{ta}",
                    f"v_add_f32 v{V_L+qt}, v{V_L+qt}, v{tb}",
                    f"v_cvt_pk_bf16_f32 v{R}, v{ta}, v{tb}",
                ])
        return items

    pend = []

    def mfmas(G):
        i, f = divmod(G, 16)
        kind, ci = chunks[i]
        fr = frag_reg(G)
        if kind == "K" and ci == 0 and f == 0:
            q_convert()
        if kind == "V" and ci == 0 and f == 0:
            s_process(15, 1)
            max_reduce()
            for grp in p_items(0):
                for s in grp:
                    e(s)
            em.nop(2)
        if kind == "W" and ci == 0 and f == 0:
            em.wait_vm("x")
        em.wait_lg(f"F{G}")
        if kind == "W":
            for qt in range(NT):
                d = vr(big(qt, f), 4)
                c = "0" if ci == 0 else d
                e(f"v_mfma_f32_16x16x32_bf16 {d}, {ar(fr,4)}, {ar((qt*14+ci)*4,4)}, {c}")
            last_mfma_n["W"] = em.n
        elif kind == "K":
            kt, ks = f >> 3, f & 7
            for qt in range(NT):
                d = vr(sacc(kt, qt), 4)
                c = "0" if ks == 0 else d
                e(f"v_mfma_f32_16x16x32_bf16 {d}, {ar(fr,4)}, {ar((qt*8+ks)*4,4)}, {c}")
            last_mfma_n[("S", kt)] = em.n
            if kt == 1 and ks == 3:
                s_process(ci, 0)
            if kt == 0 and ks == 3 and ci > 0:
                s_process(ci - 1, 1)
        else:
            if f == 0 and ci + 1 < 16:
                pend.extend(p_items(ci + 1))
            for qt in range(NT):
                d = ar((qt * 16 + f) * 4, 4)
                c = "0" if ci == 0 else d
                e(f"v_mfma_f32_16x16x32_bf16 {d}, {ar(fr,4)}, {vr(big(qt,ci),4)}, {c}")
            last_mfma_n["V"] = em.n
            if pend and f < 14:
                per = NT * 4
                want = ((f + 1) * per + 13) // 14 - (f * per + 13) // 14
                for _ in range(want):
                    if pend:
                        for s in pend.pop(0):
                            e(s)
            if f == 15:
                assert not pend

    total = nsteps * 16
    li = 0
    for G in range(total + DREAD):
        if G < total:
            i, f = divmod(G, 16)
            if f == 0:
                kind, ci = chunks[i]
                em.wait_vm(f"{kind}{ci}")
                e("s_barrier")
                if i >= 2 and li < len(later):
                    c = later[li]
                    li += 1
                    slot_of[c] = slot_of[chunks[i - 2]]
                    issue(c, "late")
            reads(G)
        m = G - DREAD
        if m >= 0:
            mfmas(m)

    for qt in range(NT):
        e(f"v_mov_b32 v{V_T+qt}, v{V_L+qt}")
    em.nop(2)
    for qt in range(NT):
        e(f"v_permlane32_swap_b32 v{V_T+qt}, v{V_L+qt}")
    em.nop(1)
    for qt in range(NT):
        e(f"v_add_f32 v{V_L+qt}, v{V_L+qt}, v{V_T+qt}")
    for qt in range(NT):
        e(f"v_mov_b32 v{V_T+qt}, v{V_L+qt}")
    em.nop(2)
    for qt in range(NT):
        e(f"v_permlane16_swap_b32 v{V_T+qt}, v{V_L+qt}")
    em.nop(1)
    for qt in range(NT):
        e(f"v_add_f32 v{V_L+qt}, v{V_L+qt}, v{V_T+qt}")
    for qt in range(NT):
        e(f"v_rcp_f32 v{V_L+qt}, v{V_L+qt}")
    em.nop(8)
    k = 0
    for qt in range(NT):
        for s in range(8):
            tb = V_SACC + (k % 2) * 12
            k += 1
            for j in range(8):
                e(f"v_accvgpr_read_b32 v{tb+j}, a{(qt*16+2*s)*4+j}")
            for j in range(8):
                e(f"v_mul_f32 v{tb+j}, v{tb+j}, v{V_L+qt}")
            for j in range(4):
                e(f"v_cvt_pk_bf16_f32 v{tb+8+j}, v{tb+2*j}, v{tb+2*j+1}")
            if s == 0 or s == 4:
                e(f"s_add_u32 s{S_T2}, s{S_OQ+qt}, {s*1024}")
            em.vmem(f"buffer_store_dwordx4 v[{tb+8}:{tb+11}], v{V_ST}, s[{S_O}:{S_O+3}], s{S_T2} offen offset:{(s&3)*1024}", "st")
    e("s_endpgm")


def k1(em):
    e = em.e
    em.raw(".globl attn_kernel\n.p2align 8\n.type attn_kernel,@function\nattn_kernel:")
    e("s_cmp_ge_u32 s2, 256")
    e("s_cbranch_scc1 L_k1_exit")
    e("s_load_dwordx8 s[44:51], s[0:1], 0")
    e("s_load_dwordx2 s[52:53], s[0:1], 56")
    e("s_and_b32 s3, s2, 7")
    e("s_lshr_b32 s4, s2, 3")
    e("s_and_b32 s5, s3, 3")
    e("s_lshl_b32 s5, s5, 2")
    e("s_and_b32 s6, s4, 3")
    e("s_add_u32 s5, s5, s6")
    e("s_lshr_b32 s6, s3, 2")
    e("s_lshl_b32 s6, s6, 3")
    e("s_lshr_b32 s7, s4, 2")
    e("s_add_u32 s6, s6, s7")
    e(f"v_and_b32 v{V_LANE}, 63, v0")
    e("v_lshrrev_b32 v2, 6, v0")
    e("s_nop 0")
    e(f"v_readfirstlane_b32 s{S_WAVE}, v2")
    e(f"s_mov_b32 s{S_C}, {hex(int.from_bytes(__import__('struct').pack('<f', math.log2(math.e)/16.0), 'little'))}")
    e("s_waitcnt lgkmcnt(0)")
    e("s_mul_i32 s7, s6, 129024")
    e(f"s_add_u32 s{S_X}, s44, s7")
    e(f"s_addc_u32 s{S_X+1}, s45, 0")
    e(f"s_mov_b32 s{S_X+2}, 129024")
    e(f"s_mov_b32 s{S_X+3}, 0x20000")
    e("s_lshl_b32 s7, s6, 4")
    e("s_add_u32 s7, s7, s5")
    e("s_lshl_b32 s7, s7, 18")
    e(f"s_add_u32 s{S_K}, s46, s7")
    e(f"s_addc_u32 s{S_K+1}, s47, 0")
    e(f"s_mov_b32 s{S_K+2}, 262144")
    e(f"s_mov_b32 s{S_K+3}, 0x20000")
    e(f"s_add_u32 s{S_V}, s48, s7")
    e(f"s_addc_u32 s{S_V+1}, s49, 0")
    e(f"s_mov_b32 s{S_V+2}, 262144")
    e(f"s_mov_b32 s{S_V+3}, 0x20000")
    e("s_lshl_b32 s7, s5, 9")
    e(f"s_add_u32 s{S_W}, s50, s7")
    e(f"s_addc_u32 s{S_W+1}, s51, 0")
    e(f"s_mov_b32 s{S_W+2}, {447*8192+512}")
    e(f"s_mov_b32 s{S_W+3}, 0x20000")
    e(f"s_mov_b32 s{S_O}, s52")
    e(f"s_mov_b32 s{S_O+1}, s53")
    e(f"s_mov_b32 s{S_O+2}, {144*128*1024}")
    e(f"s_mov_b32 s{S_O+3}, 0x20000")
    e(f"s_lshl_b32 s7, s{S_WAVE}, 1")
    e("s_add_u32 s7, s7, 1")
    e(f"s_cmp_eq_u32 s{S_WAVE}, 0")
    e("s_cselect_b32 s7, 0, s7")
    for qt in range(3):
        e(f"s_add_u32 s42, s7, {qt}")
        e(f"s_mul_i32 s{S_XQ+qt}, s42, 14336")
        e("s_mul_i32 s43, s6, 9")
        e("s_add_u32 s43, s43, s42")
        e("s_lshl_b32 s43, s43, 7")
        e("s_lshl_b32 s42, s5, 3")
        e("s_add_u32 s43, s43, s42")
        e(f"s_lshl_b32 s{S_OQ+qt}, s43, 10")
    e(f"s_lshl_b32 s{S_KVA}, s{S_WAVE}, 10")
    e(f"s_add_u32 s7, s{S_WAVE}, 2")
    e("s_and_b32 s7, s7, 3")
    e(f"s_lshl_b32 s{S_KVB}, s7, 10")
    e(f"v_and_b32 v2, 15, v{V_LANE}")
    e("v_mul_u32_u24 v2, 896, v2")
    e(f"v_lshrrev_b32 v3, 4, v{V_LANE}")
    e(f"v_lshl_add_u32 v{V_XO}, v3, 4, v2")
    e(f"v_lshlrev_b32 v{V_ST}, 4, v{V_LANE}")
    e(f"v_lshrrev_b32 v2, 5, v{V_LANE}")
    e(f"v_and_b32 v3, 31, v{V_LANE}")
    for vo, sc in ((V_KVA, S_WAVE), (V_KVB, 7)):
        e(f"s_lshl_b32 s42, s{sc}, 1")
        e("v_add_u32 v4, s42, v2")
        e("v_lshlrev_b32 v5, 1, v4")
        e("v_xor_b32 v5, v3, v5")
        e("v_lshlrev_b32 v5, 4, v5")
        e(f"v_lshl_add_u32 v{vo}, v4, 9, v5")
    e(f"s_and_b32 s42, s{S_WAVE}, 1")
    e("s_lshl_b32 s42, s42, 1")
    for vo, add in ((V_WA, 0), (V_WB, 8)):
        e(f"s_add_u32 s43, s42, {add}")
        e("v_add_u32 v4, s43, v2")
        e("v_and_b32 v5, 3, v4")
        e("v_bfe_u32 v6, v4, 3, 1")
        e("v_lshl_add_u32 v5, v6, 2, v5")
        e("v_lshlrev_b32 v5, 1, v5")
        e("v_xor_b32 v5, v3, v5")
        e("v_lshlrev_b32 v5, 4, v5")
        e(f"v_lshl_add_u32 v{vo}, v4, 13, v5")
    e(f"s_cmp_eq_u32 s{S_WAVE}, 0")
    e("s_cbranch_scc1 L_k1_A")
    e(f"s_cmp_eq_u32 s{S_WAVE}, 1")
    e("s_cbranch_scc1 L_k1_Bj")
    e("s_branch L_k1_Cj")
    em.raw("L_k1_exit:")
    e("s_endpgm")
    em.raw("L_k1_A:")
    sub = Em()
    k1_variant(sub, 3, "A")
    em.lines += sub.lines
    em.raw("L_k1_Bj:")
    sub = Em()
    k1_variant(sub, 2, "B")
    em.lines += sub.lines
    em.raw("L_k1_Cj:")
    sub = Em()
    k1_variant(sub, 2, "C")
    em.lines += sub.lines


def k2(em):
    e = em.e
    NS = 7
    S_WO, S_OS, S_OUT = 8, 12, 16
    S_W, S_WG, S_WL, S_T, S_ST = 20, 21, 22, 23, 24
    V_L, V_DMA, V_B, V_O, V_A = 1, 2, 3, 4, 6
    V_ACC = 12
    V_FR = 32
    V_BF = 64
    em.raw(".globl oproj_kernel\n.p2align 8\n.type oproj_kernel,@function\noproj_kernel:")
    e("s_cmp_ge_u32 s2, 256")
    e("s_cbranch_scc1 L_k2_exit")
    e("s_and_b32 s3, s2, 7")
    e("s_lshr_b32 s4, s2, 3")
    e("s_lshl_b32 s3, s3, 5")
    e("s_add_u32 s3, s3, s4")
    e("s_cmp_ge_u32 s3, 252")
    e("s_cbranch_scc1 L_k2_exit")
    e("s_load_dwordx4 s[44:47], s[0:1], 32")
    e("s_load_dwordx2 s[48:49], s[0:1], 56")
    e("s_mul_i32 s4, s3, 9363")
    e("s_lshr_b32 s4, s4, 16")
    e("s_mul_i32 s5, s4, 7")
    e("s_sub_u32 s5, s3, s5")
    e(f"v_and_b32 v{V_L}, 63, v0")
    e("v_lshrrev_b32 v2, 6, v0")
    e("s_nop 0")
    e(f"v_readfirstlane_b32 s{S_W}, v2")
    e("s_waitcnt lgkmcnt(0)")
    e("s_lshl_b32 s6, s5, 7")
    e(f"s_add_u32 s{S_WO}, s44, s6")
    e(f"s_addc_u32 s{S_WO+1}, s45, 0")
    e(f"s_sub_u32 s{S_WO+2}, {4096*896}, s6")
    e(f"s_mov_b32 s{S_WO+3}, 0x20000")
    e("s_lshl_b32 s7, s4, 2")
    e(f"s_add_u32 s7, s7, s{S_W}")
    e("s_lshl_b32 s25, s7, 17")
    e(f"s_add_u32 s{S_OS}, s48, s25")
    e(f"s_addc_u32 s{S_OS+1}, s49, 0")
    e(f"s_mov_b32 s{S_OS+2}, 131072")
    e(f"s_mov_b32 s{S_OS+3}, 0x20000")
    e(f"s_mov_b32 s{S_OUT}, s46")
    e(f"s_mov_b32 s{S_OUT+1}, s47")
    e(f"s_mov_b32 s{S_OUT+2}, {2304*896}")
    e(f"s_mov_b32 s{S_OUT+3}, 0x20000")
    e(f"s_mul_i32 s{S_ST}, s7, {16*896}")
    e(f"s_add_u32 s{S_ST}, s{S_ST}, s6")
    e(f"s_mul_i32 s{S_WG}, s{S_W}, {32*896}")
    e(f"s_lshl_b32 s{S_WL}, s{S_W}, 12")
    e(f"v_lshrrev_b32 v10, 3, v{V_L}")
    e("v_mul_u32_u24 v10, 896, v10")
    e(f"v_bfe_u32 v11, v{V_L}, 1, 2")
    e(f"v_lshrrev_b32 v12, 4, v{V_L}")
    e("v_xor_b32 v11, v11, v12")
    e("v_lshl_add_u32 v10, v11, 5, v10")
    e(f"v_and_b32 v11, 1, v{V_L}")
    e(f"v_lshl_add_u32 v{V_DMA}, v11, 4, v10")
    e(f"v_lshlrev_b32 v{V_B}, 4, v{V_L}")
    e(f"v_and_b32 v10, 15, v{V_L}")
    e("v_mul_u32_u24 v10, 896, v10")
    e(f"v_lshl_add_u32 v{V_O}, v12, 3, v10")
    e(f"v_bfe_u32 v10, v{V_L}, 2, 2")
    e("v_lshl_add_u32 v10, v12, 2, v10")
    e("v_bfe_u32 v11, v10, 1, 2")
    e("v_lshlrev_b32 v10, 7, v10")
    e("v_lshl_add_u32 v10, v11, 5, v10")
    e(f"v_and_b32 v11, 3, v{V_L}")
    e("v_lshl_add_u32 v10, v11, 3, v10")
    for u in range(4):
        e(f"v_xor_b32 v{V_A+u}, {u<<5}, v10")
    st = {"base": 0}

    def issue(cc):
        slot = cc % NS
        tag = f"C{cc}"
        for jj in range(4):
            e(f"s_add_u32 m0, s{S_WL}, {slot*16384 + jj*1024}")
            e(f"s_add_u32 s{S_T}, s{S_WG}, {(cc*128 + jj*8)*896}")
            em.vmem(f"buffer_load_dwordx4 v{V_DMA}, s[{S_WO}:{S_WO+3}], s{S_T} offen lds", tag)
        e(f"s_mov_b32 s{S_T}, {cc*4096}")
        for ss in range(4):
            em.vmem(f"buffer_load_dwordx4 {vr(V_BF + slot*16 + ss*4, 4)}, v{V_B}, s[{S_OS}:{S_OS+3}], s{S_T} offen offset:{ss*1024}", tag)

    for cc in range(NS):
        issue(cc)
    D = 4
    total = 32 * 16

    def reads(G):
        cc, f = divmod(G, 16)
        ss, u = f >> 2, f & 3
        slot = cc % NS
        if f == 0:
            grp = slot >> 2
            if grp != st["base"]:
                d = (grp - st["base"]) * 65536
                for b in range(4):
                    e(f"v_add_u32 v{V_A+b}, {d & 0xffffffff}, v{V_A+b}")
                st["base"] = grp
        off = (slot & 3) * 16384 + ss * 4096
        fr = V_FR + (G % 8) * 4
        em.ds(f"ds_read_b64_tr_b16 {vr(fr,2)}, v{V_A+u} offset:{off}", f"F{G}")
        em.ds(f"ds_read_b64_tr_b16 {vr(fr+2,2)}, v{V_A+u} offset:{off+2048}", f"F{G}")

    def mfma(G):
        cc, f = divmod(G, 16)
        ss, u = f >> 2, f & 3
        slot = cc % NS
        fr = V_FR + (G % 8) * 4
        em.wait_lg(f"F{G}")
        d = vr(V_ACC + u * 4, 4)
        c = "0" if (cc == 0 and ss == 0) else d
        e(f"v_mfma_f32_16x16x32_bf16 {d}, {vr(fr,4)}, {vr(V_BF + slot*16 + ss*4, 4)}, {c}")

    for G in range(total + D):
        if G < total:
            cc, f = divmod(G, 16)
            if f == 0:
                em.wait_vm(f"C{cc}")
                e("s_barrier")
                if cc >= 2 and cc - 2 + NS < 32:
                    issue(cc - 2 + NS)
            reads(G)
        if G - D >= 0:
            mfma(G - D)
    em.nop(9)
    for u in range(4):
        a = V_ACC + u * 4
        e(f"v_cvt_pk_bf16_f32 v{28+ (u%2)*2}, v{a}, v{a+1}")
        e(f"v_cvt_pk_bf16_f32 v{29+ (u%2)*2}, v{a+2}, v{a+3}")
        e(f"buffer_store_dwordx2 v[{28+(u%2)*2}:{29+(u%2)*2}], v{V_O}, s[{S_OUT}:{S_OUT+3}], s{S_ST} offen offset:{u*32}")
    em.raw("L_k2_exit:")
    e("s_endpgm")


def kd(name, vgpr, acc):
    return f""".p2align 6
.amdhsa_kernel {name}
  .amdhsa_next_free_vgpr {vgpr}
  .amdhsa_next_free_sgpr 102
  .amdhsa_accum_offset {acc}
  .amdhsa_group_segment_fixed_size 0
  .amdhsa_kernarg_size 64
  .amdhsa_user_sgpr_count 2
  .amdhsa_user_sgpr_kernarg_segment_ptr 1
  .amdhsa_system_sgpr_workgroup_id_x 1
.end_amdhsa_kernel
"""


def main():
    for t in range(256):
        assert (t * 9363) >> 16 == t // 7
    em = Em()
    k1(em)
    em2 = Em()
    k2(em2)
    txt = HEADER + "\n".join(em.lines) + "\n" + "\n".join(em2.lines) + "\n"
    txt += '.section .rodata,"a"\n' + kd("attn_kernel", 512, 256) + kd("oproj_kernel", 256, 256)
    open(OUT, "w").write(txt)
    print("wrote", OUT, len(txt), "bytes")


main()
```

```python
import math, sys, os, struct

OUT = sys.argv[1] if len(sys.argv) > 1 else "standalone__mha_block_cached__near_ridge.s"
PROF = os.environ.get("PROF", "0") == "1"
NSLOT = 10
NW0 = int(os.environ.get("NW0", "4"))
NK0 = NSLOT - NW0
DREAD = int(os.environ.get("DREAD", "5"))
KVNT = os.environ.get("KVNT", " nt")
K2NS = int(os.environ.get("K2NS", "7"))
K2NT = " nt" if os.environ.get("K2NT", "0") == "1" else ""

HEADER = f"""; Kernarg layout for this problem (64 bytes, ptrs only, base s[0:1]):
; @launch kernel=attn_kernel grid=(256,1,1) block=(256,1,1) lds=163840
; @launch kernel=oproj_kernel grid=(256,1,1) block=(256,1,1) lds={K2NS*16384}
.amdgcn_target "amdgcn-amd-amdhsa--gfx950"
.macro M d, a, b, c
v_mfma_f32_16x16x32_bf16 \\d, \\a, \\b, \\c
.endm
.macro T d, a, o
ds_read_b64_tr_b16 \\d, \\a offset:\\o
.endm
.macro R d, a, o
ds_read_b128 \\d, \\a offset:\\o
.endm
.macro WL n
s_waitcnt lgkmcnt(\\n)
.endm
.macro CV d, a, b
v_cvt_pk_bf16_f32 \\d, \\a, \\b
.endm
.text
"""


class Em:
    def __init__(self):
        self.lines = []
        self.vm = []
        self.lg = []
        self.n = 0

    def e(self, s):
        self.lines.append(s)
        self.n += 1

    def raw(self, s):
        self.lines.append(s)

    def vmem(self, s, tag):
        self.e(s)
        self.vm.append(tag)

    def ds(self, s, tag):
        self.e(s)
        self.lg.append(tag)

    def wait_vm(self, tag):
        idx = max([i for i, t in enumerate(self.vm) if t == tag], default=-1)
        if idx < 0:
            return
        n = min(len(self.vm) - 1 - idx, 63)
        self.e(f"s_waitcnt vmcnt({n})")
        self.vm = self.vm[len(self.vm) - n:] if n > 0 else []

    def wait_lg(self, tag):
        idx = max([i for i, t in enumerate(self.lg) if t == tag], default=-1)
        if idx < 0:
            return
        n = min(len(self.lg) - 1 - idx, 15)
        self.e(f"WL {n}")
        self.lg = self.lg[len(self.lg) - n:] if n > 0 else []

    def nop(self, states):
        while states > 0:
            k = min(states, 16)
            self.e(f"s_nop {k-1}")
            self.n += k - 1
            states -= k


def vr(b, n=1):
    return f"v{b}" if n == 1 else f"v[{b}:{b+n-1}]"


def ar(b, n=1):
    return f"a{b}" if n == 1 else f"a[{b}:{b+n-1}]"


S_X, S_K, S_V, S_W, S_O = 8, 12, 16, 20, 24
S_WAVE = 28
S_C = 29
S_XQ = 32
S_OQ = 36
S_T = 40
S_T2 = 41
V_LANE = 1
V_ADDR = 2
V_D = 10
V_XO = 14
V_ST = 15
V_SACC = 16
V_M = 40
V_L = 43
V_MC = 46
V_T = 50
V_BIG = 64
A_FR = 192


def k1_variant(em, w):
    e = em.e
    NT = 3 if w == 0 else 2
    chunks = [("W", i) for i in range(14)] + [("K", i) for i in range(16)] + [("V", i) for i in range(16)]
    nsteps = len(chunks)
    slot_of = {}
    init = [("W", i) for i in range(NW0)] + [("K", i) for i in range(NK0)]
    for s, c in enumerate(init):
        slot_of[c] = s
    later = [c for c in chunks if c not in slot_of]

    wcls = {1: (0, 2), 2: (1, 3)}.get(w)
    WROW = [0, 2, 8, 10]
    t0, t1, t2, t3 = V_T, V_T + 1, V_T + 2, V_T + 3

    def kv_voff(dst, cls):
        e(f"v_lshrrev_b32 v{t0}, 5, v{V_LANE}")
        e(f"v_add_u32 v{t0}, {2*cls}, v{t0}")
        e(f"v_and_b32 v{t1}, 31, v{V_LANE}")
        e(f"v_lshlrev_b32 v{t2}, 1, v{t0}")
        e(f"v_xor_b32 v{t2}, v{t1}, v{t2}")
        e(f"v_lshlrev_b32 v{t2}, 4, v{t2}")
        e(f"v_lshl_add_u32 v{dst}, v{t0}, 9, v{t2}")

    def w_voff(dst, cls):
        e(f"v_lshrrev_b32 v{t0}, 5, v{V_LANE}")
        e(f"v_add_u32 v{t0}, {WROW[cls]}, v{t0}")
        e(f"v_and_b32 v{t1}, 31, v{V_LANE}")
        e(f"v_and_b32 v{t2}, 3, v{t0}")
        e(f"v_bfe_u32 v{t3}, v{t0}, 3, 1")
        e(f"v_lshl_add_u32 v{t2}, v{t3}, 2, v{t2}")
        e(f"v_lshlrev_b32 v{t2}, 1, v{t2}")
        e(f"v_xor_b32 v{t2}, v{t1}, v{t2}")
        e(f"v_lshlrev_b32 v{t2}, 4, v{t2}")
        e(f"v_lshl_add_u32 v{dst}, v{t0}, 13, v{t2}")

    kvreg = {}
    if w in (1, 2):
        w_voff(V_D, wcls[0])
        w_voff(V_D + 1, wcls[1])
        kv_voff(V_D + 2, w)
        kv_voff(V_D + 3, 0)
        kvreg = {w: V_D + 2, 0: V_D + 3}
    elif w == 3:
        for c in range(4):
            kv_voff(V_D + c, c)
            kvreg[c] = V_D + c

    def dma_list(chunk, mode):
        kind, ci = chunk
        slot = slot_of[chunk]
        out = []
        if kind == "W":
            if wcls is None:
                return out
            for k, cw in enumerate(wcls):
                for jr in (0, 4, 16, 20):
                    out.append((slot * 16384 + (WROW[cw] + jr) * 512, (ci * 32 + jr) * 8192, V_D + k, S_W, ""))
        else:
            srd = S_K if kind == "K" else S_V
            if mode == "init":
                pieces = [(c, jj) for c in range(4) for jj in range(4)] if w == 3 else []
            elif w == 0:
                pieces = []
            else:
                pieces = [(w, jj) for jj in range(4)] + [(0, jj) for jj in {1: (0, 1), 2: (2,), 3: (3,)}[w]]
            for c, jj in pieces:
                out.append((slot * 16384 + c * 1024 + jj * 4096, ci * 16384 + jj * 4096, kvreg[c], srd, KVNT))
        return out

    def issue(chunk, mode):
        tag = f"{chunk[0]}{chunk[1]}"
        for lds, goff, vo, srd, nt in dma_list(chunk, mode):
            e(f"s_mov_b32 m0, {lds}")
            e(f"s_mov_b32 s{S_T}, {goff}")
            em.vmem(f"buffer_load_dwordx4 v{vo}, s[{srd}:{srd+3}], s{S_T} offen{nt} lds", tag)

    def xloads():
        for c in range(14):
            for qt in range(NT):
                em.vmem(f"buffer_load_dwordx4 {ar((qt*14+c)*4,4)}, v{V_XO}, s[{S_X}:{S_X+3}], s{S_XQ+qt} offen offset:{c*64}", f"x{c}")

    if w in (1, 2):
        issue(("W", 0), "init")
        xloads()
        for c in init[1:]:
            issue(c, "init")
    else:
        xloads()
        for c in init:
            issue(c, "init")

    st = {"base": 0}

    def set_addr(kind):
        e(f"v_lshrrev_b32 v{t0}, 4, v{V_LANE}")
        e(f"v_bfe_u32 v{t1}, v{V_LANE}, 2, 2")
        e(f"v_and_b32 v{t2}, 3, v{V_LANE}")
        if kind == "W":
            e(f"v_lshl_add_u32 v{t3}, v{t0}, 3, v{t1}")
            e(f"v_lshlrev_b32 v{t3}, 9, v{t3}")
            e(f"v_and_b32 v{t0}, 1, v{t0}")
            e(f"v_lshl_add_u32 v{t0}, v{t0}, 2, v{t1}")
            e(f"v_lshl_add_u32 v{t3}, v{t0}, 5, v{t3}")
            e(f"v_lshl_add_u32 v{t3}, v{t2}, 3, v{t3}")
            nb, sh = 8, 5
        elif kind == "V":
            e(f"v_lshl_add_u32 v{t0}, v{t0}, 2, v{t1}")
            e(f"v_lshlrev_b32 v{t3}, 9, v{t0}")
            e(f"v_and_b32 v{t0}, 7, v{t0}")
            e(f"v_lshl_add_u32 v{t3}, v{t0}, 5, v{t3}")
            e(f"v_lshl_add_u32 v{t3}, v{t2}, 3, v{t3}")
            nb, sh = 8, 5
        else:
            e(f"v_and_b32 v{t1}, 15, v{V_LANE}")
            e(f"v_lshlrev_b32 v{t3}, 9, v{t1}")
            e(f"v_and_b32 v{t1}, 7, v{t1}")
            e(f"v_lshlrev_b32 v{t1}, 1, v{t1}")
            e(f"v_xor_b32 v{t1}, v{t0}, v{t1}")
            e(f"v_lshl_add_u32 v{t3}, v{t1}, 4, v{t3}")
            nb, sh = 4, 6
        for b in range(nb):
            e(f"v_xor_b32 v{V_ADDR+b}, {b << sh}, v{t3}")
        st["base"] = 0
        st["nb"] = nb

    def set_base(grp):
        if grp != st["base"]:
            d = (grp - st["base"]) * 65536
            for b in range(st["nb"]):
                e(f"v_add_u32 v{V_ADDR+b}, {d & 0xffffffff}, v{V_ADDR+b}")
            st["base"] = grp

    def frag_reg(G):
        return A_FR + (G % 16) * 4

    def reads(G):
        i, f = divmod(G, 16)
        kind, ci = chunks[i]
        slot = slot_of[chunks[i]]
        sb = (slot & 3) * 16384
        fr = frag_reg(G)
        tag = f"F{G}"
        if kind == "K":
            kt, ks = f >> 3, f & 7
            a, b = ks >> 2, ks & 3
            em.ds(f"R {ar(fr,4)}, v{V_ADDR+b}, {sb + kt*8192 + a*256}", tag)
        else:
            a, b = f >> 3, f & 7
            second = 2048 if kind == "W" else 8192
            em.ds(f"T {ar(fr,2)}, v{V_ADDR+b}, {sb + a*256}", tag)
            em.ds(f"T {ar(fr+2,2)}, v{V_ADDR+b}, {sb + a*256 + second}", tag)

    def big(qt, idx):
        return V_BIG + (qt * 16 + idx) * 4

    def sacc(kt, qt):
        return V_SACC + (kt * 3 + qt) * 4

    q = []

    def push(instrs, after=None):
        for k, s in enumerate(instrs):
            q.append((after if k == 0 else None, s))

    def drain(cnt):
        k = 0
        while q and k < cnt:
            rdy, s = q[0]
            if rdy is not None and em.n < rdy:
                return
            q.pop(0)
            if isinstance(s, tuple):
                if s[0] == "nop":
                    em.nop(s[1])
                elif s[0] == "st":
                    em.vmem(s[1], "st")
            else:
                e(s)
            k += 1

    def drain_all():
        while q:
            rdy, s = q[0]
            if rdy is not None and em.n < rdy:
                em.nop(rdy - em.n)
            drain(1)

    def s_items(ci, kt):
        out = []
        for qt in range(NT):
            a = sacc(kt, qt)
            if ci == 0 and kt == 0:
                out.append(f"v_max_f32 v{V_M+qt}, v{a}, v{a+1}")
            else:
                out.append(f"v_max3_f32 v{V_M+qt}, v{a}, v{a+1}, v{V_M+qt}")
            out.append(f"CV v{big(qt,ci)+2*kt}, v{a}, v{a+1}")
            out.append(f"v_max3_f32 v{V_M+qt}, v{a+2}, v{a+3}, v{V_M+qt}")
            out.append(f"CV v{big(qt,ci)+2*kt+1}, v{a+2}, v{a+3}")
        return out

    def qconv_items(s):
        out = []
        for qt in range(NT):
            t = V_T + qt * 4
            p0, p1 = big(qt, 2 * s), big(qt, 2 * s + 1)
            out += [f"CV v{t}, v{p0}, v{p0+1}", f"CV v{t+1}, v{p0+2}, v{p0+3}",
                    f"CV v{t+2}, v{p1}, v{p1+1}", f"CV v{t+3}, v{p1+2}, v{p1+3}"]
        out.append(("nop", 2))
        for qt in range(NT):
            t = V_T + qt * 4
            out += [f"v_permlane32_swap_b32 v{t}, v{t+2}", f"v_permlane32_swap_b32 v{t+1}, v{t+3}"]
        out.append(("nop", 2))
        for qt in range(NT):
            t = V_T + qt * 4
            out += [f"v_permlane16_swap_b32 v{t}, v{t+2}", f"v_permlane16_swap_b32 v{t+1}, v{t+3}"]
        out.append(("nop", 1))
        for qt in range(NT):
            t = V_T + qt * 4
            for j in range(4):
                out.append(f"v_accvgpr_write_b32 a{QF(qt, s)+j}, v{t+j}")
        return out

    def QF(qt, s):
        return (qt * 14 + s) * 4

    def xreduce(op):
        out = []
        for sw in ("32", "16"):
            for qt in range(NT):
                out.append(f"v_mov_b32 v{V_T+qt}, v{(V_M if op=='max' else V_L)+qt}")
            out.append(("nop", 2))
            for qt in range(NT):
                out.append(f"v_permlane{sw}_swap_b32 v{V_T+qt}, v{(V_M if op=='max' else V_L)+qt}")
            out.append(("nop", 1))
            for qt in range(NT):
                r = (V_M if op == 'max' else V_L) + qt
                out.append(f"v_{op}_f32 v{r}, v{r}, v{V_T+qt}")
        return out

    def p_items(ci):
        items = []
        k = 0
        for j in range(4):
            for qt in range(NT):
                R = big(qt, ci) + j
                ta, tb = V_T + (k % 4) * 2, V_T + (k % 4) * 2 + 1
                k += 1
                items += [
                    f"v_lshlrev_b32 v{ta}, 16, v{R}",
                    f"v_and_b32 v{tb}, 0xffff0000, v{R}",
                    f"v_fma_f32 v{ta}, v{ta}, s{S_C}, -v{V_MC+qt}",
                    f"v_fma_f32 v{tb}, v{tb}, s{S_C}, -v{V_MC+qt}",
                    f"v_exp_f32 v{ta}, v{ta}",
                    f"v_exp_f32 v{tb}, v{tb}",
                    f"v_add_f32 v{V_L+qt}, v{V_L+qt}, v{ta}",
                    f"v_add_f32 v{V_L+qt}, v{V_L+qt}, v{tb}",
                    f"CV v{R}, v{ta}, v{tb}",
                ]
        return items

    epi_k = [0]

    def epi_items(s):
        out = []
        for qt in range(NT):
            tb = V_SACC + (epi_k[0] % 2) * 12
            epi_k[0] += 1
            for j in range(8):
                out.append(f"v_accvgpr_read_b32 v{tb+j}, a{(qt*16+2*s)*4+j}")
            for j in range(8):
                out.append(f"v_mul_f32 v{tb+j}, v{tb+j}, v{V_L+qt}")
            for j in range(4):
                out.append(f"CV v{tb+8+j}, v{tb+2*j}, v{tb+2*j+1}")
            out.append(f"s_add_u32 s{S_T2}, s{S_OQ+qt}, {(s>>2)*4096}")
            out.append(("st", f"buffer_store_dwordx4 v[{tb+8}:{tb+11}], v{V_ST}, s[{S_O}:{S_O+3}], s{S_T2} offen offset:{(s&3)*1024}"))
        return out

    def mfmas(G):
        i, f = divmod(G, 16)
        kind, ci = chunks[i]
        fr = frag_reg(G)
        if kind == "K" and ci == 0 and f == 0:
            drain_all()
            em.nop(2)
        if kind == "V" and ci == 0 and f == 0:
            drain_all()
            push(xreduce("max"))
            for qt in range(NT):
                push([f"v_mul_f32 v{V_MC+qt}, s{S_C}, v{V_M+qt}", f"v_mov_b32 v{V_L+qt}, 0"])
            push(p_items(0))
            drain_all()
            em.nop(2)
        if kind == "W" and f == 0:
            em.wait_vm(f"x{ci}")
        if kind == "V" and f == 0 and ci > 0:
            drain_all()
            em.nop(2)
        em.wait_lg(f"F{G}")
        per = {"W": 3, "K": 2, "V": 3}[kind]
        for qt in range(NT):
            if kind == "W":
                d = vr(big(qt, f), 4)
                c = "0" if ci == 0 else d
                e(f"M {d}, {ar(fr,4)}, {ar((qt*14+ci)*4,4)}, {c}")
            elif kind == "K":
                kt, ks = f >> 3, f & 7
                if ks == 0:
                    assert not any(isinstance(x[1], str) and f"v{sacc(kt,qt)}," in x[1] for x in q), "pending S items"
                d = vr(sacc(kt, qt), 4)
                c = "0" if ks == 0 else d
                e(f"M {d}, {ar(fr,4)}, {ar(QF(qt,ks),4)}, {c}")
            else:
                d = ar((qt * 16 + f) * 4, 4)
                c = "0" if ci == 0 else d
                e(f"M {d}, {ar(fr,4)}, {vr(big(qt,ci),4)}, {c}")
            drain(per)
        if kind == "W" and ci == 13 and (f & 1):
            push(qconv_items(f >> 1), after=em.n + 9)
        if kind == "K" and (f & 7) == 7:
            push(s_items(ci, f >> 3), after=em.n + 9)
        if kind == "V":
            if f == 0 and ci + 1 < 16:
                push(p_items(ci + 1))
            if ci == 15:
                if f == 0:
                    push(xreduce("add"))
                    push([f"v_rcp_f32 v{V_L+qt}, v{V_L+qt}" for qt in range(NT)])
                    push([("nop", 1)])
                if f & 1:
                    push(epi_items(f >> 1), after=em.n + 9)

    total = nsteps * 16
    li = 0
    for G in range(total + DREAD):
        if G < total:
            i, f = divmod(G, 16)
            if f == 0:
                kind, ci = chunks[i]
                em.wait_vm(f"{kind}{ci}")
                e("s_barrier")
                if PROF:
                    e("s_memtime s[60:61]")
                    e("s_waitcnt lgkmcnt(0)")
                    em.lg = []
                    e(f"v_writelane_b32 v49, s60, {i}")
                if i >= 2 and li < len(later):
                    c = later[li]
                    li += 1
                    slot_of[c] = slot_of[chunks[i - 2]]
                    issue(c, "late")
                if i == 0 or chunks[i - 1][0] != kind:
                    drain_all()
                    set_addr(kind)
                set_base(slot_of[chunks[i]] >> 2)
            reads(G)
        m = G - DREAD
        if m >= 0:
            mfmas(m)
    drain_all()
    if PROF:
        e("s_memtime s[60:61]")
        e("s_waitcnt lgkmcnt(0)")
        e("v_writelane_b32 v49, s60, 46")
        e("s_waitcnt vmcnt(0)")
        e("s_memtime s[60:61]")
        e("s_waitcnt lgkmcnt(0)")
        e("v_writelane_b32 v49, s60, 47")
        e("v_writelane_b32 v49, s62, 48")
        e("s_memrealtime s[60:61]")
        e("s_waitcnt lgkmcnt(0)")
        e("v_writelane_b32 v49, s60, 49")
        e("v_writelane_b32 v49, s64, 50")
        e("s_lshl_b32 s60, s2, 2")
        e(f"s_add_u32 s60, s60, s{S_WAVE}")
        e("s_lshl_b32 s60, s60, 8")
        e(f"s_add_u32 s60, s60, {32<<20}")
        e(f"v_lshlrev_b32 v50, 2, v{V_LANE}")
        e(f"s_mov_b32 s{S_O+2}, {64<<20}")
        e(f"buffer_store_dword v49, v50, s[{S_O}:{S_O+3}], s60 offen")
    e("s_endpgm")


def k1(em):
    e = em.e
    em.raw(".globl attn_kernel\n.p2align 8\n.type attn_kernel,@function\nattn_kernel:")
    e("s_cmp_ge_u32 s2, 256")
    e("s_cbranch_scc1 L_k1_exit")
    if PROF:
        e("s_memtime s[62:63]")
        e("s_memrealtime s[64:65]")
    e("s_load_dwordx8 s[44:51], s[0:1], 0")
    e("s_load_dwordx2 s[52:53], s[0:1], 56")
    e("s_and_b32 s3, s2, 7")
    e("s_lshr_b32 s4, s2, 3")
    e("s_and_b32 s5, s3, 3")
    e("s_lshl_b32 s5, s5, 2")
    e("s_and_b32 s6, s4, 3")
    e("s_add_u32 s5, s5, s6")
    e("s_lshr_b32 s6, s3, 2")
    e("s_lshl_b32 s6, s6, 3")
    e("s_lshr_b32 s7, s4, 2")
    e("s_add_u32 s6, s6, s7")
    e(f"v_and_b32 v{V_LANE}, 63, v0")
    e("v_lshrrev_b32 v2, 6, v0")
    e("s_nop 0")
    e(f"v_readfirstlane_b32 s{S_WAVE}, v2")
    e(f"s_mov_b32 s{S_C}, {hex(struct.unpack('<I', struct.pack('<f', math.log2(math.e)/16.0))[0])}")
    e("s_waitcnt lgkmcnt(0)")
    e("s_mul_i32 s7, s6, 129024")
    e(f"s_add_u32 s{S_X}, s44, s7")
    e(f"s_addc_u32 s{S_X+1}, s45, 0")
    e(f"s_mov_b32 s{S_X+2}, 129024")
    e(f"s_mov_b32 s{S_X+3}, 0x20000")
    e("s_lshl_b32 s7, s6, 4")
    e("s_add_u32 s7, s7, s5")
    e("s_lshl_b32 s7, s7, 18")
    e(f"s_add_u32 s{S_K}, s46, s7")
    e(f"s_addc_u32 s{S_K+1}, s47, 0")
    e(f"s_mov_b32 s{S_K+2}, 262144")
    e(f"s_mov_b32 s{S_K+3}, 0x20000")
    e(f"s_add_u32 s{S_V}, s48, s7")
    e(f"s_addc_u32 s{S_V+1}, s49, 0")
    e(f"s_mov_b32 s{S_V+2}, 262144")
    e(f"s_mov_b32 s{S_V+3}, 0x20000")
    e("s_lshl_b32 s7, s5, 9")
    e(f"s_add_u32 s{S_W}, s50, s7")
    e(f"s_addc_u32 s{S_W+1}, s51, 0")
    e(f"s_mov_b32 s{S_W+2}, {447*8192+512}")
    e(f"s_mov_b32 s{S_W+3}, 0x20000")
    e(f"s_mov_b32 s{S_O}, s52")
    e(f"s_mov_b32 s{S_O+1}, s53")
    e(f"s_mov_b32 s{S_O+2}, {144*128*1024}")
    e(f"s_mov_b32 s{S_O+3}, 0x20000")
    e(f"s_lshl_b32 s7, s{S_WAVE}, 1")
    e("s_add_u32 s7, s7, 1")
    e(f"s_cmp_eq_u32 s{S_WAVE}, 0")
    e("s_cselect_b32 s7, 0, s7")
    for qt in range(3):
        e(f"s_add_u32 s42, s7, {qt}")
        e(f"s_mul_i32 s{S_XQ+qt}, s42, 14336")
        e("s_mul_i32 s43, s6, 9")
        e("s_add_u32 s43, s43, s42")
        e("s_lshl_b32 s43, s43, 7")
        e("s_lshl_b32 s42, s5, 3")
        e("s_add_u32 s43, s43, s42")
        e(f"s_lshl_b32 s{S_OQ+qt}, s43, 10")
    e(f"v_and_b32 v2, 15, v{V_LANE}")
    e("v_mul_u32_u24 v2, 896, v2")
    e(f"v_lshrrev_b32 v3, 4, v{V_LANE}")
    e(f"v_lshl_add_u32 v{V_XO}, v3, 4, v2")
    e(f"v_lshlrev_b32 v{V_ST}, 4, v{V_LANE}")
    e(f"s_cmp_eq_u32 s{S_WAVE}, 0")
    e("s_cbranch_scc1 L_k1_w0")
    e(f"s_cmp_eq_u32 s{S_WAVE}, 1")
    e("s_cbranch_scc1 L_k1_w1")
    e(f"s_cmp_eq_u32 s{S_WAVE}, 2")
    e("s_cbranch_scc1 L_k1_w2")
    e("s_branch L_k1_tramp")
    em.raw("L_k1_exit:")
    e("s_endpgm")
    for w in (0, 1, 2, 3):
        em.raw(f"L_k1_w{w}:")
        sub = Em()
        k1_variant(sub, w)
        em.lines += sub.lines
        if w == 1:
            em.raw("L_k1_tramp:")
            e("s_branch L_k1_w3")


def k2(em):
    e = em.e
    NS = K2NS
    S_WO, S_OS, S_OUT = 8, 12, 16
    S_W, S_WG, S_WL, S_T, S_ST = 20, 21, 22, 23, 24
    V_L, V_DMA, V_B, V_O, V_A = 1, 2, 3, 4, 6
    V_ACC = 12
    V_FR = 32
    V_BF = 64
    em.raw(".globl oproj_kernel\n.p2align 8\n.type oproj_kernel,@function\noproj_kernel:")
    e("s_cmp_ge_u32 s2, 256")
    e("s_cbranch_scc1 L_k2_exit")
    if PROF:
        e("s_memtime s[62:63]")
    e("s_and_b32 s3, s2, 7")
    e("s_lshr_b32 s4, s2, 3")
    e("s_lshl_b32 s3, s3, 5")
    e("s_add_u32 s3, s3, s4")
    e("s_cmp_ge_u32 s3, 252")
    e("s_cbranch_scc1 L_k2_exit")
    e("s_load_dwordx4 s[44:47], s[0:1], 32")
    e("s_load_dwordx2 s[48:49], s[0:1], 56")
    e("s_mul_i32 s4, s3, 9363")
    e("s_lshr_b32 s4, s4, 16")
    e("s_mul_i32 s5, s4, 7")
    e("s_sub_u32 s5, s3, s5")
    e(f"v_and_b32 v{V_L}, 63, v0")
    e("v_lshrrev_b32 v2, 6, v0")
    e("s_nop 0")
    e(f"v_readfirstlane_b32 s{S_W}, v2")
    e("s_waitcnt lgkmcnt(0)")
    e("s_lshl_b32 s6, s5, 7")
    e(f"s_add_u32 s{S_WO}, s44, s6")
    e(f"s_addc_u32 s{S_WO+1}, s45, 0")
    e(f"s_sub_u32 s{S_WO+2}, {4096*896}, s6")
    e(f"s_mov_b32 s{S_WO+3}, 0x20000")
    e("s_lshl_b32 s7, s4, 2")
    e(f"s_add_u32 s7, s7, s{S_W}")
    e("s_lshl_b32 s25, s7, 17")
    e(f"s_add_u32 s{S_OS}, s48, s25")
    e(f"s_addc_u32 s{S_OS+1}, s49, 0")
    e(f"s_mov_b32 s{S_OS+2}, 131072")
    e(f"s_mov_b32 s{S_OS+3}, 0x20000")
    e(f"s_mov_b32 s{S_OUT}, s46")
    e(f"s_mov_b32 s{S_OUT+1}, s47")
    e(f"s_mov_b32 s{S_OUT+2}, {2304*896}")
    e(f"s_mov_b32 s{S_OUT+3}, 0x20000")
    e(f"s_mul_i32 s{S_ST}, s7, {16*896}")
    e(f"s_add_u32 s{S_ST}, s{S_ST}, s6")
    e(f"s_mul_i32 s{S_WG}, s{S_W}, {32*896}")
    e(f"s_lshl_b32 s{S_WL}, s{S_W}, 12")
    e(f"v_lshrrev_b32 v10, 3, v{V_L}")
    e("v_mul_u32_u24 v10, 896, v10")
    e(f"v_bfe_u32 v11, v{V_L}, 1, 2")
    e(f"v_lshrrev_b32 v12, 4, v{V_L}")
    e("v_xor_b32 v11, v11, v12")
    e("v_lshl_add_u32 v10, v11, 5, v10")
    e(f"v_and_b32 v11, 1, v{V_L}")
    e(f"v_lshl_add_u32 v{V_DMA}, v11, 4, v10")
    e(f"v_lshlrev_b32 v{V_B}, 4, v{V_L}")
    e(f"v_and_b32 v10, 15, v{V_L}")
    e("v_mul_u32_u24 v10, 896, v10")
    e(f"v_lshl_add_u32 v{V_O}, v12, 3, v10")
    e(f"v_bfe_u32 v10, v{V_L}, 2, 2")
    e("v_lshl_add_u32 v10, v12, 2, v10")
    e("v_bfe_u32 v11, v10, 1, 2")
    e("v_lshlrev_b32 v10, 7, v10")
    e("v_lshl_add_u32 v10, v11, 5, v10")
    e(f"v_and_b32 v11, 3, v{V_L}")
    e("v_lshl_add_u32 v10, v11, 3, v10")
    for u in range(4):
        e(f"v_xor_b32 v{V_A+u}, {u<<5}, v10")
    st = {"base": 0}

    def issue(cc):
        slot = cc % NS
        tag = f"C{cc}"
        for jj in range(4):
            e(f"s_add_u32 m0, s{S_WL}, {slot*16384 + jj*1024}")
            e(f"s_add_u32 s{S_T}, s{S_WG}, {(cc*128 + jj*8)*896}")
            em.vmem(f"buffer_load_dwordx4 v{V_DMA}, s[{S_WO}:{S_WO+3}], s{S_T} offen lds", tag)
        e(f"s_mov_b32 s{S_T}, {cc*4096}")
        for ss in range(4):
            em.vmem(f"buffer_load_dwordx4 {vr(V_BF + slot*16 + ss*4, 4)}, v{V_B}, s[{S_OS}:{S_OS+3}], s{S_T} offen offset:{ss*1024}{K2NT}", tag)

    for cc in range(NS):
        issue(cc)
    D = 4
    total = 32 * 16

    def reads(G):
        cc, f = divmod(G, 16)
        ss, u = f >> 2, f & 3
        slot = cc % NS
        if f == 0:
            grp = slot >> 2
            if grp != st["base"]:
                d = (grp - st["base"]) * 65536
                for b in range(4):
                    e(f"v_add_u32 v{V_A+b}, {d & 0xffffffff}, v{V_A+b}")
                st["base"] = grp
        off = (slot & 3) * 16384 + ss * 4096
        fr = V_FR + (G % 8) * 4
        em.ds(f"T {vr(fr,2)}, v{V_A+u}, {off}", f"F{G}")
        em.ds(f"T {vr(fr+2,2)}, v{V_A+u}, {off+2048}", f"F{G}")

    def mfma(G):
        cc, f = divmod(G, 16)
        ss, u = f >> 2, f & 3
        slot = cc % NS
        fr = V_FR + (G % 8) * 4
        em.wait_lg(f"F{G}")
        d = vr(V_ACC + u * 4, 4)
        c = "0" if (cc == 0 and ss == 0) else d
        e(f"M {d}, {vr(fr,4)}, {vr(V_BF + slot*16 + ss*4, 4)}, {c}")

    for G in range(total + D):
        if G < total:
            cc, f = divmod(G, 16)
            if f == 0:
                em.wait_vm(f"C{cc}")
                e("s_barrier")
                if PROF:
                    e("s_memtime s[60:61]")
                    e("s_waitcnt lgkmcnt(0)")
                    em.lg = []
                    e(f"v_writelane_b32 v5, s60, {cc}")
                if cc >= 2 and cc - 2 + NS < 32:
                    issue(cc - 2 + NS)
            reads(G)
        if G - D >= 0:
            mfma(G - D)
    em.nop(9)
    for u in range(4):
        a = V_ACC + u * 4
        e(f"CV v{28+ (u%2)*2}, v{a}, v{a+1}")
        e(f"CV v{29+ (u%2)*2}, v{a+2}, v{a+3}")
        e(f"buffer_store_dwordx2 v[{28+(u%2)*2}:{29+(u%2)*2}], v{V_O}, s[{S_OUT}:{S_OUT+3}], s{S_ST} offen offset:{u*32}")
    if PROF:
        e("s_waitcnt vmcnt(0)")
        e("s_memtime s[60:61]")
        e("s_waitcnt lgkmcnt(0)")
        e("v_writelane_b32 v5, s60, 47")
        e("v_writelane_b32 v5, s62, 48")
        e("s_lshl_b32 s60, s2, 2")
        e(f"s_add_u32 s60, s60, s{S_W}")
        e("s_lshl_b32 s60, s60, 8")
        e(f"s_add_u32 s60, s60, {33<<20}")
        e(f"v_lshlrev_b32 v10, 2, v{V_L}")
        e(f"s_mov_b32 s{S_OS}, s48")
        e(f"s_mov_b32 s{S_OS+1}, s49")
        e(f"s_mov_b32 s{S_OS+2}, {64<<20}")
        e(f"buffer_store_dword v5, v10, s[{S_OS}:{S_OS+3}], s60 offen")
    em.raw("L_k2_exit:")
    e("s_endpgm")


def kd(name, vgpr, acc):
    return f""".p2align 6
.amdhsa_kernel {name}
  .amdhsa_next_free_vgpr {vgpr}
  .amdhsa_next_free_sgpr 102
  .amdhsa_accum_offset {acc}
  .amdhsa_group_segment_fixed_size 0
  .amdhsa_kernarg_size 64
  .amdhsa_user_sgpr_count 2
  .amdhsa_user_sgpr_kernarg_segment_ptr 1
  .amdhsa_system_sgpr_workgroup_id_x 1
.end_amdhsa_kernel
"""


def main():
    em = Em()
    k1(em)
    em2 = Em()
    k2(em2)
    txt = HEADER + "\n".join(em.lines) + "\n" + "\n".join(em2.lines) + "\n"
    txt += '.section .rodata,"a"\n' + kd("attn_kernel", 512, 256) + kd("oproj_kernel", 256, 256)
    open(OUT, "w").write(txt)
    print("wrote", OUT, len(txt), "bytes")


main()
```

```python
import math, sys, os, struct

OUT = sys.argv[1] if len(sys.argv) > 1 else "standalone__mha_block_cached__near_ridge.s"
PROF = os.environ.get("PROF", "0") == "1"
NSLOT = 10
NW0 = int(os.environ.get("NW0", "4"))
NK0 = NSLOT - NW0
PX = int(os.environ.get("PX", "4"))
DREAD = int(os.environ.get("DREAD", "5"))
KVNT = os.environ.get("KVNT", " nt")
K2NS = int(os.environ.get("K2NS", "7"))
K2NT = " nt" if os.environ.get("K2NT", "0") == "1" else ""

HEADER = f"""; Kernarg layout for this problem (64 bytes, ptrs only, base s[0:1]):
; @launch kernel=attn_kernel grid=(256,1,1) block=(256,1,1) lds=163840
; @launch kernel=oproj_kernel grid=(256,1,1) block=(256,1,1) lds={K2NS*16384}
.amdgcn_target "amdgcn-amd-amdhsa--gfx950"
.macro M d, a, b, c
v_mfma_f32_16x16x32_bf16 \\d, \\a, \\b, \\c
.endm
.macro T d, a, o
ds_read_b64_tr_b16 \\d, \\a offset:\\o
.endm
.macro R d, a, o
ds_read_b128 \\d, \\a offset:\\o
.endm
.macro WL n
s_waitcnt lgkmcnt(\\n)
.endm
.macro CV d, a, b
v_cvt_pk_bf16_f32 \\d, \\a, \\b
.endm
.text
"""


class Em:
    def __init__(self):
        self.lines = []
        self.vm = []
        self.lg = []
        self.n = 0

    def e(self, s):
        self.lines.append(s)
        self.n += 1

    def raw(self, s):
        self.lines.append(s)

    def vmem(self, s, tag):
        self.e(s)
        self.vm.append(tag)

    def ds(self, s, tag):
        self.e(s)
        self.lg.append(tag)

    def wait_vm(self, tag):
        idx = max([i for i, t in enumerate(self.vm) if t == tag], default=-1)
        if idx < 0:
            return
        n = min(len(self.vm) - 1 - idx, 63)
        self.e(f"s_waitcnt vmcnt({n})")
        self.vm = self.vm[len(self.vm) - n:] if n > 0 else []

    def wait_lg(self, tag):
        idx = max([i for i, t in enumerate(self.lg) if t == tag], default=-1)
        if idx < 0:
            return
        n = min(len(self.lg) - 1 - idx, 15)
        self.e(f"WL {n}")
        self.lg = self.lg[len(self.lg) - n:] if n > 0 else []

    def nop(self, states):
        while states > 0:
            k = min(states, 16)
            self.e(f"s_nop {k-1}")
            self.n += k - 1
            states -= k


def vr(b, n=1):
    return f"v{b}" if n == 1 else f"v[{b}:{b+n-1}]"


def ar(b, n=1):
    return f"a{b}" if n == 1 else f"a[{b}:{b+n-1}]"


S_X, S_K, S_V, S_W, S_O = 8, 12, 16, 20, 24
S_WAVE = 28
S_C = 29
S_XQ = 32
S_OQ = 36
S_T = 40
S_T2 = 41
V_LANE = 1
V_ADDR = 2
V_D = 10
V_XO = 14
V_ST = 15
V_SACC = 16
V_M = 40
V_L = 43
V_MC = 46
V_T = 50
V_BIG = 64
A_FR = 192


def k1_variant(em, w):
    e = em.e
    NT = 3 if w == 0 else 2
    chunks = [("W", i) for i in range(14)] + [("K", i) for i in range(16)] + [("V", i) for i in range(16)]
    nsteps = len(chunks)
    slot_of = {}
    init = [("W", i) for i in range(NW0)] + [("K", i) for i in range(NK0)]
    for s, c in enumerate(init):
        slot_of[c] = s
    later = [c for c in chunks if c not in slot_of]

    wcls = {1: (0, 2), 2: (1, 3)}.get(w)
    WROW = [0, 2, 8, 10]
    t0, t1, t2, t3 = V_T, V_T + 1, V_T + 2, V_T + 3

    def kv_voff(dst, cls):
        e(f"v_lshrrev_b32 v{t0}, 5, v{V_LANE}")
        e(f"v_add_u32 v{t0}, {2*cls}, v{t0}")
        e(f"v_and_b32 v{t1}, 31, v{V_LANE}")
        e(f"v_lshlrev_b32 v{t2}, 1, v{t0}")
        e(f"v_xor_b32 v{t2}, v{t1}, v{t2}")
        e(f"v_lshlrev_b32 v{t2}, 4, v{t2}")
        e(f"v_lshl_add_u32 v{dst}, v{t0}, 9, v{t2}")

    def w_voff(dst, cls):
        e(f"v_lshrrev_b32 v{t0}, 5, v{V_LANE}")
        e(f"v_add_u32 v{t0}, {WROW[cls]}, v{t0}")
        e(f"v_and_b32 v{t1}, 31, v{V_LANE}")
        e(f"v_and_b32 v{t2}, 3, v{t0}")
        e(f"v_bfe_u32 v{t3}, v{t0}, 3, 1")
        e(f"v_lshl_add_u32 v{t2}, v{t3}, 2, v{t2}")
        e(f"v_lshlrev_b32 v{t2}, 1, v{t2}")
        e(f"v_xor_b32 v{t2}, v{t1}, v{t2}")
        e(f"v_lshlrev_b32 v{t2}, 4, v{t2}")
        e(f"v_lshl_add_u32 v{dst}, v{t0}, 13, v{t2}")

    kvreg = {}
    if w in (1, 2):
        w_voff(V_D, wcls[0])
        w_voff(V_D + 1, wcls[1])
        kv_voff(V_D + 2, w)
        kv_voff(V_D + 3, 0)
        kvreg = {w: V_D + 2, 0: V_D + 3}
    elif w == 3:
        for c in range(4):
            kv_voff(V_D + c, c)
            kvreg[c] = V_D + c

    def dma_list(chunk, mode):
        kind, ci = chunk
        slot = slot_of[chunk]
        out = []
        if kind == "W":
            if wcls is None:
                return out
            for k, cw in enumerate(wcls):
                for jr in (0, 4, 16, 20):
                    out.append((slot * 16384 + (WROW[cw] + jr) * 512, (ci * 32 + jr) * 8192, V_D + k, S_W, ""))
        else:
            srd = S_K if kind == "K" else S_V
            if mode == "init":
                pieces = [(c, jj) for c in range(4) for jj in range(4)] if w == 3 else []
            elif w == 0:
                pieces = []
            else:
                pieces = [(w, jj) for jj in range(4)] + [(0, jj) for jj in {1: (0, 1), 2: (2,), 3: (3,)}[w]]
            for c, jj in pieces:
                out.append((slot * 16384 + c * 1024 + jj * 4096, ci * 16384 + jj * 4096, kvreg[c], srd, KVNT))
        return out

    dq = []

    def emit_dma(item):
        lds, goff, vo, srd, nt, tag = item
        e(f"s_mov_b32 m0, {lds}")
        e(f"s_mov_b32 s{S_T}, {goff}")
        em.vmem(f"buffer_load_dwordx4 v{vo}, s[{srd}:{srd+3}], s{S_T} offen{nt} lds", tag)

    def issue(chunk, mode, defer=False):
        tag = f"{chunk[0]}{chunk[1]}"
        for it in dma_list(chunk, mode):
            if defer:
                dq.append(it + (tag,))
            else:
                emit_dma(it + (tag,))

    def xload(c):
        if c < 14:
            for qt in range(NT):
                em.vmem(f"buffer_load_dwordx4 {ar((qt*14+c)*4,4)}, v{V_XO}, s[{S_X}:{S_X+3}], s{S_XQ+qt} offen offset:{c*64}", f"x{c}")

    for c in range(max(NW0, PX)):
        if c < NW0:
            issue(("W", c), "init")
        if c < PX:
            xload(c)
    issue(("K", 0), "init")

    if PROF:
        e("s_memtime s[60:61]")
        e("s_waitcnt lgkmcnt(0)")
        e("v_writelane_b32 v49, s60, 52")
    st = {"base": 0}

    def set_addr(kind):
        e(f"v_lshrrev_b32 v{t0}, 4, v{V_LANE}")
        e(f"v_bfe_u32 v{t1}, v{V_LANE}, 2, 2")
        e(f"v_and_b32 v{t2}, 3, v{V_LANE}")
        if kind == "W":
            e(f"v_lshl_add_u32 v{t3}, v{t0}, 3, v{t1}")
            e(f"v_lshlrev_b32 v{t3}, 9, v{t3}")
            e(f"v_and_b32 v{t0}, 1, v{t0}")
            e(f"v_lshl_add_u32 v{t0}, v{t0}, 2, v{t1}")
            e(f"v_lshl_add_u32 v{t3}, v{t0}, 5, v{t3}")
            e(f"v_lshl_add_u32 v{t3}, v{t2}, 3, v{t3}")
            nb, sh = 8, 5
        elif kind == "V":
            e(f"v_lshl_add_u32 v{t0}, v{t0}, 2, v{t1}")
            e(f"v_lshlrev_b32 v{t3}, 9, v{t0}")
            e(f"v_and_b32 v{t0}, 7, v{t0}")
            e(f"v_lshl_add_u32 v{t3}, v{t0}, 5, v{t3}")
            e(f"v_lshl_add_u32 v{t3}, v{t2}, 3, v{t3}")
            nb, sh = 8, 5
        else:
            e(f"v_and_b32 v{t1}, 15, v{V_LANE}")
            e(f"v_lshlrev_b32 v{t3}, 9, v{t1}")
            e(f"v_and_b32 v{t1}, 7, v{t1}")
            e(f"v_lshlrev_b32 v{t1}, 1, v{t1}")
            e(f"v_xor_b32 v{t1}, v{t0}, v{t1}")
            e(f"v_lshl_add_u32 v{t3}, v{t1}, 4, v{t3}")
            nb, sh = 4, 6
        for b in range(nb):
            e(f"v_xor_b32 v{V_ADDR+b}, {b << sh}, v{t3}")
        st["base"] = 0
        st["nb"] = nb

    def set_base(grp):
        if grp != st["base"]:
            d = (grp - st["base"]) * 65536
            for b in range(st["nb"]):
                e(f"v_add_u32 v{V_ADDR+b}, {d & 0xffffffff}, v{V_ADDR+b}")
            st["base"] = grp

    def frag_reg(G):
        return A_FR + (G % 16) * 4

    def reads(G):
        i, f = divmod(G, 16)
        kind, ci = chunks[i]
        slot = slot_of[chunks[i]]
        sb = (slot & 3) * 16384
        fr = frag_reg(G)
        tag = f"F{G}"
        if kind == "K":
            kt, ks = f >> 3, f & 7
            a, b = ks >> 2, ks & 3
            em.ds(f"R {ar(fr,4)}, v{V_ADDR+b}, {sb + kt*8192 + a*256}", tag)
        else:
            a, b = f >> 3, f & 7
            second = 2048 if kind == "W" else 8192
            em.ds(f"T {ar(fr,2)}, v{V_ADDR+b}, {sb + a*256}", tag)
            em.ds(f"T {ar(fr+2,2)}, v{V_ADDR+b}, {sb + a*256 + second}", tag)

    def big(qt, idx):
        return V_BIG + (qt * 16 + idx) * 4

    def sacc(kt, qt):
        return V_SACC + (kt * 3 + qt) * 4

    q = []

    def push(instrs, after=None):
        for k, s in enumerate(instrs):
            q.append((after if k == 0 else None, s))

    def drain(cnt):
        k = 0
        while q and k < cnt:
            rdy, s = q[0]
            if rdy is not None and em.n < rdy:
                return
            q.pop(0)
            if isinstance(s, tuple):
                if s[0] == "nop":
                    em.nop(s[1])
                elif s[0] == "st":
                    em.vmem(s[1], "st")
            else:
                e(s)
            k += 1

    def drain_all():
        while q:
            rdy, s = q[0]
            if rdy is not None and em.n < rdy:
                em.nop(rdy - em.n)
            drain(1)

    def s_items(ci, kt):
        out = []
        for qt in range(NT):
            a = sacc(kt, qt)
            if ci == 0 and kt == 0:
                out.append(f"v_max_f32 v{V_M+qt}, v{a}, v{a+1}")
            else:
                out.append(f"v_max3_f32 v{V_M+qt}, v{a}, v{a+1}, v{V_M+qt}")
            out.append(f"CV v{big(qt,ci)+2*kt}, v{a}, v{a+1}")
            out.append(f"v_max3_f32 v{V_M+qt}, v{a+2}, v{a+3}, v{V_M+qt}")
            out.append(f"CV v{big(qt,ci)+2*kt+1}, v{a+2}, v{a+3}")
        return out

    def qconv_items(s):
        out = []
        for qt in range(NT):
            t = V_T + qt * 4
            p0, p1 = big(qt, 2 * s), big(qt, 2 * s + 1)
            out += [f"CV v{t}, v{p0}, v{p0+1}", f"CV v{t+1}, v{p0+2}, v{p0+3}",
                    f"CV v{t+2}, v{p1}, v{p1+1}", f"CV v{t+3}, v{p1+2}, v{p1+3}"]
        out.append(("nop", 2))
        for qt in range(NT):
            t = V_T + qt * 4
            out += [f"v_permlane32_swap_b32 v{t}, v{t+2}", f"v_permlane32_swap_b32 v{t+1}, v{t+3}"]
        out.append(("nop", 2))
        for qt in range(NT):
            t = V_T + qt * 4
            out += [f"v_permlane16_swap_b32 v{t}, v{t+2}", f"v_permlane16_swap_b32 v{t+1}, v{t+3}"]
        out.append(("nop", 1))
        for qt in range(NT):
            t = V_T + qt * 4
            for j in range(4):
                out.append(f"v_accvgpr_write_b32 a{QF(qt, s)+j}, v{t+j}")
        return out

    def QF(qt, s):
        return (qt * 14 + s) * 4

    def xreduce(op):
        out = []
        for sw in ("32", "16"):
            for qt in range(NT):
                out.append(f"v_mov_b32 v{V_T+qt}, v{(V_M if op=='max' else V_L)+qt}")
            out.append(("nop", 2))
            for qt in range(NT):
                out.append(f"v_permlane{sw}_swap_b32 v{V_T+qt}, v{(V_M if op=='max' else V_L)+qt}")
            out.append(("nop", 1))
            for qt in range(NT):
                r = (V_M if op == 'max' else V_L) + qt
                out.append(f"v_{op}_f32 v{r}, v{r}, v{V_T+qt}")
        return out

    def p_items(ci):
        items = []
        k = 0
        for j in range(4):
            for qt in range(NT):
                R = big(qt, ci) + j
                ta, tb = V_T + (k % 4) * 2, V_T + (k % 4) * 2 + 1
                k += 1
                items += [
                    f"v_lshlrev_b32 v{ta}, 16, v{R}",
                    f"v_and_b32 v{tb}, 0xffff0000, v{R}",
                    f"v_fma_f32 v{ta}, v{ta}, s{S_C}, -v{V_MC+qt}",
                    f"v_fma_f32 v{tb}, v{tb}, s{S_C}, -v{V_MC+qt}",
                    f"v_exp_f32 v{ta}, v{ta}",
                    f"v_exp_f32 v{tb}, v{tb}",
                    f"v_add_f32 v{V_L+qt}, v{V_L+qt}, v{ta}",
                    f"v_add_f32 v{V_L+qt}, v{V_L+qt}, v{tb}",
                    f"CV v{R}, v{ta}, v{tb}",
                ]
        return items

    epi_k = [0]

    def epi_items(s):
        out = []
        for qt in range(NT):
            tb = V_SACC + (epi_k[0] % 2) * 12
            epi_k[0] += 1
            for j in range(8):
                out.append(f"v_accvgpr_read_b32 v{tb+j}, a{(qt*16+2*s)*4+j}")
            for j in range(8):
                out.append(f"v_mul_f32 v{tb+j}, v{tb+j}, v{V_L+qt}")
            for j in range(4):
                out.append(f"CV v{tb+8+j}, v{tb+2*j}, v{tb+2*j+1}")
            out.append(f"s_add_u32 s{S_T2}, s{S_OQ+qt}, {(s>>2)*4096}")
            out.append(("st", f"buffer_store_dwordx4 v[{tb+8}:{tb+11}], v{V_ST}, s[{S_O}:{S_O+3}], s{S_T2} offen offset:{(s&3)*1024}"))
        return out

    def mfmas(G):
        i, f = divmod(G, 16)
        kind, ci = chunks[i]
        fr = frag_reg(G)
        if kind == "K" and ci == 0 and f == 0:
            drain_all()
            em.nop(2)
        if kind == "V" and ci == 0 and f == 0:
            drain_all()
            push(xreduce("max"))
            for qt in range(NT):
                push([f"v_mul_f32 v{V_MC+qt}, s{S_C}, v{V_M+qt}", f"v_mov_b32 v{V_L+qt}, 0"])
            push(p_items(0))
            drain_all()
            em.nop(2)
        if kind == "W" and f == 0:
            em.wait_vm(f"x{ci}")
            if PROF and ci == 0:
                e("s_memtime s[60:61]")
                e("s_waitcnt lgkmcnt(0)")
                em.lg = []
                e("v_writelane_b32 v49, s60, 53")
        if kind == "V" and f == 0 and ci > 0:
            drain_all()
            em.nop(2)
        em.wait_lg(f"F{G}")
        per = {"W": 3, "K": 2, "V": 3}[kind]
        for qt in range(NT):
            if kind == "W":
                d = vr(big(qt, f), 4)
                c = "0" if ci == 0 else d
                e(f"M {d}, {ar(fr,4)}, {ar((qt*14+ci)*4,4)}, {c}")
            elif kind == "K":
                kt, ks = f >> 3, f & 7
                if ks == 0:
                    assert not any(isinstance(x[1], str) and f"v{sacc(kt,qt)}," in x[1] for x in q), "pending S items"
                d = vr(sacc(kt, qt), 4)
                c = "0" if ks == 0 else d
                e(f"M {d}, {ar(fr,4)}, {ar(QF(qt,ks),4)}, {c}")
            else:
                d = ar((qt * 16 + f) * 4, 4)
                c = "0" if ci == 0 else d
                e(f"M {d}, {ar(fr,4)}, {vr(big(qt,ci),4)}, {c}")
            drain(per)
        if kind == "W" and ci == 13 and (f & 1):
            push(qconv_items(f >> 1), after=em.n + 9)
        if kind == "K" and (f & 7) == 7:
            push(s_items(ci, f >> 3), after=em.n + 9)
        if kind == "V":
            if f == 0 and ci + 1 < 16:
                push(p_items(ci + 1))
            if ci == 15:
                if f == 0:
                    push(xreduce("add"))
                    push([f"v_rcp_f32 v{V_L+qt}, v{V_L+qt}" for qt in range(NT)])
                    push([("nop", 1)])
                if f & 1:
                    push(epi_items(f >> 1), after=em.n + 9)

    total = nsteps * 16
    li = 0
    for G in range(total + DREAD):
        if G < total:
            i, f = divmod(G, 16)
            if f == 0:
                kind, ci = chunks[i]
                if PROF:
                    e("s_memtime s[60:61]")
                    e("s_waitcnt lgkmcnt(0)")
                    em.lg = []
                    e(f"v_writelane_b32 v63, s60, {i}")
                em.wait_vm(f"{kind}{ci}")
                e("s_barrier")
                if PROF:
                    e("s_memtime s[60:61]")
                    e("s_waitcnt lgkmcnt(0)")
                    em.lg = []
                    e(f"v_writelane_b32 v49, s60, {i}")
                xload(i + PX)
                while dq:
                    emit_dma(dq.pop(0))
                if i + 1 < NK0:
                    issue(("K", i + 1), "init", True)
                if i >= 2 and li < len(later):
                    c = later[li]
                    li += 1
                    slot_of[c] = slot_of[chunks[i - 2]]
                    issue(c, "late", True)
                if i == 0 or chunks[i - 1][0] != kind:
                    drain_all()
                    set_addr(kind)
                set_base(slot_of[chunks[i]] >> 2)
            reads(G)
        m = G - DREAD
        if m >= 0:
            mfmas(m)
        if dq:
            emit_dma(dq.pop(0))
    drain_all()
    if PROF:
        e("s_memtime s[60:61]")
        e("s_waitcnt lgkmcnt(0)")
        e("v_writelane_b32 v49, s60, 46")
        e("s_waitcnt vmcnt(0)")
        e("s_memtime s[60:61]")
        e("s_waitcnt lgkmcnt(0)")
        e("v_writelane_b32 v49, s60, 47")
        e("v_writelane_b32 v49, s62, 48")
        e("s_memrealtime s[60:61]")
        e("s_waitcnt lgkmcnt(0)")
        e("v_writelane_b32 v49, s60, 49")
        e("v_writelane_b32 v49, s64, 50")
        e("s_lshl_b32 s60, s2, 2")
        e(f"s_add_u32 s60, s60, s{S_WAVE}")
        e("s_lshl_b32 s60, s60, 8")
        e(f"s_add_u32 s60, s60, {32<<20}")
        e(f"v_lshlrev_b32 v50, 2, v{V_LANE}")
        e(f"s_mov_b32 s{S_O+2}, {64<<20}")
        e(f"buffer_store_dword v49, v50, s[{S_O}:{S_O+3}], s60 offen")
        e(f"s_add_u32 s60, s60, {2<<20}")
        e(f"buffer_store_dword v63, v50, s[{S_O}:{S_O+3}], s60 offen")
    e("s_endpgm")


def k1(em):
    e = em.e
    em.raw(".globl attn_kernel\n.p2align 8\n.type attn_kernel,@function\nattn_kernel:")
    e("s_cmp_ge_u32 s2, 256")
    e("s_cbranch_scc1 L_k1_exit")
    if PROF:
        e("s_memtime s[62:63]")
        e("s_memrealtime s[64:65]")
    e("s_load_dwordx8 s[44:51], s[0:1], 0")
    e("s_load_dwordx2 s[52:53], s[0:1], 56")
    e("s_and_b32 s3, s2, 7")
    e("s_lshr_b32 s4, s2, 3")
    e("s_and_b32 s5, s3, 3")
    e("s_lshl_b32 s5, s5, 2")
    e("s_and_b32 s6, s4, 3")
    e("s_add_u32 s5, s5, s6")
    e("s_lshr_b32 s6, s3, 2")
    e("s_lshl_b32 s6, s6, 3")
    e("s_lshr_b32 s7, s4, 2")
    e("s_add_u32 s6, s6, s7")
    e(f"v_and_b32 v{V_LANE}, 63, v0")
    e("v_lshrrev_b32 v2, 6, v0")
    e("s_nop 0")
    e(f"v_readfirstlane_b32 s{S_WAVE}, v2")
    e(f"s_mov_b32 s{S_C}, {hex(struct.unpack('<I', struct.pack('<f', math.log2(math.e)/16.0))[0])}")
    e("s_waitcnt lgkmcnt(0)")
    if PROF:
        e("s_memtime s[60:61]")
        e("s_waitcnt lgkmcnt(0)")
        e("v_writelane_b32 v49, s60, 51")
    e("s_mul_i32 s7, s6, 129024")
    e(f"s_add_u32 s{S_X}, s44, s7")
    e(f"s_addc_u32 s{S_X+1}, s45, 0")
    e(f"s_mov_b32 s{S_X+2}, 129024")
    e(f"s_mov_b32 s{S_X+3}, 0x20000")
    e("s_lshl_b32 s7, s6, 4")
    e("s_add_u32 s7, s7, s5")
    e("s_lshl_b32 s7, s7, 18")
    e(f"s_add_u32 s{S_K}, s46, s7")
    e(f"s_addc_u32 s{S_K+1}, s47, 0")
    e(f"s_mov_b32 s{S_K+2}, 262144")
    e(f"s_mov_b32 s{S_K+3}, 0x20000")
    e(f"s_add_u32 s{S_V}, s48, s7")
    e(f"s_addc_u32 s{S_V+1}, s49, 0")
    e(f"s_mov_b32 s{S_V+2}, 262144")
    e(f"s_mov_b32 s{S_V+3}, 0x20000")
    e("s_lshl_b32 s7, s5, 9")
    e(f"s_add_u32 s{S_W}, s50, s7")
    e(f"s_addc_u32 s{S_W+1}, s51, 0")
    e(f"s_mov_b32 s{S_W+2}, {447*8192+512}")
    e(f"s_mov_b32 s{S_W+3}, 0x20000")
    e(f"s_mov_b32 s{S_O}, s52")
    e(f"s_mov_b32 s{S_O+1}, s53")
    e(f"s_mov_b32 s{S_O+2}, {144*128*1024}")
    e(f"s_mov_b32 s{S_O+3}, 0x20000")
    e(f"s_lshl_b32 s7, s{S_WAVE}, 1")
    e("s_add_u32 s7, s7, 1")
    e(f"s_cmp_eq_u32 s{S_WAVE}, 0")
    e("s_cselect_b32 s7, 0, s7")
    for qt in range(3):
        e(f"s_add_u32 s42, s7, {qt}")
        e(f"s_mul_i32 s{S_XQ+qt}, s42, 14336")
        e("s_mul_i32 s43, s6, 9")
        e("s_add_u32 s43, s43, s42")
        e("s_lshl_b32 s43, s43, 7")
        e("s_lshl_b32 s42, s5, 3")
        e("s_add_u32 s43, s43, s42")
        e(f"s_lshl_b32 s{S_OQ+qt}, s43, 10")
    e(f"v_and_b32 v2, 15, v{V_LANE}")
    e("v_mul_u32_u24 v2, 896, v2")
    e(f"v_lshrrev_b32 v3, 4, v{V_LANE}")
    e(f"v_lshl_add_u32 v{V_XO}, v3, 4, v2")
    e(f"v_lshlrev_b32 v{V_ST}, 4, v{V_LANE}")
    e(f"s_cmp_eq_u32 s{S_WAVE}, 0")
    e("s_cbranch_scc1 L_k1_w0")
    e(f"s_cmp_eq_u32 s{S_WAVE}, 1")
    e("s_cbranch_scc1 L_k1_w1")
    e(f"s_cmp_eq_u32 s{S_WAVE}, 2")
    e("s_cbranch_scc1 L_k1_w2")
    e("s_branch L_k1_tramp")
    em.raw("L_k1_exit:")
    e("s_endpgm")
    for w in (0, 1, 2, 3):
        em.raw(f"L_k1_w{w}:")
        sub = Em()
        k1_variant(sub, w)
        em.lines += sub.lines
        if w == 1:
            em.raw("L_k1_tramp:")
            e("s_branch L_k1_w3")


def k2(em):
    e = em.e
    NS = K2NS
    S_WO, S_OS, S_OUT = 8, 12, 16
    S_W, S_WG, S_WL, S_T, S_ST = 20, 21, 22, 23, 24
    V_L, V_DMA, V_B, V_O, V_A = 1, 2, 3, 4, 6
    V_ACC = 12
    V_FR = 32
    V_BF = 64
    em.raw(".globl oproj_kernel\n.p2align 8\n.type oproj_kernel,@function\noproj_kernel:")
    e("s_cmp_ge_u32 s2, 256")
    e("s_cbranch_scc1 L_k2_exit")
    if PROF:
        e("s_memtime s[62:63]")
    e("s_and_b32 s3, s2, 7")
    e("s_lshr_b32 s4, s2, 3")
    e("s_lshl_b32 s3, s3, 5")
    e("s_add_u32 s3, s3, s4")
    e("s_cmp_ge_u32 s3, 252")
    e("s_cbranch_scc1 L_k2_exit")
    e("s_load_dwordx4 s[44:47], s[0:1], 32")
    e("s_load_dwordx2 s[48:49], s[0:1], 56")
    e("s_mul_i32 s4, s3, 9363")
    e("s_lshr_b32 s4, s4, 16")
    e("s_mul_i32 s5, s4, 7")
    e("s_sub_u32 s5, s3, s5")
    e(f"v_and_b32 v{V_L}, 63, v0")
    e("v_lshrrev_b32 v2, 6, v0")
    e("s_nop 0")
    e(f"v_readfirstlane_b32 s{S_W}, v2")
    e("s_waitcnt lgkmcnt(0)")
    e("s_lshl_b32 s6, s5, 7")
    e(f"s_add_u32 s{S_WO}, s44, s6")
    e(f"s_addc_u32 s{S_WO+1}, s45, 0")
    e(f"s_sub_u32 s{S_WO+2}, {4096*896}, s6")
    e(f"s_mov_b32 s{S_WO+3}, 0x20000")
    e("s_lshl_b32 s7, s4, 2")
    e(f"s_add_u32 s7, s7, s{S_W}")
    e("s_lshl_b32 s25, s7, 17")
    e(f"s_add_u32 s{S_OS}, s48, s25")
    e(f"s_addc_u32 s{S_OS+1}, s49, 0")
    e(f"s_mov_b32 s{S_OS+2}, 131072")
    e(f"s_mov_b32 s{S_OS+3}, 0x20000")
    e(f"s_mov_b32 s{S_OUT}, s46")
    e(f"s_mov_b32 s{S_OUT+1}, s47")
    e(f"s_mov_b32 s{S_OUT+2}, {2304*896}")
    e(f"s_mov_b32 s{S_OUT+3}, 0x20000")
    e(f"s_mul_i32 s{S_ST}, s7, {16*896}")
    e(f"s_add_u32 s{S_ST}, s{S_ST}, s6")
    e(f"s_mul_i32 s{S_WG}, s{S_W}, {32*896}")
    e(f"s_lshl_b32 s{S_WL}, s{S_W}, 12")
    e(f"v_lshrrev_b32 v10, 3, v{V_L}")
    e("v_mul_u32_u24 v10, 896, v10")
    e(f"v_bfe_u32 v11, v{V_L}, 1, 2")
    e(f"v_lshrrev_b32 v12, 4, v{V_L}")
    e("v_xor_b32 v11, v11, v12")
    e("v_lshl_add_u32 v10, v11, 5, v10")
    e(f"v_and_b32 v11, 1, v{V_L}")
    e(f"v_lshl_add_u32 v{V_DMA}, v11, 4, v10")
    e(f"v_lshlrev_b32 v{V_B}, 4, v{V_L}")
    e(f"v_and_b32 v10, 15, v{V_L}")
    e("v_mul_u32_u24 v10, 896, v10")
    e(f"v_lshl_add_u32 v{V_O}, v12, 3, v10")
    e(f"v_bfe_u32 v10, v{V_L}, 2, 2")
    e("v_lshl_add_u32 v10, v12, 2, v10")
    e("v_bfe_u32 v11, v10, 1, 2")
    e("v_lshlrev_b32 v10, 7, v10")
    e("v_lshl_add_u32 v10, v11, 5, v10")
    e(f"v_and_b32 v11, 3, v{V_L}")
    e("v_lshl_add_u32 v10, v11, 3, v10")
    for u in range(4):
        e(f"v_xor_b32 v{V_A+u}, {u<<5}, v10")
    st = {"base": 0}

    def issue_ops(cc):
        slot = cc % NS
        tag = f"C{cc}"
        ops = []
        for jj in range(4):
            ops.append([f"s_add_u32 m0, s{S_WL}, {slot*16384 + jj*1024}",
                        f"s_add_u32 s{S_T}, s{S_WG}, {(cc*128 + jj*8)*896}",
                        (f"buffer_load_dwordx4 v{V_DMA}, s[{S_WO}:{S_WO+3}], s{S_T} offen lds", tag)])
            ops.append([f"s_mov_b32 s{S_T}, {cc*4096}",
                        (f"buffer_load_dwordx4 {vr(V_BF + slot*16 + jj*4, 4)}, v{V_B}, s[{S_OS}:{S_OS+3}], s{S_T} offen offset:{jj*1024}{K2NT}", tag)])
        return ops

    def emit_op(op):
        for x in op:
            if isinstance(x, tuple):
                em.vmem(x[0], x[1])
            else:
                e(x)

    def issue(cc):
        for op in issue_ops(cc):
            emit_op(op)

    pend = []
    for cc in range(NS):
        issue(cc)
    D = 4
    total = 32 * 16

    def reads(G):
        cc, f = divmod(G, 16)
        ss, u = f >> 2, f & 3
        slot = cc % NS
        if f == 0:
            grp = slot >> 2
            if grp != st["base"]:
                d = (grp - st["base"]) * 65536
                for b in range(4):
                    e(f"v_add_u32 v{V_A+b}, {d & 0xffffffff}, v{V_A+b}")
                st["base"] = grp
        off = (slot & 3) * 16384 + ss * 4096
        fr = V_FR + (G % 8) * 4
        em.ds(f"T {vr(fr,2)}, v{V_A+u}, {off}", f"F{G}")
        em.ds(f"T {vr(fr+2,2)}, v{V_A+u}, {off+2048}", f"F{G}")

    def mfma(G):
        cc, f = divmod(G, 16)
        ss, u = f >> 2, f & 3
        slot = cc % NS
        fr = V_FR + (G % 8) * 4
        em.wait_lg(f"F{G}")
        d = vr(V_ACC + u * 4, 4)
        c = "0" if (cc == 0 and ss == 0) else d
        e(f"M {d}, {vr(fr,4)}, {vr(V_BF + slot*16 + ss*4, 4)}, {c}")

    for G in range(total + D):
        if G < total:
            cc, f = divmod(G, 16)
            if f == 0:
                em.wait_vm(f"C{cc}")
                e("s_barrier")
                if PROF:
                    e("s_memtime s[60:61]")
                    e("s_waitcnt lgkmcnt(0)")
                    em.lg = []
                    e(f"v_writelane_b32 v5, s60, {cc}")
                if cc >= 2 and cc - 2 + NS < 32:
                    pend.extend(issue_ops(cc - 2 + NS))
            reads(G)
        if G - D >= 0:
            mfma(G - D)
        if pend and (G & 1):
            emit_op(pend.pop(0))
    em.nop(9)
    for u in range(4):
        a = V_ACC + u * 4
        e(f"CV v{28+ (u%2)*2}, v{a}, v{a+1}")
        e(f"CV v{29+ (u%2)*2}, v{a+2}, v{a+3}")
        e(f"buffer_store_dwordx2 v[{28+(u%2)*2}:{29+(u%2)*2}], v{V_O}, s[{S_OUT}:{S_OUT+3}], s{S_ST} offen offset:{u*32}")
    if PROF:
        e("s_waitcnt vmcnt(0)")
        e("s_memtime s[60:61]")
        e("s_waitcnt lgkmcnt(0)")
        e("v_writelane_b32 v5, s60, 47")
        e("v_writelane_b32 v5, s62, 48")
        e("s_lshl_b32 s60, s2, 2")
        e(f"s_add_u32 s60, s60, s{S_W}")
        e("s_lshl_b32 s60, s60, 8")
        e(f"s_add_u32 s60, s60, {33<<20}")
        e(f"v_lshlrev_b32 v10, 2, v{V_L}")
        e(f"s_mov_b32 s{S_OS}, s48")
        e(f"s_mov_b32 s{S_OS+1}, s49")
        e(f"s_mov_b32 s{S_OS+2}, {64<<20}")
        e(f"buffer_store_dword v5, v10, s[{S_OS}:{S_OS+3}], s60 offen")
    em.raw("L_k2_exit:")
    e("s_endpgm")


def kd(name, vgpr, acc):
    return f""".p2align 6
.amdhsa_kernel {name}
  .amdhsa_next_free_vgpr {vgpr}
  .amdhsa_next_free_sgpr 102
  .amdhsa_accum_offset {acc}
  .amdhsa_group_segment_fixed_size 0
  .amdhsa_kernarg_size 64
  .amdhsa_user_sgpr_count 2
  .amdhsa_user_sgpr_kernarg_segment_ptr 1
  .amdhsa_system_sgpr_workgroup_id_x 1
.end_amdhsa_kernel
"""


def main():
    em = Em()
    k1(em)
    em2 = Em()
    k2(em2)
    txt = HEADER + "\n".join(em.lines) + "\n" + "\n".join(em2.lines) + "\n"
    txt += '.section .rodata,"a"\n' + kd("attn_kernel", 512, 256) + kd("oproj_kernel", 256, 256)
    open(OUT, "w").write(txt)
    print("wrote", OUT, len(txt), "bytes")


main()
```

```python
import math, sys, os, struct

OUT = sys.argv[1] if len(sys.argv) > 1 else "standalone__mha_block_cached__near_ridge.s"
PROF = os.environ.get("PROF", "0") == "1"
NSLOT = 9
NW0 = int(os.environ.get("NW0", "4"))
NK0 = NSLOT - NW0
PX = int(os.environ.get("PX", "4"))
DREAD = int(os.environ.get("DREAD", "5"))
KVNT = os.environ.get("KVNT", " nt")
K2NS = int(os.environ.get("K2NS", "7"))
K2NT = " nt" if os.environ.get("K2NT", "0") == "1" else ""

HEADER = f"""; Kernarg layout for this problem (64 bytes, ptrs only, base s[0:1]):
; @launch kernel=attn_kernel grid=(256,1,1) block=(256,1,1) lds=163840
; @launch kernel=oproj_kernel grid=(256,1,1) block=(256,1,1) lds={K2NS*16384}
.amdgcn_target "amdgcn-amd-amdhsa--gfx950"
.macro M d, a, b, c
v_mfma_f32_16x16x32_bf16 \\d, \\a, \\b, \\c
.endm
.macro T d, a, o
ds_read_b64_tr_b16 \\d, \\a offset:\\o
.endm
.macro R d, a, o
ds_read_b128 \\d, \\a offset:\\o
.endm
.macro WL n
s_waitcnt lgkmcnt(\\n)
.endm
.macro CV d, a, b
v_cvt_pk_bf16_f32 \\d, \\a, \\b
.endm
.text
"""


class Em:
    def __init__(self):
        self.lines = []
        self.vm = []
        self.lg = []
        self.n = 0

    def e(self, s):
        self.lines.append(s)
        self.n += 1

    def raw(self, s):
        self.lines.append(s)

    def vmem(self, s, tag):
        self.e(s)
        self.vm.append(tag)

    def ds(self, s, tag):
        self.e(s)
        self.lg.append(tag)

    def wait_vm(self, tag):
        idx = max([i for i, t in enumerate(self.vm) if t == tag], default=-1)
        if idx < 0:
            return
        n = min(len(self.vm) - 1 - idx, 63)
        self.e(f"s_waitcnt vmcnt({n})")
        self.vm = self.vm[len(self.vm) - n:] if n > 0 else []

    def wait_lg(self, tag):
        idx = max([i for i, t in enumerate(self.lg) if t == tag], default=-1)
        if idx < 0:
            return
        n = min(len(self.lg) - 1 - idx, 15)
        self.e(f"WL {n}")
        self.lg = self.lg[len(self.lg) - n:] if n > 0 else []

    def nop(self, states):
        while states > 0:
            k = min(states, 16)
            self.e(f"s_nop {k-1}")
            self.n += k - 1
            states -= k


def vr(b, n=1):
    return f"v{b}" if n == 1 else f"v[{b}:{b+n-1}]"


def ar(b, n=1):
    return f"a{b}" if n == 1 else f"a[{b}:{b+n-1}]"


S_X, S_K, S_V, S_W, S_O = 8, 12, 16, 20, 24
S_WAVE = 28
S_C = 29
S_XQ = 32
S_OQ = 36
S_T = 40
S_T2 = 41
V_LANE = 1
V_ADDR = 2
V_D = 10
V_XO = 14
V_ST = 15
V_SACC = 16
V_M = 40
V_L = 43
V_MC = 46
V_T = 50
V_BIG = 64
A_FR = 192


V_Q8 = 192
V_S8 = 208
V_P8 = 212
V_ONE = 220
V_SC = 224
V_M8, V_MC8 = 225, 226
V_T2 = 228
A_O8 = 128
A_L8 = 144
SCR = 9 * 16384


def k1_variant(em, w):
    e = em.e
    NT = 2
    chunks = [("W", i) for i in range(14)] + [("K", i) for i in range(16)] + [("V", i) for i in range(16)]
    nsteps = len(chunks)
    slot_of = {}
    init = [("W", i) for i in range(NW0)] + [("K", i) for i in range(NK0)]
    for s, c in enumerate(init):
        slot_of[c] = s
    later = [c for c in chunks if c not in slot_of]

    wcls = {0: (0, 2), 1: (1, 3)}.get(w)
    WROW = [0, 2, 8, 10]
    t0, t1, t2, t3 = V_T, V_T + 1, V_T + 2, V_T + 3

    def kv_voff(dst, cls):
        e(f"v_lshrrev_b32 v{t0}, 5, v{V_LANE}")
        e(f"v_add_u32 v{t0}, {2*cls}, v{t0}")
        e(f"v_and_b32 v{t1}, 31, v{V_LANE}")
        e(f"v_lshlrev_b32 v{t2}, 1, v{t0}")
        e(f"v_xor_b32 v{t2}, v{t1}, v{t2}")
        e(f"v_lshlrev_b32 v{t2}, 4, v{t2}")
        e(f"v_lshl_add_u32 v{dst}, v{t0}, 9, v{t2}")

    def w_voff(dst, cls):
        e(f"v_lshrrev_b32 v{t0}, 5, v{V_LANE}")
        e(f"v_add_u32 v{t0}, {WROW[cls]}, v{t0}")
        e(f"v_and_b32 v{t1}, 31, v{V_LANE}")
        e(f"v_and_b32 v{t2}, 3, v{t0}")
        e(f"v_bfe_u32 v{t3}, v{t0}, 3, 1")
        e(f"v_lshl_add_u32 v{t2}, v{t3}, 2, v{t2}")
        e(f"v_lshlrev_b32 v{t2}, 1, v{t2}")
        e(f"v_xor_b32 v{t2}, v{t1}, v{t2}")
        e(f"v_lshlrev_b32 v{t2}, 4, v{t2}")
        e(f"v_lshl_add_u32 v{dst}, v{t0}, 13, v{t2}")

    kvreg = {w: V_D + 2}
    kv_voff(V_D + 2, w)
    if w in (0, 1):
        w_voff(V_D, wcls[0])
        w_voff(V_D + 1, wcls[1])
    else:
        kv_voff(V_D + 3, w - 2)
        kvreg[w - 2] = V_D + 3
    e(f"v_lshlrev_b32 v{V_SC}, 4, v{V_LANE}")
    e(f"v_add_u32 v{V_SC}, {SCR}, v{V_SC}")
    for j in range(4):
        e(f"v_mov_b32 v{V_ONE+j}, 0x3f803f80")

    def dma_list(chunk, mode):
        kind, ci = chunk
        slot = slot_of[chunk]
        out = []
        if kind == "W":
            if wcls is None:
                return out
            for k, cw in enumerate(wcls):
                for jr in (0, 4, 16, 20):
                    out.append((slot * 16384 + (WROW[cw] + jr) * 512, (ci * 32 + jr) * 8192, V_D + k, S_W, ""))
        else:
            srd = S_K if kind == "K" else S_V
            if mode == "init":
                pieces = [(c, jj) for c in (w, w - 2) for jj in range(4)] if w >= 2 else []
            else:
                pieces = [(w, jj) for jj in range(4)]
            for c, jj in pieces:
                out.append((slot * 16384 + c * 1024 + jj * 4096, ci * 16384 + jj * 4096, kvreg[c], srd, KVNT))
        return out

    dq = []

    def emit_dma(item):
        lds, goff, vo, srd, nt, tag = item
        e(f"s_mov_b32 m0, {lds}")
        e(f"s_mov_b32 s{S_T}, {goff}")
        em.vmem(f"buffer_load_dwordx4 v{vo}, s[{srd}:{srd+3}], s{S_T} offen{nt} lds", tag)

    def issue(chunk, mode, defer=False):
        tag = f"{chunk[0]}{chunk[1]}"
        for it in dma_list(chunk, mode):
            if defer:
                dq.append(it + (tag,))
            else:
                emit_dma(it + (tag,))

    def xload(c):
        if c < 14:
            for qt in range(3):
                em.vmem(f"buffer_load_dwordx4 {ar((qt*14+c)*4,4)}, v{V_XO}, s[{S_X}:{S_X+3}], s{S_XQ+qt} offen offset:{c*64}", f"x{c}")

    for c in range(max(NW0, PX)):
        if c < NW0:
            issue(("W", c), "init")
        if c < PX:
            xload(c)
    issue(("K", 0), "init")

    if PROF:
        e("s_memtime s[60:61]")
        e("s_waitcnt lgkmcnt(0)")
        e("v_writelane_b32 v49, s60, 52")
    st = {"base": 0}

    def set_addr(kind):
        e(f"v_lshrrev_b32 v{t0}, 4, v{V_LANE}")
        e(f"v_bfe_u32 v{t1}, v{V_LANE}, 2, 2")
        e(f"v_and_b32 v{t2}, 3, v{V_LANE}")
        if kind == "W":
            e(f"v_lshl_add_u32 v{t3}, v{t0}, 3, v{t1}")
            e(f"v_lshlrev_b32 v{t3}, 9, v{t3}")
            e(f"v_and_b32 v{t0}, 1, v{t0}")
            e(f"v_lshl_add_u32 v{t0}, v{t0}, 2, v{t1}")
            e(f"v_lshl_add_u32 v{t3}, v{t0}, 5, v{t3}")
            e(f"v_lshl_add_u32 v{t3}, v{t2}, 3, v{t3}")
            nb, sh = 8, 5
        elif kind == "V":
            e(f"v_lshl_add_u32 v{t0}, v{t0}, 2, v{t1}")
            e(f"v_lshlrev_b32 v{t3}, 9, v{t0}")
            e(f"v_and_b32 v{t0}, 7, v{t0}")
            e(f"v_lshl_add_u32 v{t3}, v{t0}, 5, v{t3}")
            e(f"v_lshl_add_u32 v{t3}, v{t2}, 3, v{t3}")
            nb, sh = 8, 5
        else:
            e(f"v_and_b32 v{t1}, 15, v{V_LANE}")
            e(f"v_lshlrev_b32 v{t3}, 9, v{t1}")
            e(f"v_and_b32 v{t1}, 7, v{t1}")
            e(f"v_lshlrev_b32 v{t1}, 1, v{t1}")
            e(f"v_xor_b32 v{t1}, v{t0}, v{t1}")
            e(f"v_lshl_add_u32 v{t3}, v{t1}, 4, v{t3}")
            nb, sh = 4, 6
        for b in range(nb):
            e(f"v_xor_b32 v{V_ADDR+b}, {b << sh}, v{t3}")
        st["base"] = 0
        st["nb"] = nb

    def set_base(grp):
        if grp != st["base"]:
            d = (grp - st["base"]) * 65536
            for b in range(st["nb"]):
                e(f"v_add_u32 v{V_ADDR+b}, {d & 0xffffffff}, v{V_ADDR+b}")
            st["base"] = grp

    def frag_reg(G):
        return A_FR + (G % 16) * 4

    def reads(G):
        i, f = divmod(G, 16)
        kind, ci = chunks[i]
        slot = slot_of[chunks[i]]
        sb = (slot & 3) * 16384
        fr = frag_reg(G)
        tag = f"F{G}"
        if kind == "K":
            kt, ks = f >> 3, f & 7
            a, b = ks >> 2, ks & 3
            em.ds(f"R {ar(fr,4)}, v{V_ADDR+b}, {sb + kt*8192 + a*256}", tag)
        else:
            a, b = f >> 3, f & 7
            second = 2048 if kind == "W" else 8192
            em.ds(f"T {ar(fr,2)}, v{V_ADDR+b}, {sb + a*256}", tag)
            em.ds(f"T {ar(fr+2,2)}, v{V_ADDR+b}, {sb + a*256 + second}", tag)

    def big(qt, idx):
        return V_BIG + (qt * 16 + idx) * 4

    def sacc(kt, qt):
        return V_SACC + (kt * 2 + qt) * 4

    def QF(qt, s):
        return (qt * 14 + s) * 4

    def owner(ci, kt):
        return (2 * ci + kt) & 3

    def s8reg(ci):
        return V_Q8 + (ci >> 1) * 2

    q = []

    def push(instrs, after=None):
        for k, s in enumerate(instrs):
            q.append((after if k == 0 else None, s))

    def drain(cnt):
        k = 0
        while q and k < cnt:
            rdy, s = q[0]
            if rdy is not None and em.n < rdy:
                return
            q.pop(0)
            if isinstance(s, tuple):
                if s[0] == "nop":
                    em.nop(s[1])
                elif s[0] == "st":
                    em.vmem(s[1], "st")
                elif s[0] == "ds":
                    em.ds(s[1], s[2])
            else:
                e(s)
            k += 1

    def drain_all():
        while q:
            rdy, s = q[0]
            if rdy is not None and em.n < rdy:
                em.nop(rdy - em.n)
            drain(1)

    first_max = {0: True, 1: True, 8: True}

    def s_items(ci, kt):
        out = []
        tl = [(qt, sacc(kt, qt), V_M + qt, big(qt, ci) + 2 * kt) for qt in range(NT)]
        if owner(ci, kt) == w:
            tl.append((8, V_S8, V_M8, s8reg(ci)))
        for qt, a, m, dst in tl:
            if first_max[qt]:
                out.append(f"v_max_f32 v{m}, v{a}, v{a+1}")
                first_max[qt] = False
            else:
                out.append(f"v_max3_f32 v{m}, v{a}, v{a+1}, v{m}")
            out.append(f"CV v{dst}, v{a}, v{a+1}")
            out.append(f"v_max3_f32 v{m}, v{a+2}, v{a+3}, v{m}")
            out.append(f"CV v{dst+1}, v{a+2}, v{a+3}")
        return out

    def qconv_items(s):
        out = []
        tl = [(V_T + qt * 4, big(qt, 2 * s), big(qt, 2 * s + 1), qt) for qt in range(NT)]
        if (s >> 1) == w:
            tl.append((V_T + 8, V_Q8 + (2 * (s & 1)) * 4, V_Q8 + (2 * (s & 1) + 1) * 4, 8))
        for t, p0, p1, qt in tl:
            out += [f"CV v{t}, v{p0}, v{p0+1}", f"CV v{t+1}, v{p0+2}, v{p0+3}",
                    f"CV v{t+2}, v{p1}, v{p1+1}", f"CV v{t+3}, v{p1+2}, v{p1+3}"]
        out.append(("nop", 2))
        for t, *_ in tl:
            out += [f"v_permlane32_swap_b32 v{t}, v{t+2}", f"v_permlane32_swap_b32 v{t+1}, v{t+3}"]
        out.append(("nop", 2))
        for t, *_ in tl:
            out += [f"v_permlane16_swap_b32 v{t}, v{t+2}", f"v_permlane16_swap_b32 v{t+1}, v{t+3}"]
        out.append(("nop", 1))
        for t, p0, p1, qt in tl:
            if qt == 8:
                out.append(("ds", f"ds_write_b128 v{V_SC}, v[{t}:{t+3}] offset:{s*1024}", "q8w"))
            else:
                for j in range(4):
                    out.append(f"v_accvgpr_write_b32 a{QF(qt, s)+j}, v{t+j}")
        return out

    def xreduce(op, regs):
        out = []
        for sw in ("32", "16"):
            for k, r in enumerate(regs):
                out.append(f"v_mov_b32 v{V_T+k}, v{r}")
            out.append(("nop", 2))
            for k, r in enumerate(regs):
                out.append(f"v_permlane{sw}_swap_b32 v{V_T+k}, v{r}")
            out.append(("nop", 1))
            for k, r in enumerate(regs):
                out.append(f"v_{op}_f32 v{r}, v{r}, v{V_T+k}")
        return out

    def p_group(regs):
        n = len(regs)
        T = [(V_T2 + 2 * k, V_T2 + 2 * k + 1) for k in range(n)]
        o = []
        for (R, mc, l), (ta, tb) in zip(regs, T):
            o += [f"v_lshlrev_b32 v{ta}, 16, v{R}", f"v_and_b32 v{tb}, 0xffff0000, v{R}"]
        for (R, mc, l), (ta, tb) in zip(regs, T):
            o += [f"v_fma_f32 v{ta}, v{ta}, s{S_C}, -v{mc}", f"v_fma_f32 v{tb}, v{tb}, s{S_C}, -v{mc}"]
        for (R, mc, l), (ta, tb) in zip(regs, T):
            o += [f"v_exp_f32 v{ta}, v{ta}", f"v_exp_f32 v{tb}, v{tb}"]
        for which in (0, 1):
            for (R, mc, l), tt in zip(regs, T):
                if l is not None:
                    o.append(f"v_add_f32 v{l}, v{l}, v{tt[which]}")
        for (R, mc, l), (ta, tb) in zip(regs, T):
            o.append(f"CV v{R}, v{ta}, v{tb}")
        return o

    def p_items(ci):
        regs = [(big(qt, ci) + j, V_MC + qt, V_L + qt) for j in range(4) for qt in range(NT)]
        return p_group(regs)

    epi_k = [0]

    def epi_block(areg, lreg, soff, s):
        out = []
        tb = V_SACC + (epi_k[0] % 2) * 12
        epi_k[0] += 1
        for j in range(8):
            out.append(f"v_accvgpr_read_b32 v{tb+j}, a{areg+j}")
        for j in range(8):
            out.append(f"v_mul_f32 v{tb+j}, v{tb+j}, v{lreg}")
        for j in range(4):
            out.append(f"CV v{tb+8+j}, v{tb+2*j}, v{tb+2*j+1}")
        out.append(f"s_add_u32 s{S_T2}, s{soff}, {(s>>2)*4096}")
        out.append(("st", f"buffer_store_dwordx4 v[{tb+8}:{tb+11}], v{V_ST}, s[{S_O}:{S_O+3}], s{S_T2} offen offset:{(s&3)*1024}"))
        return out

    def epi_items(s):
        out = []
        for qt in range(NT):
            out += epi_block((qt * 16 + 2 * s) * 4, V_L + qt, S_OQ + qt, s)
        return out

    def transition_q8():
        drain_all()
        em.wait_lg("q8w")
        e("s_barrier")
        for s in range(8):
            em.ds(f"R {ar(QF(2, s),4)}, v{V_SC}, {s*1024}", "q8r")
        em.nop(2)

    def transition_sm():
        drain_all()
        push(xreduce("max", [V_M, V_M + 1, V_M8]))
        drain_all()
        e(f"v_and_b32 v{t0}, 15, v{V_LANE}")
        e(f"v_lshlrev_b32 v{t0}, 2, v{t0}")
        e(f"v_add_u32 v{t0}, {SCR}, v{t0}")
        em.ds(f"ds_write_b32 v{t0}, v{V_M8} offset:{w*64}", "m8w")
        for qt in range(NT):
            e(f"v_mul_f32 v{V_MC+qt}, s{S_C}, v{V_M+qt}")
            e(f"v_mov_b32 v{V_L+qt}, 0")
        em.wait_lg("m8w")
        e("s_barrier")
        em.ds(f"ds_read2_b32 v[{t2}:{t3}], v{t0} offset0:0 offset1:16", "m8r")
        em.ds(f"ds_read2_b32 v[{t3+1}:{t3+2}], v{t0} offset0:32 offset1:48", "m8r")
        for s in p_items(0):
            e(s)
        em.wait_lg("m8r")
        e("s_barrier")
        e(f"v_max3_f32 v{V_M8}, v{t2}, v{t3}, v{t3+1}")
        e(f"v_max_f32 v{V_M8}, v{V_M8}, v{t3+2}")
        e(f"v_mul_f32 v{V_MC8}, s{S_C}, v{V_M8}")
        own = [ci for ci in range(16) if owner(ci, 0) == w or owner(ci, 1) == w]
        for h in range(0, 8, 4):
            regs = [(s8reg(ci) + j, V_MC8, None) for ci in own[h:h + 4] for j in range(2)]
            for s in p_group(regs):
                e(s)
        for ci in own:
            kt = 0 if owner(ci, 0) == w else 1
            em.ds(f"ds_write_b64 v{V_SC}, v[{s8reg(ci)}:{s8reg(ci)+1}] offset:{ci*1024 + kt*8}", "p8w")
        em.wait_lg("p8w")
        e("s_barrier")
        em.ds(f"R {vr(V_P8,4)}, v{V_SC}, 0", "P8_0")
        em.nop(2)

    def mfmas(G):
        i, f = divmod(G, 16)
        kind, ci = chunks[i]
        fr = frag_reg(G)
        if kind == "K" and ci == 0 and f == 0:
            transition_q8()
        if kind == "V" and ci == 0 and f == 0:
            transition_sm()
        if kind == "W" and f == 0:
            em.wait_vm(f"x{ci}")
        if kind == "V" and f == 0 and ci > 0:
            drain_all()
            em.nop(2)
        em.wait_lg(f"F{G}")
        per = {"W": 3, "K": 2, "V": 3}[kind]
        for qt in range(NT):
            if kind == "W":
                d = vr(big(qt, f), 4)
                c = "0" if ci == 0 else d
                e(f"M {d}, {ar(fr,4)}, {ar((qt*14+ci)*4,4)}, {c}")
            elif kind == "K":
                kt, ks = f >> 3, f & 7
                if ks == 0:
                    assert not any(isinstance(x[1], str) and f"v{sacc(kt,qt)}," in x[1] for x in q), "pending S items"
                d = vr(sacc(kt, qt), 4)
                c = "0" if ks == 0 else d
                e(f"M {d}, {ar(fr,4)}, {ar(QF(qt,ks),4)}, {c}")
            else:
                d = ar((qt * 16 + f) * 4, 4)
                c = "0" if ci == 0 else d
                e(f"M {d}, {ar(fr,4)}, {vr(big(qt,ci),4)}, {c}")
            drain(per)
        if kind == "W" and (f >> 2) == w:
            d = vr(V_Q8 + (f & 3) * 4, 4)
            c = "0" if ci == 0 else d
            e(f"M {d}, {ar(fr,4)}, {ar((2*14+ci)*4,4)}, {c}")
            drain(per)
        elif kind == "K" and owner(ci, f >> 3) == w:
            ks = f & 7
            if ks == 0:
                assert not any(isinstance(x[1], str) and f"v{V_S8}," in x[1] for x in q), "pending S8 items"
                if ci < 2:
                    em.wait_lg("q8r")
            d = vr(V_S8, 4)
            c = "0" if ks == 0 else d
            e(f"M {d}, {ar(fr,4)}, {ar(QF(2,ks),4)}, {c}")
            drain(per)
        elif kind == "V":
            p8 = V_P8 + (ci & 1) * 4
            if f == 0 and ci + 1 < 16:
                em.ds(f"R {vr(V_P8 + ((ci+1)&1)*4, 4)}, v{V_SC}, {(ci+1)*1024}", f"P8_{ci+1}")
            if (f >> 2) == w:
                em.wait_lg(f"P8_{ci}")
                d = ar(A_O8 + (f & 3) * 4, 4)
                c = "0" if ci == 0 else d
                e(f"M {d}, {ar(fr,4)}, {vr(p8,4)}, {c}")
                drain(per)
                if (f & 3) == 3:
                    d = ar(A_L8, 4)
                    c = "0" if ci == 0 else d
                    e(f"M {d}, {vr(V_ONE,4)}, {vr(p8,4)}, {c}")
                    drain(per)
                    if ci == 15:
                        st["l8n"] = em.n
        if kind == "W" and ci == 13 and (f & 1):
            push(qconv_items(f >> 1), after=em.n + 9)
        if kind == "K" and (f & 7) == 7:
            push(s_items(ci, f >> 3), after=em.n + 9)
        if kind == "V":
            if f == 0 and ci + 1 < 16:
                push(p_items(ci + 1))
            if ci == 15:
                if f == 0:
                    push(xreduce("add", [V_L, V_L + 1]))
                    push([f"v_rcp_f32 v{V_L+qt}, v{V_L+qt}" for qt in range(NT)])
                    push([("nop", 1)])
                if f & 1:
                    push(epi_items(f >> 1), after=em.n + 9)

    total = nsteps * 16
    li = 0
    for G in range(total + DREAD):
        if G < total:
            i, f = divmod(G, 16)
            if f == 0:
                kind, ci = chunks[i]
                em.wait_vm(f"{kind}{ci}")
                e("s_barrier")
                if PROF:
                    e("s_memtime s[60:61]")
                    e("s_waitcnt lgkmcnt(0)")
                    em.lg = []
                    e(f"v_writelane_b32 v49, s60, {i}")
                xload(i + PX)
                while dq:
                    emit_dma(dq.pop(0))
                if i + 1 < NK0:
                    issue(("K", i + 1), "init", True)
                if i >= 2 and li < len(later):
                    c = later[li]
                    li += 1
                    slot_of[c] = slot_of[chunks[i - 2]]
                    issue(c, "late", True)
                if i == 0 or chunks[i - 1][0] != kind:
                    drain_all()
                    set_addr(kind)
                set_base(slot_of[chunks[i]] >> 2)
            reads(G)
        m = G - DREAD
        if m >= 0:
            mfmas(m)
        if dq:
            emit_dma(dq.pop(0))
    drain_all()
    gap = em.n - st["l8n"]
    if gap < 9:
        em.nop(9 - gap)
    e(f"v_accvgpr_read_b32 v{V_M8}, a{A_L8}")
    e(f"v_rcp_f32 v{V_M8}, v{V_M8}")
    em.nop(1)
    for k in range(2):
        push(epi_block(A_O8 + k * 8, V_M8, S_OQ + 2, 2 * w + k))
    drain_all()
    if PROF:
        e("s_memtime s[60:61]")
        e("s_waitcnt lgkmcnt(0)")
        e("v_writelane_b32 v49, s60, 46")
        e("s_waitcnt vmcnt(0)")
        e("s_memtime s[60:61]")
        e("s_waitcnt lgkmcnt(0)")
        e("v_writelane_b32 v49, s60, 47")
        e("v_writelane_b32 v49, s62, 48")
        e("s_memrealtime s[60:61]")
        e("s_waitcnt lgkmcnt(0)")
        e("v_writelane_b32 v49, s60, 49")
        e("v_writelane_b32 v49, s64, 50")
        e("s_lshl_b32 s60, s2, 2")
        e(f"s_add_u32 s60, s60, s{S_WAVE}")
        e("s_lshl_b32 s60, s60, 8")
        e(f"s_add_u32 s60, s60, {32<<20}")
        e(f"v_lshlrev_b32 v50, 2, v{V_LANE}")
        e(f"s_mov_b32 s{S_O+2}, {64<<20}")
        e(f"buffer_store_dword v49, v50, s[{S_O}:{S_O+3}], s60 offen")
    e("s_endpgm")


def k1(em):
    e = em.e
    em.raw(".globl attn_kernel\n.p2align 8\n.type attn_kernel,@function\nattn_kernel:")
    e("s_cmp_ge_u32 s2, 256")
    e("s_cbranch_scc1 L_k1_exit")
    if PROF:
        e("s_memtime s[62:63]")
        e("s_memrealtime s[64:65]")
    e("s_load_dwordx8 s[44:51], s[0:1], 0")
    e("s_load_dwordx2 s[52:53], s[0:1], 56")
    e("s_and_b32 s3, s2, 7")
    e("s_lshr_b32 s4, s2, 3")
    e("s_and_b32 s5, s3, 3")
    e("s_lshl_b32 s5, s5, 2")
    e("s_and_b32 s6, s4, 3")
    e("s_add_u32 s5, s5, s6")
    e("s_lshr_b32 s6, s3, 2")
    e("s_lshl_b32 s6, s6, 3")
    e("s_lshr_b32 s7, s4, 2")
    e("s_add_u32 s6, s6, s7")
    e(f"v_and_b32 v{V_LANE}, 63, v0")
    e("v_lshrrev_b32 v2, 6, v0")
    e("s_nop 0")
    e(f"v_readfirstlane_b32 s{S_WAVE}, v2")
    e(f"s_mov_b32 s{S_C}, {hex(struct.unpack('<I', struct.pack('<f', math.log2(math.e)/16.0))[0])}")
    e("s_waitcnt lgkmcnt(0)")
    if PROF:
        e("s_memtime s[60:61]")
        e("s_waitcnt lgkmcnt(0)")
        e("v_writelane_b32 v49, s60, 51")
    e("s_mul_i32 s7, s6, 129024")
    e(f"s_add_u32 s{S_X}, s44, s7")
    e(f"s_addc_u32 s{S_X+1}, s45, 0")
    e(f"s_mov_b32 s{S_X+2}, 129024")
    e(f"s_mov_b32 s{S_X+3}, 0x20000")
    e("s_lshl_b32 s7, s6, 4")
    e("s_add_u32 s7, s7, s5")
    e("s_lshl_b32 s7, s7, 18")
    e(f"s_add_u32 s{S_K}, s46, s7")
    e(f"s_addc_u32 s{S_K+1}, s47, 0")
    e(f"s_mov_b32 s{S_K+2}, 262144")
    e(f"s_mov_b32 s{S_K+3}, 0x20000")
    e(f"s_add_u32 s{S_V}, s48, s7")
    e(f"s_addc_u32 s{S_V+1}, s49, 0")
    e(f"s_mov_b32 s{S_V+2}, 262144")
    e(f"s_mov_b32 s{S_V+3}, 0x20000")
    e("s_lshl_b32 s7, s5, 9")
    e(f"s_add_u32 s{S_W}, s50, s7")
    e(f"s_addc_u32 s{S_W+1}, s51, 0")
    e(f"s_mov_b32 s{S_W+2}, {447*8192+512}")
    e(f"s_mov_b32 s{S_W+3}, 0x20000")
    e(f"s_mov_b32 s{S_O}, s52")
    e(f"s_mov_b32 s{S_O+1}, s53")
    e(f"s_mov_b32 s{S_O+2}, {144*128*1024}")
    e(f"s_mov_b32 s{S_O+3}, 0x20000")
    e(f"s_lshl_b32 s7, s{S_WAVE}, 1")
    for qt in range(3):
        if qt < 2:
            e(f"s_add_u32 s42, s7, {qt}")
        else:
            e("s_mov_b32 s42, 8")
        e(f"s_mul_i32 s{S_XQ+qt}, s42, 14336")
        e("s_mul_i32 s43, s6, 9")
        e("s_add_u32 s43, s43, s42")
        e("s_lshl_b32 s43, s43, 7")
        e("s_lshl_b32 s42, s5, 3")
        e("s_add_u32 s43, s43, s42")
        e(f"s_lshl_b32 s{S_OQ+qt}, s43, 10")
    e(f"v_and_b32 v2, 15, v{V_LANE}")
    e("v_mul_u32_u24 v2, 896, v2")
    e(f"v_lshrrev_b32 v3, 4, v{V_LANE}")
    e(f"v_lshl_add_u32 v{V_XO}, v3, 4, v2")
    e(f"v_lshlrev_b32 v{V_ST}, 4, v{V_LANE}")
    e(f"s_cmp_eq_u32 s{S_WAVE}, 0")
    e("s_cbranch_scc1 L_k1_w0")
    e(f"s_cmp_eq_u32 s{S_WAVE}, 1")
    e("s_cbranch_scc1 L_k1_w1")
    e(f"s_cmp_eq_u32 s{S_WAVE}, 2")
    e("s_cbranch_scc1 L_k1_w2")
    e("s_branch L_k1_tramp")
    em.raw("L_k1_exit:")
    e("s_endpgm")
    for w in (0, 1, 2, 3):
        em.raw(f"L_k1_w{w}:")
        sub = Em()
        k1_variant(sub, w)
        em.lines += sub.lines
        if w == 1:
            em.raw("L_k1_tramp:")
            e("s_branch L_k1_w3")


def k2(em):
    e = em.e
    NS = K2NS
    S_WO, S_OS, S_OUT = 8, 12, 16
    S_W, S_WG, S_WL, S_T, S_ST = 20, 21, 22, 23, 24
    V_L, V_DMA, V_B, V_O, V_A = 1, 2, 3, 4, 6
    V_ACC = 12
    V_FR = 32
    V_BF = 64
    em.raw(".globl oproj_kernel\n.p2align 8\n.type oproj_kernel,@function\noproj_kernel:")
    e("s_cmp_ge_u32 s2, 256")
    e("s_cbranch_scc1 L_k2_exit")
    if PROF:
        e("s_memtime s[62:63]")
    e("s_and_b32 s3, s2, 7")
    e("s_lshr_b32 s4, s2, 3")
    e("s_lshl_b32 s3, s3, 5")
    e("s_add_u32 s3, s3, s4")
    e("s_cmp_ge_u32 s3, 252")
    e("s_cbranch_scc1 L_k2_exit")
    e("s_load_dwordx4 s[44:47], s[0:1], 32")
    e("s_load_dwordx2 s[48:49], s[0:1], 56")
    e("s_mul_i32 s4, s3, 9363")
    e("s_lshr_b32 s4, s4, 16")
    e("s_mul_i32 s5, s4, 7")
    e("s_sub_u32 s5, s3, s5")
    e(f"v_and_b32 v{V_L}, 63, v0")
    e("v_lshrrev_b32 v2, 6, v0")
    e("s_nop 0")
    e(f"v_readfirstlane_b32 s{S_W}, v2")
    e("s_waitcnt lgkmcnt(0)")
    e("s_lshl_b32 s6, s5, 7")
    e(f"s_add_u32 s{S_WO}, s44, s6")
    e(f"s_addc_u32 s{S_WO+1}, s45, 0")
    e(f"s_sub_u32 s{S_WO+2}, {4096*896}, s6")
    e(f"s_mov_b32 s{S_WO+3}, 0x20000")
    e("s_lshl_b32 s7, s4, 2")
    e(f"s_add_u32 s7, s7, s{S_W}")
    e("s_lshl_b32 s25, s7, 17")
    e(f"s_add_u32 s{S_OS}, s48, s25")
    e(f"s_addc_u32 s{S_OS+1}, s49, 0")
    e(f"s_mov_b32 s{S_OS+2}, 131072")
    e(f"s_mov_b32 s{S_OS+3}, 0x20000")
    e(f"s_mov_b32 s{S_OUT}, s46")
    e(f"s_mov_b32 s{S_OUT+1}, s47")
    e(f"s_mov_b32 s{S_OUT+2}, {2304*896}")
    e(f"s_mov_b32 s{S_OUT+3}, 0x20000")
    e(f"s_mul_i32 s{S_ST}, s7, {16*896}")
    e(f"s_add_u32 s{S_ST}, s{S_ST}, s6")
    e(f"s_mul_i32 s{S_WG}, s{S_W}, {32*896}")
    e(f"s_lshl_b32 s{S_WL}, s{S_W}, 12")
    e(f"v_lshrrev_b32 v10, 3, v{V_L}")
    e("v_mul_u32_u24 v10, 896, v10")
    e(f"v_bfe_u32 v11, v{V_L}, 1, 2")
    e(f"v_lshrrev_b32 v12, 4, v{V_L}")
    e("v_xor_b32 v11, v11, v12")
    e("v_lshl_add_u32 v10, v11, 5, v10")
    e(f"v_and_b32 v11, 1, v{V_L}")
    e(f"v_lshl_add_u32 v{V_DMA}, v11, 4, v10")
    e(f"v_lshlrev_b32 v{V_B}, 4, v{V_L}")
    e(f"v_and_b32 v10, 15, v{V_L}")
    e("v_mul_u32_u24 v10, 896, v10")
    e(f"v_lshl_add_u32 v{V_O}, v12, 3, v10")
    e(f"v_bfe_u32 v10, v{V_L}, 2, 2")
    e("v_lshl_add_u32 v10, v12, 2, v10")
    e("v_bfe_u32 v11, v10, 1, 2")
    e("v_lshlrev_b32 v10, 7, v10")
    e("v_lshl_add_u32 v10, v11, 5, v10")
    e(f"v_and_b32 v11, 3, v{V_L}")
    e("v_lshl_add_u32 v10, v11, 3, v10")
    for u in range(4):
        e(f"v_xor_b32 v{V_A+u}, {u<<5}, v10")
    st = {"base": 0}

    def issue_ops(cc):
        slot = cc % NS
        tag = f"C{cc}"
        ops = []
        for jj in range(4):
            ops.append([f"s_add_u32 m0, s{S_WL}, {slot*16384 + jj*1024}",
                        f"s_add_u32 s{S_T}, s{S_WG}, {(cc*128 + jj*8)*896}",
                        (f"buffer_load_dwordx4 v{V_DMA}, s[{S_WO}:{S_WO+3}], s{S_T} offen lds", tag)])
            ops.append([f"s_mov_b32 s{S_T}, {cc*4096}",
                        (f"buffer_load_dwordx4 {vr(V_BF + slot*16 + jj*4, 4)}, v{V_B}, s[{S_OS}:{S_OS+3}], s{S_T} offen offset:{jj*1024}{K2NT}", tag)])
        return ops

    def emit_op(op):
        for x in op:
            if isinstance(x, tuple):
                em.vmem(x[0], x[1])
            else:
                e(x)

    def issue(cc):
        for op in issue_ops(cc):
            emit_op(op)

    pend = []
    for cc in range(NS):
        issue(cc)
    D = 4
    total = 32 * 16

    def reads(G):
        cc, f = divmod(G, 16)
        ss, u = f >> 2, f & 3
        slot = cc % NS
        if f == 0:
            grp = slot >> 2
            if grp != st["base"]:
                d = (grp - st["base"]) * 65536
                for b in range(4):
                    e(f"v_add_u32 v{V_A+b}, {d & 0xffffffff}, v{V_A+b}")
                st["base"] = grp
        off = (slot & 3) * 16384 + ss * 4096
        fr = V_FR + (G % 8) * 4
        em.ds(f"T {vr(fr,2)}, v{V_A+u}, {off}", f"F{G}")
        em.ds(f"T {vr(fr+2,2)}, v{V_A+u}, {off+2048}", f"F{G}")

    def mfma(G):
        cc, f = divmod(G, 16)
        ss, u = f >> 2, f & 3
        slot = cc % NS
        fr = V_FR + (G % 8) * 4
        em.wait_lg(f"F{G}")
        d = vr(V_ACC + u * 4, 4)
        c = "0" if (cc == 0 and ss == 0) else d
        e(f"M {d}, {vr(fr,4)}, {vr(V_BF + slot*16 + ss*4, 4)}, {c}")

    for G in range(total + D):
        if G < total:
            cc, f = divmod(G, 16)
            if f == 0:
                em.wait_vm(f"C{cc}")
                e("s_barrier")
                if PROF:
                    e("s_memtime s[60:61]")
                    e("s_waitcnt lgkmcnt(0)")
                    em.lg = []
                    e(f"v_writelane_b32 v5, s60, {cc}")
                if cc >= 2 and cc - 2 + NS < 32:
                    pend.extend(issue_ops(cc - 2 + NS))
            reads(G)
        if G - D >= 0:
            mfma(G - D)
        if pend and (G & 1):
            emit_op(pend.pop(0))
    em.nop(9)
    for u in range(4):
        a = V_ACC + u * 4
        e(f"CV v{28+ (u%2)*2}, v{a}, v{a+1}")
        e(f"CV v{29+ (u%2)*2}, v{a+2}, v{a+3}")
        e(f"buffer_store_dwordx2 v[{28+(u%2)*2}:{29+(u%2)*2}], v{V_O}, s[{S_OUT}:{S_OUT+3}], s{S_ST} offen offset:{u*32}")
    if PROF:
        e("s_waitcnt vmcnt(0)")
        e("s_memtime s[60:61]")
        e("s_waitcnt lgkmcnt(0)")
        e("v_writelane_b32 v5, s60, 47")
        e("v_writelane_b32 v5, s62, 48")
        e("s_lshl_b32 s60, s2, 2")
        e(f"s_add_u32 s60, s60, s{S_W}")
        e("s_lshl_b32 s60, s60, 8")
        e(f"s_add_u32 s60, s60, {33<<20}")
        e(f"v_lshlrev_b32 v10, 2, v{V_L}")
        e(f"s_mov_b32 s{S_OS}, s48")
        e(f"s_mov_b32 s{S_OS+1}, s49")
        e(f"s_mov_b32 s{S_OS+2}, {64<<20}")
        e(f"buffer_store_dword v5, v10, s[{S_OS}:{S_OS+3}], s60 offen")
    em.raw("L_k2_exit:")
    e("s_endpgm")


def kd(name, vgpr, acc):
    return f""".p2align 6
.amdhsa_kernel {name}
  .amdhsa_next_free_vgpr {vgpr}
  .amdhsa_next_free_sgpr 102
  .amdhsa_accum_offset {acc}
  .amdhsa_group_segment_fixed_size 0
  .amdhsa_kernarg_size 64
  .amdhsa_user_sgpr_count 2
  .amdhsa_user_sgpr_kernarg_segment_ptr 1
  .amdhsa_system_sgpr_workgroup_id_x 1
.end_amdhsa_kernel
"""


def main():
    em = Em()
    k1(em)
    em2 = Em()
    k2(em2)
    txt = HEADER + "\n".join(em.lines) + "\n" + "\n".join(em2.lines) + "\n"
    txt += '.section .rodata,"a"\n' + kd("attn_kernel", 512, 256) + kd("oproj_kernel", 256, 256)
    open(OUT, "w").write(txt)
    print("wrote", OUT, len(txt), "bytes")


main()
```

```python
import math, sys, os, struct

OUT = sys.argv[1] if len(sys.argv) > 1 else "standalone__mha_block_cached__near_ridge.s"
PROF = os.environ.get("PROF", "0") == "1"
NSLOT = 9
NW0 = int(os.environ.get("NW0", "4"))
NK0 = NSLOT - NW0
PX = int(os.environ.get("PX", "4"))
DREAD = int(os.environ.get("DREAD", "5"))
KVNT = os.environ.get("KVNT", " nt")
K2NS = int(os.environ.get("K2NS", "7"))
K2NT = " nt" if os.environ.get("K2NT", "0") == "1" else ""

HEADER = f"""; Kernarg layout for this problem (64 bytes, ptrs only, base s[0:1]):
; @launch kernel=attn_kernel grid=(256,1,1) block=(256,1,1) lds=163840
; @launch kernel=oproj_kernel grid=(256,1,1) block=(256,1,1) lds={K2NS*16384}
.amdgcn_target "amdgcn-amd-amdhsa--gfx950"
.macro M d, a, b, c
v_mfma_f32_16x16x32_bf16 \\d, \\a, \\b, \\c
.endm
.macro T d, a, o
ds_read_b64_tr_b16 \\d, \\a offset:\\o
.endm
.macro R d, a, o
ds_read_b128 \\d, \\a offset:\\o
.endm
.macro WL n
s_waitcnt lgkmcnt(\\n)
.endm
.macro CV d, a, b
v_cvt_pk_bf16_f32 \\d, \\a, \\b
.endm
.text
"""


class Em:
    def __init__(self):
        self.lines = []
        self.vm = []
        self.lg = []
        self.n = 0

    def e(self, s):
        self.lines.append(s)
        self.n += 1

    def raw(self, s):
        self.lines.append(s)

    def vmem(self, s, tag):
        self.e(s)
        self.vm.append(tag)

    def ds(self, s, tag):
        self.e(s)
        self.lg.append(tag)

    def wait_vm(self, tag):
        idx = max([i for i, t in enumerate(self.vm) if t == tag], default=-1)
        if idx < 0:
            return
        n = min(len(self.vm) - 1 - idx, 63)
        self.e(f"s_waitcnt vmcnt({n})")
        self.vm = self.vm[len(self.vm) - n:] if n > 0 else []

    def wait_lg(self, tag):
        idx = max([i for i, t in enumerate(self.lg) if t == tag], default=-1)
        if idx < 0:
            return
        n = min(len(self.lg) - 1 - idx, 15)
        self.e(f"WL {n}")
        self.lg = self.lg[len(self.lg) - n:] if n > 0 else []

    def nop(self, states):
        while states > 0:
            k = min(states, 16)
            self.e(f"s_nop {k-1}")
            self.n += k - 1
            states -= k


def vr(b, n=1):
    return f"v{b}" if n == 1 else f"v[{b}:{b+n-1}]"


def ar(b, n=1):
    return f"a{b}" if n == 1 else f"a[{b}:{b+n-1}]"


S_X, S_K, S_V, S_W, S_O = 8, 12, 16, 20, 24
S_WAVE = 28
S_C = 29
S_XQ = 32
S_OQ = 36
S_T = 40
S_T2 = 41
V_LANE = 1
V_ADDR = 2
V_D = 10
V_XO = 14
V_ST = 15
V_SACC = 16
V_M = 40
V_L = 43
V_MC = 46
V_T = 50
V_BIG = 64
A_FR = 192


V_Q8 = 192
V_S8 = 208
V_P8 = 212
V_ONE = 220
V_SC = 224
V_M8, V_MC8 = 225, 226
V_SCW = 227
V_T2 = 228
V_QX = 244
V_AD = 248
V_A16 = 16
V_SACC2 = 32
V_EP = 228
A_O8 = 128
A_L8 = 144
SCR = 9 * 16384
S_WL, S_KL = 54, 55
S_XW = 56
S_OWN = 66


def k1(em):
    e = em.e
    global V_M, V_L, V_MC
    V_M, V_L, V_MC = 2, 4, 6
    V_WD, V_KD = 8, 9
    em.raw(".globl attn_kernel\n.p2align 8\n.type attn_kernel,@function\nattn_kernel:")
    e("s_cmp_ge_u32 s2, 256")
    e("s_cbranch_scc1 L_k1_exit")
    if PROF:
        e("s_memtime s[62:63]")
        e("s_memrealtime s[64:65]")
    e("s_load_dwordx8 s[44:51], s[0:1], 0")
    e("s_load_dwordx2 s[52:53], s[0:1], 56")
    e("s_and_b32 s3, s2, 7")
    e("s_lshr_b32 s4, s2, 3")
    e("s_and_b32 s5, s4, 15")
    e("s_lshl_b32 s6, s3, 1")
    e("s_lshr_b32 s7, s4, 4")
    e("s_add_u32 s6, s6, s7")
    e(f"v_and_b32 v{V_LANE}, 63, v0")
    e("v_lshrrev_b32 v2, 6, v0")
    e("s_nop 0")
    e(f"v_readfirstlane_b32 s{S_WAVE}, v2")
    e(f"s_mov_b32 s{S_C}, {hex(struct.unpack('<I', struct.pack('<f', math.log2(math.e)/16.0))[0])}")
    e("s_waitcnt lgkmcnt(0)")
    e("s_mul_i32 s7, s6, 129024")
    e(f"s_add_u32 s{S_X}, s44, s7")
    e(f"s_addc_u32 s{S_X+1}, s45, 0")
    e(f"s_mov_b32 s{S_X+2}, 129024")
    e(f"s_mov_b32 s{S_X+3}, 0x20000")
    e("s_lshl_b32 s7, s6, 4")
    e("s_add_u32 s7, s7, s5")
    e("s_lshl_b32 s7, s7, 18")
    e(f"s_add_u32 s{S_K}, s46, s7")
    e(f"s_addc_u32 s{S_K+1}, s47, 0")
    e(f"s_mov_b32 s{S_K+2}, 262144")
    e(f"s_mov_b32 s{S_K+3}, 0x20000")
    e(f"s_add_u32 s{S_V}, s48, s7")
    e(f"s_addc_u32 s{S_V+1}, s49, 0")
    e(f"s_mov_b32 s{S_V+2}, 262144")
    e(f"s_mov_b32 s{S_V+3}, 0x20000")
    e("s_lshl_b32 s7, s5, 9")
    e(f"s_add_u32 s{S_W}, s50, s7")
    e(f"s_addc_u32 s{S_W+1}, s51, 0")
    e(f"s_mov_b32 s{S_W+2}, {447*8192+512}")
    e(f"s_mov_b32 s{S_W+3}, 0x20000")
    e(f"s_mov_b32 s{S_O}, s52")
    e(f"s_mov_b32 s{S_O+1}, s53")
    e(f"s_mov_b32 s{S_O+2}, {144*128*1024}")
    e(f"s_mov_b32 s{S_O+3}, 0x20000")
    e(f"s_lshl_b32 s7, s{S_WAVE}, 1")
    for qt in range(3):
        if qt < 2:
            e(f"s_add_u32 s42, s7, {qt}")
        else:
            e("s_mov_b32 s42, 8")
        e(f"s_mul_i32 s{S_XQ+qt}, s42, 14336")
        e("s_mul_i32 s43, s6, 9")
        e("s_add_u32 s43, s43, s42")
        e("s_lshl_b32 s43, s43, 7")
        e("s_lshl_b32 s42, s5, 3")
        e("s_add_u32 s43, s43, s42")
        e(f"s_lshl_b32 s{S_OQ+qt}, s43, 10")
    for a in range(4):
        e(f"s_xor_b32 s42, s{S_WAVE}, {a}")
        e(f"s_lshl_b32 s{S_XW+a}, s42, 11")
    for k in range(4):
        e(f"s_cmp_eq_u32 s{S_WAVE}, {k}")
        e(f"s_cselect_b64 s[{S_OWN+2*k}:{S_OWN+2*k+1}], -1, 0")
    t0, t1, t2, t3 = V_T, V_T + 1, V_T + 2, V_T + 3
    e(f"v_and_b32 v{t0}, 15, v{V_LANE}")
    e(f"v_mul_u32_u24 v{t0}, 896, v{t0}")
    e(f"v_lshrrev_b32 v{t1}, 4, v{V_LANE}")
    e(f"v_lshl_add_u32 v{V_XO}, v{t1}, 4, v{t0}")
    e(f"v_lshlrev_b32 v{V_ST}, 4, v{V_LANE}")
    e(f"s_lshl_b32 s42, s{S_WAVE}, 1")
    e(f"s_lshl_b32 s{S_KL}, s{S_WAVE}, 10")
    e(f"v_lshrrev_b32 v{t0}, 5, v{V_LANE}")
    e(f"v_add_u32 v{t0}, s42, v{t0}")
    e(f"v_and_b32 v{t1}, 31, v{V_LANE}")
    e(f"v_lshlrev_b32 v{t2}, 1, v{t0}")
    e(f"v_xor_b32 v{t2}, v{t1}, v{t2}")
    e(f"v_lshlrev_b32 v{t2}, 4, v{t2}")
    e(f"v_lshl_add_u32 v{V_KD}, v{t0}, 9, v{t2}")
    e(f"s_and_b32 s42, s{S_WAVE}, 1")
    e("s_lshl_b32 s42, s42, 1")
    e(f"s_lshr_b32 s43, s{S_WAVE}, 1")
    e("s_lshl_b32 s43, s43, 3")
    e("s_add_u32 s42, s42, s43")
    e(f"s_lshl_b32 s{S_WL}, s42, 9")
    e(f"v_lshrrev_b32 v{t0}, 5, v{V_LANE}")
    e(f"v_add_u32 v{t0}, s42, v{t0}")
    e(f"v_and_b32 v{t2}, 3, v{t0}")
    e(f"v_bfe_u32 v{t3}, v{t0}, 3, 1")
    e(f"v_lshl_add_u32 v{t2}, v{t3}, 2, v{t2}")
    e(f"v_lshlrev_b32 v{t2}, 1, v{t2}")
    e(f"v_xor_b32 v{t2}, v{t1}, v{t2}")
    e(f"v_lshlrev_b32 v{t2}, 4, v{t2}")
    e(f"v_lshl_add_u32 v{V_WD}, v{t0}, 13, v{t2}")
    e(f"v_lshlrev_b32 v{V_SC}, 4, v{V_LANE}")
    e(f"v_add_u32 v{V_SC}, {SCR}, v{V_SC}")
    for a in range(4):
        e(f"v_add_u32 v{V_QX+a}, s{S_XW+a}, v{V_SC}")
    for j in range(4):
        e(f"v_mov_b32 v{V_ONE+j}, 0x3f803f80")

    NT = 2
    chunks = [("W", i) for i in range(14)] + [("K", i) for i in range(16)] + [("V", i) for i in range(16)]
    nsteps = len(chunks)
    slot_of = {}
    init = [("W", i) for i in range(NW0)] + [("K", i) for i in range(NK0)]
    for s_, c in enumerate(init):
        slot_of[c] = s_
    later = [c for c in chunks if c not in slot_of]
    dq = []

    def emit_dma(item):
        sl, lds, goff, vo, srd, nt, tag = item
        e(f"s_add_u32 m0, s{sl}, {lds}")
        e(f"s_mov_b32 s{S_T}, {goff}")
        em.vmem(f"buffer_load_dwordx4 v{vo}, s[{srd}:{srd+3}], s{S_T} offen{nt} lds", tag)

    def issue(chunk, defer=False):
        kind, ci = chunk
        slot = slot_of[chunk]
        tag = f"{kind}{ci}"
        its = []
        if kind == "W":
            for jr in (0, 4, 16, 20):
                its.append((S_WL, slot * 16384 + jr * 512, (ci * 32 + jr) * 8192, V_WD, S_W, "", tag))
        else:
            srd = S_K if kind == "K" else S_V
            for jj in range(4):
                its.append((S_KL, slot * 16384 + jj * 4096, ci * 16384 + jj * 4096, V_KD, srd, KVNT, tag))
        for it in its:
            if defer:
                dq.append(it)
            else:
                emit_dma(it)

    def xload(c):
        if c < 14:
            for qt in range(3):
                em.vmem(f"buffer_load_dwordx4 {ar((qt*14+c)*4,4)}, v{V_XO}, s[{S_X}:{S_X+3}], s{S_XQ+qt} offen offset:{c*64}", f"x{c}")

    for c in range(max(NW0, PX)):
        if c < NW0:
            issue(("W", c))
        if c < PX:
            xload(c)
    issue(("K", 0))
    st = {"base": 0}

    def set_addr(kind):
        e(f"v_lshrrev_b32 v{t0}, 4, v{V_LANE}")
        e(f"v_bfe_u32 v{t1}, v{V_LANE}, 2, 2")
        e(f"v_and_b32 v{t2}, 3, v{V_LANE}")
        if kind == "W":
            e(f"v_lshl_add_u32 v{t3}, v{t0}, 3, v{t1}")
            e(f"v_lshlrev_b32 v{t3}, 9, v{t3}")
            e(f"v_and_b32 v{t0}, 1, v{t0}")
            e(f"v_lshl_add_u32 v{t0}, v{t0}, 2, v{t1}")
            e(f"v_lshl_add_u32 v{t3}, v{t0}, 5, v{t3}")
            e(f"v_lshl_add_u32 v{t3}, v{t2}, 3, v{t3}")
            nb, sh = 16, 5
        elif kind == "V":
            e(f"v_lshl_add_u32 v{t0}, v{t0}, 2, v{t1}")
            e(f"v_lshlrev_b32 v{t3}, 9, v{t0}")
            e(f"v_and_b32 v{t0}, 7, v{t0}")
            e(f"v_lshl_add_u32 v{t3}, v{t0}, 5, v{t3}")
            e(f"v_lshl_add_u32 v{t3}, v{t2}, 3, v{t3}")
            nb, sh = 16, 5
        else:
            e(f"v_and_b32 v{t1}, 15, v{V_LANE}")
            e(f"v_lshlrev_b32 v{t3}, 9, v{t1}")
            e(f"v_and_b32 v{t1}, 7, v{t1}")
            e(f"v_lshlrev_b32 v{t1}, 1, v{t1}")
            e(f"v_xor_b32 v{t1}, v{t0}, v{t1}")
            e(f"v_lshl_add_u32 v{t3}, v{t1}, 4, v{t3}")
            nb, sh = 8, 6
        e(f"s_lshl_b32 s42, s{S_WAVE}, 7")
        e(f"v_xor_b32 v{t3}, s42, v{t3}")
        for b in range(nb):
            e(f"v_xor_b32 v{V_A16+b}, {b << sh}, v{t3}")
        st["base"] = 0
        st["nb"] = nb

    def set_base(grp):
        if grp != st["base"]:
            d = (grp - st["base"]) * 65536
            for b in range(st["nb"]):
                e(f"v_add_u32 v{V_A16+b}, {d & 0xffffffff}, v{V_A16+b}")
            st["base"] = grp

    def frag_reg(G):
        return A_FR + (G % 16) * 4

    def reads(G):
        i, f = divmod(G, 16)
        kind, ci = chunks[i]
        slot = slot_of[chunks[i]]
        sb = (slot & 3) * 16384
        fr = frag_reg(G)
        tag = f"F{G}"
        if kind == "K":
            kt, ks = f >> 3, f & 7
            em.ds(f"R {ar(fr,4)}, v{V_A16+ks}, {sb + kt*8192}", tag)
        else:
            second = 2048 if kind == "W" else 8192
            em.ds(f"T {ar(fr,2)}, v{V_A16+f}, {sb}", tag)
            em.ds(f"T {ar(fr+2,2)}, v{V_A16+f}, {sb + second}", tag)

    def big(qt, idx):
        return V_BIG + (qt * 16 + idx) * 4

    def sacc(kt, qt):
        return V_SACC2 + (kt * 2 + qt) * 4

    def QF(qt, s):
        return (qt * 14 + s) * 4

    def s8reg(ci):
        return V_Q8 + (ci >> 1) * 2

    q = []
    lab = [0]

    def push(instrs, after=None):
        for k, s in enumerate(instrs):
            q.append((after if k == 0 else None, s))

    def drain(cnt):
        k = 0
        while q and k < cnt:
            rdy, s = q[0]
            if rdy is not None and em.n < rdy:
                return
            q.pop(0)
            if isinstance(s, tuple):
                if s[0] == "nop":
                    em.nop(s[1])
                elif s[0] == "st":
                    em.vmem(s[1], "st")
                elif s[0] == "ds":
                    em.ds(s[1], s[2])
                elif s[0] == "blk":
                    for x in s[1]:
                        if x.endswith(":"):
                            em.raw(x)
                        else:
                            e(x)
            else:
                e(s)
            k += 1

    def drain_all():
        while q:
            rdy, s = q[0]
            if rdy is not None and em.n < rdy:
                em.nop(rdy - em.n)
            drain(1)

    def s_items(ci, kt):
        out = []
        for qt in range(NT):
            a, m, dst = sacc(kt, qt), V_M + qt, big(qt, ci) + 2 * kt
            if ci == 0 and kt == 0:
                out.append(f"v_max_f32 v{m}, v{a}, v{a+1}")
            else:
                out.append(f"v_max3_f32 v{m}, v{a}, v{a+1}, v{m}")
            out.append(f"CV v{dst}, v{a}, v{a+1}")
            out.append(f"v_max3_f32 v{m}, v{a+2}, v{a+3}, v{m}")
            out.append(f"CV v{dst+1}, v{a+2}, v{a+3}")
        k = 2 * (ci & 1) + kt
        lab[0] += 1
        L = f"Ls8_{lab[0]}"
        a, m, dst = V_S8, V_M8, s8reg(ci)
        blk = [f"s_mov_b64 vcc, s[{S_OWN+2*k}:{S_OWN+2*k+1}]", f"s_cbranch_vccz {L}",
               f"v_max3_f32 v{m}, v{a}, v{a+1}, v{m}", f"CV v{dst}, v{a}, v{a+1}",
               f"v_max3_f32 v{m}, v{a+2}, v{a+3}, v{m}", f"CV v{dst+1}, v{a+2}, v{a+3}", f"{L}:"]
        out.append(("blk", blk))
        return out

    def qconv_items(s):
        out = []
        tl = [(V_T + qt * 4, big(qt, 2 * s), big(qt, 2 * s + 1), qt) for qt in range(NT)]
        if s < 2:
            tl.append((V_T + 8, V_Q8 + (2 * s) * 4, V_Q8 + (2 * s + 1) * 4, 8))
        for t, p0, p1, qt in tl:
            out += [f"CV v{t}, v{p0}, v{p0+1}", f"CV v{t+1}, v{p0+2}, v{p0+3}",
                    f"CV v{t+2}, v{p1}, v{p1+1}", f"CV v{t+3}, v{p1+2}, v{p1+3}"]
        out.append(("nop", 2))
        for t, *_ in tl:
            out += [f"v_permlane32_swap_b32 v{t}, v{t+2}", f"v_permlane32_swap_b32 v{t+1}, v{t+3}"]
        out.append(("nop", 2))
        for t, *_ in tl:
            out += [f"v_permlane16_swap_b32 v{t}, v{t+2}", f"v_permlane16_swap_b32 v{t+1}, v{t+3}"]
        out.append(("nop", 1))
        for t, p0, p1, qt in tl:
            if qt == 8:
                out.append(("ds", f"ds_write_b128 v{V_QX}, v[{t}:{t+3}] offset:{s*1024}", "q8w"))
            else:
                for j in range(4):
                    out.append(f"v_accvgpr_write_b32 a{QF(qt, s)+j}, v{t+j}")
        return out

    def xreduce(op, regs):
        out = []
        for sw in ("32", "16"):
            for k, r in enumerate(regs):
                out.append(f"v_mov_b32 v{V_T+k}, v{r}")
            out.append(("nop", 2))
            for k, r in enumerate(regs):
                out.append(f"v_permlane{sw}_swap_b32 v{V_T+k}, v{r}")
            out.append(("nop", 1))
            for k, r in enumerate(regs):
                out.append(f"v_{op}_f32 v{r}, v{r}, v{V_T+k}")
        return out

    def p_group(regs):
        n = len(regs)
        T = [(V_T2 + 2 * k, V_T2 + 2 * k + 1) for k in range(n)]
        o = []
        for (R, mc, l), (ta, tb) in zip(regs, T):
            o += [f"v_lshlrev_b32 v{ta}, 16, v{R}", f"v_and_b32 v{tb}, 0xffff0000, v{R}"]
        for (R, mc, l), (ta, tb) in zip(regs, T):
            o += [f"v_fma_f32 v{ta}, v{ta}, s{S_C}, -v{mc}", f"v_fma_f32 v{tb}, v{tb}, s{S_C}, -v{mc}"]
        for (R, mc, l), (ta, tb) in zip(regs, T):
            o += [f"v_exp_f32 v{ta}, v{ta}", f"v_exp_f32 v{tb}, v{tb}"]
        for which in (0, 1):
            for (R, mc, l), tt in zip(regs, T):
                if l is not None:
                    o.append(f"v_add_f32 v{l}, v{l}, v{tt[which]}")
        for (R, mc, l), (ta, tb) in zip(regs, T):
            o.append(f"CV v{R}, v{ta}, v{tb}")
        return o

    def p_items(ci):
        regs = [(big(qt, ci) + j, V_MC + qt, V_L + qt) for j in range(4) for qt in range(NT)]
        return p_group(regs)

    epi_k = [0]

    def epi_block(areg, lreg, soff, sp):
        out = []
        tb = V_EP + (epi_k[0] % 2) * 12
        epi_k[0] += 1
        for j in range(8):
            out.append(f"v_accvgpr_read_b32 v{tb+j}, a{areg+j}")
        for j in range(8):
            out.append(f"v_mul_f32 v{tb+j}, v{tb+j}, v{lreg}")
        for j in range(4):
            out.append(f"CV v{tb+8+j}, v{tb+2*j}, v{tb+2*j+1}")
        out.append(f"s_add_u32 s{S_T2}, s{soff}, s{S_XW + (sp>>1)}")
        out.append(("st", f"buffer_store_dwordx4 v[{tb+8}:{tb+11}], v{V_ST}, s[{S_O}:{S_O+3}], s{S_T2} offen offset:{(sp&1)*1024}"))
        return out

    def epi_items(s):
        out = []
        for qt in range(NT):
            out += epi_block((qt * 16 + 2 * s) * 4, V_L + qt, S_OQ + qt, s)
        return out

    def transition_q8():
        drain_all()
        e(f"v_mov_b32 v{V_M8}, 0xff800000")
        em.wait_lg("q8w")
        e("s_barrier")
        for s in range(8):
            em.ds(f"R {ar(QF(2, s),4)}, v{V_QX + (s>>1)}, {(s&1)*1024}", "q8r")
        em.nop(2)

    def transition_sm():
        drain_all()
        push(xreduce("max", [V_M, V_M + 1, V_M8]))
        drain_all()
        e(f"v_and_b32 v{t0}, 15, v{V_LANE}")
        e(f"v_lshlrev_b32 v{t0}, 2, v{t0}")
        e(f"v_add_u32 v{t0}, {SCR}, v{t0}")
        e(f"s_lshl_b32 s42, s{S_WAVE}, 6")
        e(f"v_add_u32 v{t1}, s42, v{t0}")
        em.ds(f"ds_write_b32 v{t1}, v{V_M8}", "m8w")
        for qt in range(NT):
            e(f"v_mul_f32 v{V_MC+qt}, s{S_C}, v{V_M+qt}")
            e(f"v_mov_b32 v{V_L+qt}, 0")
        e(f"s_lshr_b32 s42, s{S_WAVE}, 1")
        e("s_lshl_b32 s42, s42, 10")
        e(f"s_and_b32 s43, s{S_WAVE}, 1")
        e("s_lshl_b32 s43, s43, 3")
        e("s_add_u32 s42, s42, s43")
        e(f"v_add_u32 v{V_SCW}, s42, v{V_SC}")
        em.wait_lg("m8w")
        e("s_barrier")
        em.ds(f"ds_read2_b32 v[{t2}:{t3}], v{t0} offset0:0 offset1:16", "m8r")
        em.ds(f"ds_read2_b32 v[{t3+1}:{t3+2}], v{t0} offset0:32 offset1:48", "m8r")
        for s in p_items(0):
            e(s)
        em.wait_lg("m8r")
        e("s_barrier")
        e(f"v_max3_f32 v{V_M8}, v{t2}, v{t3}, v{t3+1}")
        e(f"v_max_f32 v{V_M8}, v{V_M8}, v{t3+2}")
        e(f"v_mul_f32 v{V_MC8}, s{S_C}, v{V_M8}")
        for h in range(0, 8, 4):
            regs = [(V_Q8 + 2 * j + k, V_MC8, None) for j in range(h, h + 4) for k in range(2)]
            for s in p_group(regs):
                e(s)
        for j in range(8):
            em.ds(f"ds_write_b64 v{V_SCW}, v[{V_Q8+2*j}:{V_Q8+2*j+1}] offset:{j*2048}", "p8w")
        em.wait_lg("p8w")
        e("s_barrier")
        em.ds(f"R {vr(V_P8,4)}, v{V_SC}, 0", "P8_0")
        em.nop(2)

    def mfmas(G):
        i, f = divmod(G, 16)
        kind, ci = chunks[i]
        fr = frag_reg(G)
        if kind == "K" and ci == 0 and f == 0:
            transition_q8()
            em.wait_lg("q8r")
        if kind == "V" and ci == 0 and f == 0:
            transition_sm()
        if kind == "W" and f == 0:
            em.wait_vm(f"x{ci}")
        if kind == "V" and f == 0 and ci > 0:
            drain_all()
            em.nop(2)
        em.wait_lg(f"F{G}")
        per = {"W": 3, "K": 2, "V": 3}[kind]
        for qt in range(NT):
            if kind == "W":
                d = vr(big(qt, f), 4)
                c = "0" if ci == 0 else d
                e(f"M {d}, {ar(fr,4)}, {ar((qt*14+ci)*4,4)}, {c}")
            elif kind == "K":
                kt, ks = f >> 3, f & 7
                if ks == 0:
                    assert not any(isinstance(x[1], str) and f"v{sacc(kt,qt)}," in x[1] for x in q), "pending S items"
                d = vr(sacc(kt, qt), 4)
                c = "0" if ks == 0 else d
                e(f"M {d}, {ar(fr,4)}, {ar(QF(qt,ks),4)}, {c}")
            else:
                d = ar((qt * 16 + f) * 4, 4)
                c = "0" if ci == 0 else d
                e(f"M {d}, {ar(fr,4)}, {vr(big(qt,ci),4)}, {c}")
            drain(per)
        if kind == "W" and f < 4:
            d = vr(V_Q8 + f * 4, 4)
            c = "0" if ci == 0 else d
            e(f"M {d}, {ar(fr,4)}, {ar((2*14+ci)*4,4)}, {c}")
            drain(per)
        elif kind == "K":
            kt, ks = f >> 3, f & 7
            if ks == 0:
                while any(isinstance(x[1], tuple) and x[1][0] == "blk" for x in q):
                    rdy, _ = q[0]
                    if rdy is not None and em.n < rdy:
                        em.nop(rdy - em.n)
                    drain(1)
            k = 2 * (ci & 1) + kt
            lab[0] += 1
            L = f"Lk8_{lab[0]}"
            d = vr(V_S8, 4)
            c = "0" if ks == 0 else d
            e(f"s_mov_b64 vcc, s[{S_OWN+2*k}:{S_OWN+2*k+1}]")
            e(f"s_cbranch_vccz {L}")
            e(f"M {d}, {ar(fr,4)}, {ar(QF(2,ks),4)}, {c}")
            em.raw(f"{L}:")
        elif kind == "V":
            p8 = V_P8 + (ci & 1) * 4
            if f == 0 and ci + 1 < 16:
                em.ds(f"R {vr(V_P8 + ((ci+1)&1)*4, 4)}, v{V_SC}, {(ci+1)*1024}", f"P8_{ci+1}")
            if f < 4:
                em.wait_lg(f"P8_{ci}")
                d = ar(A_O8 + f * 4, 4)
                c = "0" if ci == 0 else d
                e(f"M {d}, {ar(fr,4)}, {vr(p8,4)}, {c}")
                drain(per)
                if f == 3:
                    d = ar(A_L8, 4)
                    c = "0" if ci == 0 else d
                    e(f"M {d}, {vr(V_ONE,4)}, {vr(p8,4)}, {c}")
                    drain(per)
        if kind == "W" and ci == 13 and (f & 1):
            push(qconv_items(f >> 1), after=em.n + 9)
        if kind == "K" and (f & 7) == 7:
            push(s_items(ci, f >> 3), after=em.n + 13)
        if kind == "V":
            if f == 0 and ci + 1 < 16:
                push(p_items(ci + 1))
            if ci == 15:
                if f == 0:
                    push(xreduce("add", [V_L, V_L + 1]))
                    push([f"v_rcp_f32 v{V_L+qt}, v{V_L+qt}" for qt in range(NT)])
                    push([("nop", 1)])
                if f == 5:
                    push([f"v_accvgpr_read_b32 v{V_M8}, a{A_L8}", f"v_rcp_f32 v{V_M8}, v{V_M8}", ("nop", 1)], after=em.n + 9)
                    for k in range(2):
                        push(epi_block(A_O8 + k * 8, V_M8, S_OQ + 2, k))
                if f & 1:
                    push(epi_items(f >> 1), after=em.n + 9)

    total = nsteps * 16
    li = 0
    for G in range(total + DREAD):
        if G < total:
            i, f = divmod(G, 16)
            if f == 0:
                kind, ci = chunks[i]
                em.wait_vm(f"{kind}{ci}")
                e("s_barrier")
                if PROF:
                    e("s_memtime s[60:61]")
                    e("s_waitcnt lgkmcnt(0)")
                    em.lg = []
                    e(f"v_writelane_b32 v49, s60, {i}")
                while dq:
                    emit_dma(dq.pop(0))
                if i >= 2 and li < len(later):
                    c = later[li]
                    li += 1
                    slot_of[c] = slot_of[chunks[i - 2]]
                    issue(c, True)
                xload(i + PX)
                if i + 1 < NK0:
                    issue(("K", i + 1), True)
                if i == 0 or chunks[i - 1][0] != kind:
                    drain_all()
                    set_addr(kind)
                set_base(slot_of[chunks[i]] >> 2)
            reads(G)
        m = G - DREAD
        if m >= 0:
            mfmas(m)
        if dq:
            emit_dma(dq.pop(0))
    drain_all()
    if PROF:
        e("s_memtime s[60:61]")
        e("s_waitcnt lgkmcnt(0)")
        e("v_writelane_b32 v49, s60, 46")
        e("s_waitcnt vmcnt(0)")
        e("s_memtime s[60:61]")
        e("s_waitcnt lgkmcnt(0)")
        e("v_writelane_b32 v49, s60, 47")
        e("v_writelane_b32 v49, s62, 48")
        e("s_memrealtime s[60:61]")
        e("s_waitcnt lgkmcnt(0)")
        e("v_writelane_b32 v49, s60, 49")
        e("v_writelane_b32 v49, s64, 50")
        e("s_lshl_b32 s60, s2, 2")
        e(f"s_add_u32 s60, s60, s{S_WAVE}")
        e("s_lshl_b32 s60, s60, 8")
        e(f"s_add_u32 s60, s60, {32<<20}")
        e(f"v_lshlrev_b32 v50, 2, v{V_LANE}")
        e(f"s_mov_b32 s{S_O+2}, {64<<20}")
        e(f"buffer_store_dword v49, v50, s[{S_O}:{S_O+3}], s60 offen")
    em.raw("L_k1_exit:")
    e("s_endpgm")


def k2(em):
    e = em.e
    NS = K2NS
    S_WO, S_OS, S_OUT = 8, 12, 16
    S_W, S_WG, S_WL, S_T, S_ST = 20, 21, 22, 23, 24
    V_L, V_DMA, V_B, V_O, V_A = 1, 2, 3, 4, 6
    V_ACC = 12
    V_FR = 32
    V_BF = 64
    em.raw(".globl oproj_kernel\n.p2align 8\n.type oproj_kernel,@function\noproj_kernel:")
    e("s_cmp_ge_u32 s2, 256")
    e("s_cbranch_scc1 L_k2_exit")
    if PROF:
        e("s_memtime s[62:63]")
    e("s_and_b32 s3, s2, 7")
    e("s_lshr_b32 s4, s2, 3")
    e("s_lshl_b32 s3, s3, 5")
    e("s_add_u32 s3, s3, s4")
    e("s_cmp_ge_u32 s3, 252")
    e("s_cbranch_scc1 L_k2_exit")
    e("s_load_dwordx4 s[44:47], s[0:1], 32")
    e("s_load_dwordx2 s[48:49], s[0:1], 56")
    e("s_mul_i32 s4, s3, 9363")
    e("s_lshr_b32 s4, s4, 16")
    e("s_mul_i32 s5, s4, 7")
    e("s_sub_u32 s5, s3, s5")
    e(f"v_and_b32 v{V_L}, 63, v0")
    e("v_lshrrev_b32 v2, 6, v0")
    e("s_nop 0")
    e(f"v_readfirstlane_b32 s{S_W}, v2")
    e("s_waitcnt lgkmcnt(0)")
    e("s_lshl_b32 s6, s5, 7")
    e(f"s_add_u32 s{S_WO}, s44, s6")
    e(f"s_addc_u32 s{S_WO+1}, s45, 0")
    e(f"s_sub_u32 s{S_WO+2}, {4096*896}, s6")
    e(f"s_mov_b32 s{S_WO+3}, 0x20000")
    e("s_lshl_b32 s7, s4, 2")
    e(f"s_add_u32 s7, s7, s{S_W}")
    e("s_lshl_b32 s25, s7, 17")
    e(f"s_add_u32 s{S_OS}, s48, s25")
    e(f"s_addc_u32 s{S_OS+1}, s49, 0")
    e(f"s_mov_b32 s{S_OS+2}, 131072")
    e(f"s_mov_b32 s{S_OS+3}, 0x20000")
    e(f"s_mov_b32 s{S_OUT}, s46")
    e(f"s_mov_b32 s{S_OUT+1}, s47")
    e(f"s_mov_b32 s{S_OUT+2}, {2304*896}")
    e(f"s_mov_b32 s{S_OUT+3}, 0x20000")
    e(f"s_mul_i32 s{S_ST}, s7, {16*896}")
    e(f"s_add_u32 s{S_ST}, s{S_ST}, s6")
    e(f"s_mul_i32 s{S_WG}, s{S_W}, {32*896}")
    e(f"s_lshl_b32 s{S_WL}, s{S_W}, 12")
    e(f"v_lshrrev_b32 v10, 3, v{V_L}")
    e("v_mul_u32_u24 v10, 896, v10")
    e(f"v_bfe_u32 v11, v{V_L}, 1, 2")
    e(f"v_lshrrev_b32 v12, 4, v{V_L}")
    e("v_xor_b32 v11, v11, v12")
    e("v_lshl_add_u32 v10, v11, 5, v10")
    e(f"v_and_b32 v11, 1, v{V_L}")
    e(f"v_lshl_add_u32 v{V_DMA}, v11, 4, v10")
    e(f"v_lshlrev_b32 v{V_B}, 4, v{V_L}")
    e(f"v_and_b32 v10, 15, v{V_L}")
    e("v_mul_u32_u24 v10, 896, v10")
    e(f"v_lshl_add_u32 v{V_O}, v12, 3, v10")
    e(f"v_bfe_u32 v10, v{V_L}, 2, 2")
    e("v_lshl_add_u32 v10, v12, 2, v10")
    e("v_bfe_u32 v11, v10, 1, 2")
    e("v_lshlrev_b32 v10, 7, v10")
    e("v_lshl_add_u32 v10, v11, 5, v10")
    e(f"v_and_b32 v11, 3, v{V_L}")
    e("v_lshl_add_u32 v10, v11, 3, v10")
    for u in range(4):
        e(f"v_xor_b32 v{V_A+u}, {u<<5}, v10")
    st = {"base": 0}

    def issue_ops(cc):
        slot = cc % NS
        tag = f"C{cc}"
        ops = []
        for jj in range(4):
            ops.append([f"s_add_u32 m0, s{S_WL}, {slot*16384 + jj*1024}",
                        f"s_add_u32 s{S_T}, s{S_WG}, {(cc*128 + jj*8)*896}",
                        (f"buffer_load_dwordx4 v{V_DMA}, s[{S_WO}:{S_WO+3}], s{S_T} offen lds", tag)])
            ops.append([f"s_mov_b32 s{S_T}, {cc*4096}",
                        (f"buffer_load_dwordx4 {vr(V_BF + slot*16 + jj*4, 4)}, v{V_B}, s[{S_OS}:{S_OS+3}], s{S_T} offen offset:{jj*1024}{K2NT}", tag)])
        return ops

    def emit_op(op):
        for x in op:
            if isinstance(x, tuple):
                em.vmem(x[0], x[1])
            else:
                e(x)

    def issue(cc):
        for op in issue_ops(cc):
            emit_op(op)

    pend = []
    for cc in range(NS):
        issue(cc)
    D = 4
    total = 32 * 16

    def reads(G):
        cc, f = divmod(G, 16)
        ss, u = f >> 2, f & 3
        slot = cc % NS
        if f == 0:
            grp = slot >> 2
            if grp != st["base"]:
                d = (grp - st["base"]) * 65536
                for b in range(4):
                    e(f"v_add_u32 v{V_A+b}, {d & 0xffffffff}, v{V_A+b}")
                st["base"] = grp
        off = (slot & 3) * 16384 + ss * 4096
        fr = V_FR + (G % 8) * 4
        em.ds(f"T {vr(fr,2)}, v{V_A+u}, {off}", f"F{G}")
        em.ds(f"T {vr(fr+2,2)}, v{V_A+u}, {off+2048}", f"F{G}")

    def mfma(G):
        cc, f = divmod(G, 16)
        ss, u = f >> 2, f & 3
        slot = cc % NS
        fr = V_FR + (G % 8) * 4
        em.wait_lg(f"F{G}")
        d = vr(V_ACC + u * 4, 4)
        c = "0" if (cc == 0 and ss == 0) else d
        e(f"M {d}, {vr(fr,4)}, {vr(V_BF + slot*16 + ss*4, 4)}, {c}")

    for G in range(total + D):
        if G < total:
            cc, f = divmod(G, 16)
            if f == 0:
                em.wait_vm(f"C{cc}")
                e("s_barrier")
                if PROF:
                    e("s_memtime s[60:61]")
                    e("s_waitcnt lgkmcnt(0)")
                    em.lg = []
                    e(f"v_writelane_b32 v5, s60, {cc}")
                if cc >= 2 and cc - 2 + NS < 32:
                    pend.extend(issue_ops(cc - 2 + NS))
            reads(G)
        if G - D >= 0:
            mfma(G - D)
        if pend and (G & 1):
            emit_op(pend.pop(0))
    em.nop(9)
    for u in range(4):
        a = V_ACC + u * 4
        e(f"CV v{28+ (u%2)*2}, v{a}, v{a+1}")
        e(f"CV v{29+ (u%2)*2}, v{a+2}, v{a+3}")
        e(f"buffer_store_dwordx2 v[{28+(u%2)*2}:{29+(u%2)*2}], v{V_O}, s[{S_OUT}:{S_OUT+3}], s{S_ST} offen offset:{u*32}")
    if PROF:
        e("s_waitcnt vmcnt(0)")
        e("s_memtime s[60:61]")
        e("s_waitcnt lgkmcnt(0)")
        e("v_writelane_b32 v5, s60, 47")
        e("v_writelane_b32 v5, s62, 48")
        e("s_lshl_b32 s60, s2, 2")
        e(f"s_add_u32 s60, s60, s{S_W}")
        e("s_lshl_b32 s60, s60, 8")
        e(f"s_add_u32 s60, s60, {33<<20}")
        e(f"v_lshlrev_b32 v10, 2, v{V_L}")
        e(f"s_mov_b32 s{S_OS}, s48")
        e(f"s_mov_b32 s{S_OS+1}, s49")
        e(f"s_mov_b32 s{S_OS+2}, {64<<20}")
        e(f"buffer_store_dword v5, v10, s[{S_OS}:{S_OS+3}], s60 offen")
    em.raw("L_k2_exit:")
    e("s_endpgm")


def kd(name, vgpr, acc):
    return f""".p2align 6
.amdhsa_kernel {name}
  .amdhsa_next_free_vgpr {vgpr}
  .amdhsa_next_free_sgpr 102
  .amdhsa_accum_offset {acc}
  .amdhsa_group_segment_fixed_size 0
  .amdhsa_kernarg_size 64
  .amdhsa_user_sgpr_count 2
  .amdhsa_user_sgpr_kernarg_segment_ptr 1
  .amdhsa_system_sgpr_workgroup_id_x 1
.end_amdhsa_kernel
"""


def main():
    em = Em()
    k1(em)
    em2 = Em()
    k2(em2)
    txt = HEADER + "\n".join(em.lines) + "\n" + "\n".join(em2.lines) + "\n"
    txt += '.section .rodata,"a"\n' + kd("attn_kernel", 512, 256) + kd("oproj_kernel", 256, 256)
    open(OUT, "w").write(txt)
    print("wrote", OUT, len(txt), "bytes")


main()
```

```python
import math, sys, os, struct

OUT = sys.argv[1] if len(sys.argv) > 1 else "standalone__mha_block_cached__near_ridge.s"
PROF = os.environ.get("PROF", "0") == "1"
NSLOT = 9
NW0 = int(os.environ.get("NW0", "4"))
NK0 = NSLOT - NW0
PX = int(os.environ.get("PX", "4"))
DREAD = int(os.environ.get("DREAD", "5"))
KVNT = os.environ.get("KVNT", " nt")
K2NS = int(os.environ.get("K2NS", "7"))
K2NT = " nt" if os.environ.get("K2NT", "0") == "1" else ""

HEADER = f"""; Kernarg layout for this problem (64 bytes, ptrs only, base s[0:1]):
; @launch kernel=attn_kernel grid=(256,1,1) block=(256,1,1) lds=163840
; @launch kernel=oproj_kernel grid=(256,1,1) block=(256,1,1) lds={K2NS*16384}
.amdgcn_target "amdgcn-amd-amdhsa--gfx950"
.macro M d, a, b, c
v_mfma_f32_16x16x32_bf16 \\d, \\a, \\b, \\c
.endm
.macro T d, a, o
ds_read_b64_tr_b16 \\d, \\a offset:\\o
.endm
.macro R d, a, o
ds_read_b128 \\d, \\a offset:\\o
.endm
.macro WL n
s_waitcnt lgkmcnt(\\n)
.endm
.macro CV d, a, b
v_cvt_pk_bf16_f32 \\d, \\a, \\b
.endm
.text
"""


class Em:
    def __init__(self):
        self.lines = []
        self.vm = []
        self.lg = []
        self.n = 0

    def e(self, s):
        self.lines.append(s)
        self.n += 1

    def raw(self, s):
        self.lines.append(s)

    def vmem(self, s, tag):
        self.e(s)
        self.vm.append(tag)

    def ds(self, s, tag):
        self.e(s)
        self.lg.append(tag)

    def wait_vm(self, tag):
        idx = max([i for i, t in enumerate(self.vm) if t == tag], default=-1)
        if idx < 0:
            return
        n = min(len(self.vm) - 1 - idx, 63)
        self.e(f"s_waitcnt vmcnt({n})")
        self.vm = self.vm[len(self.vm) - n:] if n > 0 else []

    def wait_lg(self, tag):
        idx = max([i for i, t in enumerate(self.lg) if t == tag], default=-1)
        if idx < 0:
            return
        n = min(len(self.lg) - 1 - idx, 15)
        self.e(f"WL {n}")
        self.lg = self.lg[len(self.lg) - n:] if n > 0 else []

    def nop(self, states):
        while states > 0:
            k = min(states, 16)
            self.e(f"s_nop {k-1}")
            self.n += k - 1
            states -= k


def vr(b, n=1):
    return f"v{b}" if n == 1 else f"v[{b}:{b+n-1}]"


def ar(b, n=1):
    return f"a{b}" if n == 1 else f"a[{b}:{b+n-1}]"


S_X, S_K, S_V, S_W, S_O = 8, 12, 16, 20, 24
S_WAVE = 28
S_C = 29
S_XQ = 32
S_OQ = 36
S_T = 40
S_T2 = 41
V_LANE = 1
V_ADDR = 2
V_D = 10
V_XO = 14
V_ST = 15
V_SACC = 16
V_M = 40
V_L = 43
V_MC = 46
V_T = 50
V_BIG = 64
A_FR = 192


V_Q8 = 192
V_S8 = 208
V_P8 = 212
V_ONE = 220
V_SC = 224
V_M8, V_MC8 = 225, 226
V_SCW = 227
V_T2 = 228
V_QX = 244
V_AD = 248
V_A16 = 16
V_SACC2 = 32
V_EP = 228
A_O8 = 128
A_L8 = 144
SCR = 9 * 16384
S_WL, S_KL = 54, 55
S_XW = 56
S_OWN = 66


def k1(em):
    e = em.e
    global V_M, V_L, V_MC
    V_M, V_L, V_MC = 2, 4, 6
    V_WD, V_KD = 8, 9
    em.raw(".globl attn_kernel\n.p2align 8\n.type attn_kernel,@function\nattn_kernel:")
    e("s_cmp_ge_u32 s2, 256")
    e("s_cbranch_scc1 L_k1_exit")
    if PROF:
        e("s_memtime s[62:63]")
        e("s_memrealtime s[64:65]")
    e("s_load_dwordx8 s[44:51], s[0:1], 0")
    e("s_load_dwordx2 s[52:53], s[0:1], 56")
    e("s_and_b32 s3, s2, 7")
    e("s_lshr_b32 s4, s2, 3")
    e("s_and_b32 s5, s4, 15")
    e("s_lshl_b32 s6, s3, 1")
    e("s_lshr_b32 s7, s4, 4")
    e("s_add_u32 s6, s6, s7")
    e(f"v_and_b32 v{V_LANE}, 63, v0")
    e("v_lshrrev_b32 v2, 6, v0")
    e("s_nop 0")
    e(f"v_readfirstlane_b32 s{S_WAVE}, v2")
    e(f"s_mov_b32 s{S_C}, {hex(struct.unpack('<I', struct.pack('<f', math.log2(math.e)/16.0))[0])}")
    e("s_waitcnt lgkmcnt(0)")
    e("s_mul_i32 s7, s6, 129024")
    e(f"s_add_u32 s{S_X}, s44, s7")
    e(f"s_addc_u32 s{S_X+1}, s45, 0")
    e(f"s_mov_b32 s{S_X+2}, 129024")
    e(f"s_mov_b32 s{S_X+3}, 0x20000")
    e("s_lshl_b32 s7, s6, 4")
    e("s_add_u32 s7, s7, s5")
    e("s_lshl_b32 s7, s7, 18")
    e(f"s_add_u32 s{S_K}, s46, s7")
    e(f"s_addc_u32 s{S_K+1}, s47, 0")
    e(f"s_mov_b32 s{S_K+2}, 262144")
    e(f"s_mov_b32 s{S_K+3}, 0x20000")
    e(f"s_add_u32 s{S_V}, s48, s7")
    e(f"s_addc_u32 s{S_V+1}, s49, 0")
    e(f"s_mov_b32 s{S_V+2}, 262144")
    e(f"s_mov_b32 s{S_V+3}, 0x20000")
    e("s_lshl_b32 s7, s5, 9")
    e(f"s_add_u32 s{S_W}, s50, s7")
    e(f"s_addc_u32 s{S_W+1}, s51, 0")
    e(f"s_mov_b32 s{S_W+2}, {447*8192+512}")
    e(f"s_mov_b32 s{S_W+3}, 0x20000")
    e(f"s_mov_b32 s{S_O}, s52")
    e(f"s_mov_b32 s{S_O+1}, s53")
    e(f"s_mov_b32 s{S_O+2}, {144*128*1024}")
    e(f"s_mov_b32 s{S_O+3}, 0x20000")
    e(f"s_lshl_b32 s7, s{S_WAVE}, 1")
    for qt in range(3):
        if qt < 2:
            e(f"s_add_u32 s42, s7, {qt}")
        else:
            e("s_mov_b32 s42, 8")
        e(f"s_mul_i32 s{S_XQ+qt}, s42, 14336")
        e("s_mul_i32 s43, s6, 9")
        e("s_add_u32 s43, s43, s42")
        e("s_lshl_b32 s43, s43, 7")
        e("s_lshl_b32 s42, s5, 3")
        e("s_add_u32 s43, s43, s42")
        e(f"s_lshl_b32 s{S_OQ+qt}, s43, 10")
    for a in range(4):
        e(f"s_xor_b32 s42, s{S_WAVE}, {a}")
        e(f"s_lshl_b32 s{S_XW+a}, s42, 11")
    for k in range(4):
        e(f"s_cmp_eq_u32 s{S_WAVE}, {k}")
        e(f"s_cselect_b64 s[{S_OWN+2*k}:{S_OWN+2*k+1}], -1, 0")
    t0, t1, t2, t3 = V_T, V_T + 1, V_T + 2, V_T + 3
    e(f"v_and_b32 v{t0}, 15, v{V_LANE}")
    e(f"v_mul_u32_u24 v{t0}, 896, v{t0}")
    e(f"v_lshrrev_b32 v{t1}, 4, v{V_LANE}")
    e(f"v_lshl_add_u32 v{V_XO}, v{t1}, 4, v{t0}")
    e(f"v_lshlrev_b32 v{V_ST}, 4, v{V_LANE}")
    e(f"s_lshl_b32 s42, s{S_WAVE}, 1")
    e(f"s_lshl_b32 s{S_KL}, s{S_WAVE}, 10")
    e(f"v_lshrrev_b32 v{t0}, 5, v{V_LANE}")
    e(f"v_add_u32 v{t0}, s42, v{t0}")
    e(f"v_and_b32 v{t1}, 31, v{V_LANE}")
    e(f"v_lshlrev_b32 v{t2}, 1, v{t0}")
    e(f"v_xor_b32 v{t2}, v{t1}, v{t2}")
    e(f"v_lshlrev_b32 v{t2}, 4, v{t2}")
    e(f"v_lshl_add_u32 v{V_KD}, v{t0}, 9, v{t2}")
    e(f"s_and_b32 s42, s{S_WAVE}, 1")
    e("s_lshl_b32 s42, s42, 1")
    e(f"s_lshr_b32 s43, s{S_WAVE}, 1")
    e("s_lshl_b32 s43, s43, 3")
    e("s_add_u32 s42, s42, s43")
    e(f"s_lshl_b32 s{S_WL}, s42, 9")
    e(f"v_lshrrev_b32 v{t0}, 5, v{V_LANE}")
    e(f"v_add_u32 v{t0}, s42, v{t0}")
    e(f"v_and_b32 v{t2}, 3, v{t0}")
    e(f"v_bfe_u32 v{t3}, v{t0}, 3, 1")
    e(f"v_lshl_add_u32 v{t2}, v{t3}, 2, v{t2}")
    e(f"v_lshlrev_b32 v{t2}, 1, v{t2}")
    e(f"v_xor_b32 v{t2}, v{t1}, v{t2}")
    e(f"v_lshlrev_b32 v{t2}, 4, v{t2}")
    e(f"v_lshl_add_u32 v{V_WD}, v{t0}, 13, v{t2}")
    e(f"v_lshlrev_b32 v{V_SC}, 4, v{V_LANE}")
    e(f"v_add_u32 v{V_SC}, {SCR}, v{V_SC}")
    for a in range(4):
        e(f"v_add_u32 v{V_QX+a}, s{S_XW+a}, v{V_SC}")
    for j in range(4):
        e(f"v_mov_b32 v{V_ONE+j}, 0x3f803f80")

    NT = 2
    chunks = [("W", i) for i in range(14)] + [("K", i) for i in range(16)] + [("V", i) for i in range(16)]
    nsteps = len(chunks)
    slot_of = {}
    init = [("W", i) for i in range(NW0)] + [("K", i) for i in range(NK0)]
    for s_, c in enumerate(init):
        slot_of[c] = s_
    later = [c for c in chunks if c not in slot_of]
    dq = []

    def emit_dma(item):
        sl, lds, goff, vo, srd, nt, tag = item
        e(f"s_add_u32 m0, s{sl}, {lds}")
        e(f"s_mov_b32 s{S_T}, {goff}")
        em.vmem(f"buffer_load_dwordx4 v{vo}, s[{srd}:{srd+3}], s{S_T} offen{nt} lds", tag)

    def issue(chunk, defer=False):
        kind, ci = chunk
        slot = slot_of[chunk]
        tag = f"{kind}{ci}"
        its = []
        if kind == "W":
            for jr in (0, 4, 16, 20):
                its.append((S_WL, slot * 16384 + jr * 512, (ci * 32 + jr) * 8192, V_WD, S_W, "", tag))
        else:
            srd = S_K if kind == "K" else S_V
            for jj in range(4):
                its.append((S_KL, slot * 16384 + jj * 4096, ci * 16384 + jj * 4096, V_KD, srd, KVNT, tag))
        for it in its:
            if defer:
                dq.append(it)
            else:
                emit_dma(it)

    def xload(c):
        if c < 14:
            for qt in range(3):
                em.vmem(f"buffer_load_dwordx4 {ar((qt*14+c)*4,4)}, v{V_XO}, s[{S_X}:{S_X+3}], s{S_XQ+qt} offen offset:{c*64}", f"x{c}")

    for c in range(max(NW0, PX)):
        if c < NW0:
            issue(("W", c))
        if c < PX:
            xload(c)
    issue(("K", 0))
    st = {"base": 0}

    def set_addr(kind):
        e(f"v_lshrrev_b32 v{t0}, 4, v{V_LANE}")
        e(f"v_bfe_u32 v{t1}, v{V_LANE}, 2, 2")
        e(f"v_and_b32 v{t2}, 3, v{V_LANE}")
        if kind == "W":
            e(f"v_lshl_add_u32 v{t3}, v{t0}, 3, v{t1}")
            e(f"v_lshlrev_b32 v{t3}, 9, v{t3}")
            e(f"v_and_b32 v{t0}, 1, v{t0}")
            e(f"v_lshl_add_u32 v{t0}, v{t0}, 2, v{t1}")
            e(f"v_lshl_add_u32 v{t3}, v{t0}, 5, v{t3}")
            e(f"v_lshl_add_u32 v{t3}, v{t2}, 3, v{t3}")
            nb, sh = 16, 5
        elif kind == "V":
            e(f"v_lshl_add_u32 v{t0}, v{t0}, 2, v{t1}")
            e(f"v_lshlrev_b32 v{t3}, 9, v{t0}")
            e(f"v_and_b32 v{t0}, 7, v{t0}")
            e(f"v_lshl_add_u32 v{t3}, v{t0}, 5, v{t3}")
            e(f"v_lshl_add_u32 v{t3}, v{t2}, 3, v{t3}")
            nb, sh = 16, 5
        else:
            e(f"v_and_b32 v{t1}, 15, v{V_LANE}")
            e(f"v_lshlrev_b32 v{t3}, 9, v{t1}")
            e(f"v_and_b32 v{t1}, 7, v{t1}")
            e(f"v_lshlrev_b32 v{t1}, 1, v{t1}")
            e(f"v_xor_b32 v{t1}, v{t0}, v{t1}")
            e(f"v_lshl_add_u32 v{t3}, v{t1}, 4, v{t3}")
            nb, sh = 8, 6
        e(f"s_lshl_b32 s42, s{S_WAVE}, 7")
        e(f"v_xor_b32 v{t3}, s42, v{t3}")
        for b in range(nb):
            e(f"v_xor_b32 v{V_A16+b}, {b << sh}, v{t3}")
        st["base"] = 0
        st["nb"] = nb

    def set_base(grp):
        if grp != st["base"]:
            d = (grp - st["base"]) * 65536
            for b in range(st["nb"]):
                e(f"v_add_u32 v{V_A16+b}, {d & 0xffffffff}, v{V_A16+b}")
            st["base"] = grp

    def frag_reg(G):
        return A_FR + (G % 16) * 4

    def reads(G):
        i, f = divmod(G, 16)
        kind, ci = chunks[i]
        slot = slot_of[chunks[i]]
        sb = (slot & 3) * 16384
        fr = frag_reg(G)
        tag = f"F{G}"
        if kind == "K":
            kt, ks = f >> 3, f & 7
            em.ds(f"R {ar(fr,4)}, v{V_A16+ks}, {sb + kt*8192}", tag)
        else:
            second = 2048 if kind == "W" else 8192
            em.ds(f"T {ar(fr,2)}, v{V_A16+f}, {sb}", tag)
            em.ds(f"T {ar(fr+2,2)}, v{V_A16+f}, {sb + second}", tag)

    def big(qt, idx):
        return V_BIG + (qt * 16 + idx) * 4

    def sacc(kt, qt):
        return V_SACC2 + (kt * 2 + qt) * 4

    def QF(qt, s):
        return (qt * 14 + s) * 4

    def s8reg(ci):
        return V_Q8 + (ci >> 1) * 2

    q = []
    lab = [0]

    def push(instrs, after=None):
        for k, s in enumerate(instrs):
            q.append((after if k == 0 else None, s))

    def drain(cnt):
        k = 0
        while q and k < cnt:
            rdy, s = q[0]
            if rdy is not None and em.n < rdy:
                return
            q.pop(0)
            if isinstance(s, tuple):
                if s[0] == "nop":
                    em.nop(s[1])
                elif s[0] == "st":
                    em.vmem(s[1], "st")
                elif s[0] == "ds":
                    em.ds(s[1], s[2])
                elif s[0] == "blk":
                    for x in s[1]:
                        if x.endswith(":"):
                            em.raw(x)
                        else:
                            e(x)
            else:
                e(s)
            k += 1

    def drain_all():
        while q:
            rdy, s = q[0]
            if rdy is not None and em.n < rdy:
                em.nop(rdy - em.n)
            drain(1)

    def s_items(ci, kt):
        out = []
        for qt in range(NT):
            a, m, dst = sacc(kt, qt), V_M + qt, big(qt, ci) + 2 * kt
            if ci == 0 and kt == 0:
                out.append(f"v_max_f32 v{m}, v{a}, v{a+1}")
            else:
                out.append(f"v_max3_f32 v{m}, v{a}, v{a+1}, v{m}")
            out.append(f"CV v{dst}, v{a}, v{a+1}")
            out.append(f"v_max3_f32 v{m}, v{a+2}, v{a+3}, v{m}")
            out.append(f"CV v{dst+1}, v{a+2}, v{a+3}")
        k = 2 * (ci & 1) + kt
        lab[0] += 1
        L = f"Ls8_{lab[0]}"
        a, m, dst = V_S8, V_M8, s8reg(ci)
        blk = [f"s_mov_b64 vcc, s[{S_OWN+2*k}:{S_OWN+2*k+1}]", f"s_cbranch_vccz {L}",
               f"v_max3_f32 v{m}, v{a}, v{a+1}, v{m}", f"CV v{dst}, v{a}, v{a+1}",
               f"v_max3_f32 v{m}, v{a+2}, v{a+3}, v{m}", f"CV v{dst+1}, v{a+2}, v{a+3}", f"{L}:"]
        out.append(("blk", blk))
        return out

    def qconv_items(s):
        out = []
        tl = [(V_T + qt * 4, big(qt, 2 * s), big(qt, 2 * s + 1), qt) for qt in range(NT)]
        if s < 2:
            tl.append((V_T + 8, V_Q8 + (2 * s) * 4, V_Q8 + (2 * s + 1) * 4, 8))
        for t, p0, p1, qt in tl:
            out += [f"CV v{t}, v{p0}, v{p0+1}", f"CV v{t+1}, v{p0+2}, v{p0+3}",
                    f"CV v{t+2}, v{p1}, v{p1+1}", f"CV v{t+3}, v{p1+2}, v{p1+3}"]
        out.append(("nop", 2))
        for t, *_ in tl:
            out += [f"v_permlane32_swap_b32 v{t}, v{t+2}", f"v_permlane32_swap_b32 v{t+1}, v{t+3}"]
        out.append(("nop", 2))
        for t, *_ in tl:
            out += [f"v_permlane16_swap_b32 v{t}, v{t+2}", f"v_permlane16_swap_b32 v{t+1}, v{t+3}"]
        out.append(("nop", 1))
        for t, p0, p1, qt in tl:
            if qt == 8:
                out.append(("ds", f"ds_write_b128 v{V_QX}, v[{t}:{t+3}] offset:{s*1024}", "q8w"))
            else:
                for j in range(4):
                    out.append(f"v_accvgpr_write_b32 a{QF(qt, s)+j}, v{t+j}")
        return out

    def xreduce(op, regs):
        out = []
        for sw in ("32", "16"):
            for k, r in enumerate(regs):
                out.append(f"v_mov_b32 v{V_T+k}, v{r}")
            out.append(("nop", 2))
            for k, r in enumerate(regs):
                out.append(f"v_permlane{sw}_swap_b32 v{V_T+k}, v{r}")
            out.append(("nop", 1))
            for k, r in enumerate(regs):
                out.append(f"v_{op}_f32 v{r}, v{r}, v{V_T+k}")
        return out

    def p_group(regs):
        n = len(regs)
        T = [(V_T2 + 2 * k, V_T2 + 2 * k + 1) for k in range(n)]
        o = []
        for (R, mc, l), (ta, tb) in zip(regs, T):
            o += [f"v_lshlrev_b32 v{ta}, 16, v{R}", f"v_and_b32 v{tb}, 0xffff0000, v{R}"]
        for (R, mc, l), (ta, tb) in zip(regs, T):
            o += [f"v_fma_f32 v{ta}, v{ta}, s{S_C}, -v{mc}", f"v_fma_f32 v{tb}, v{tb}, s{S_C}, -v{mc}"]
        for (R, mc, l), (ta, tb) in zip(regs, T):
            o += [f"v_exp_f32 v{ta}, v{ta}", f"v_exp_f32 v{tb}, v{tb}"]
        for which in (0, 1):
            for (R, mc, l), tt in zip(regs, T):
                if l is not None:
                    o.append(f"v_add_f32 v{l}, v{l}, v{tt[which]}")
        for (R, mc, l), (ta, tb) in zip(regs, T):
            o.append(f"CV v{R}, v{ta}, v{tb}")
        return o

    def p_items(ci):
        regs = [(big(qt, ci) + j, V_MC + qt, V_L + qt) for j in range(4) for qt in range(NT)]
        return p_group(regs)

    epi_k = [0]

    def epi_block(areg, lreg, soff, sp):
        out = []
        tb = V_EP + (epi_k[0] % 2) * 12
        epi_k[0] += 1
        for j in range(8):
            out.append(f"v_accvgpr_read_b32 v{tb+j}, a{areg+j}")
        for j in range(8):
            out.append(f"v_mul_f32 v{tb+j}, v{tb+j}, v{lreg}")
        for j in range(4):
            out.append(f"CV v{tb+8+j}, v{tb+2*j}, v{tb+2*j+1}")
        out.append(f"s_add_u32 s{S_T2}, s{soff}, s{S_XW + (sp>>1)}")
        out.append(("st", f"buffer_store_dwordx4 v[{tb+8}:{tb+11}], v{V_ST}, s[{S_O}:{S_O+3}], s{S_T2} offen offset:{(sp&1)*1024}"))
        return out

    def epi_items(s):
        out = []
        for qt in range(NT):
            out += epi_block((qt * 16 + 2 * s) * 4, V_L + qt, S_OQ + qt, s)
        return out

    def transition_q8():
        drain_all()
        e(f"v_mov_b32 v{V_M8}, 0xff800000")
        em.wait_lg("q8w")
        e("s_barrier")
        for s in range(8):
            em.ds(f"R {ar(QF(2, s),4)}, v{V_QX + (s>>1)}, {(s&1)*1024}", "q8r")
        em.nop(2)

    def transition_sm():
        drain_all()
        push(xreduce("max", [V_M, V_M + 1, V_M8]))
        drain_all()
        e(f"v_and_b32 v{t0}, 15, v{V_LANE}")
        e(f"v_lshlrev_b32 v{t0}, 2, v{t0}")
        e(f"v_add_u32 v{t0}, {SCR}, v{t0}")
        e(f"s_lshl_b32 s42, s{S_WAVE}, 6")
        e(f"v_add_u32 v{t1}, s42, v{t0}")
        em.ds(f"ds_write_b32 v{t1}, v{V_M8}", "m8w")
        for qt in range(NT):
            e(f"v_mul_f32 v{V_MC+qt}, s{S_C}, v{V_M+qt}")
            e(f"v_mov_b32 v{V_L+qt}, 0")
        e(f"s_lshr_b32 s42, s{S_WAVE}, 1")
        e("s_lshl_b32 s42, s42, 10")
        e(f"s_and_b32 s43, s{S_WAVE}, 1")
        e("s_lshl_b32 s43, s43, 3")
        e("s_add_u32 s42, s42, s43")
        e(f"v_add_u32 v{V_SCW}, s42, v{V_SC}")
        em.wait_lg("m8w")
        e("s_barrier")
        em.ds(f"ds_read2_b32 v[{t2}:{t3}], v{t0} offset0:0 offset1:16", "m8r")
        em.ds(f"ds_read2_b32 v[{t3+1}:{t3+2}], v{t0} offset0:32 offset1:48", "m8r")
        for s in p_items(0):
            e(s)
        em.wait_lg("m8r")
        e("s_barrier")
        e(f"v_max3_f32 v{V_M8}, v{t2}, v{t3}, v{t3+1}")
        e(f"v_max_f32 v{V_M8}, v{V_M8}, v{t3+2}")
        e(f"v_mul_f32 v{V_MC8}, s{S_C}, v{V_M8}")
        for h in range(0, 8, 4):
            regs = [(V_Q8 + 2 * j + k, V_MC8, None) for j in range(h, h + 4) for k in range(2)]
            for s in p_group(regs):
                e(s)
        for j in range(8):
            em.ds(f"ds_write_b64 v{V_SCW}, v[{V_Q8+2*j}:{V_Q8+2*j+1}] offset:{j*2048}", "p8w")
        em.wait_lg("p8w")
        e("s_barrier")
        em.ds(f"R {vr(V_P8,4)}, v{V_SC}, 0", "P8_0")
        em.nop(2)

    def mfmas(G):
        i, f = divmod(G, 16)
        kind, ci = chunks[i]
        fr = frag_reg(G)
        if kind == "V" and ci == 0 and f == 0:
            transition_sm()
        if kind == "W" and f == 0:
            em.wait_vm(f"x{ci}")
        if kind == "V" and f == 0 and ci > 0:
            drain_all()
            em.nop(2)
        em.wait_lg(f"F{G}")
        per = {"W": 3, "K": 2, "V": 3}[kind]
        for qt in range(NT):
            if kind == "W":
                d = vr(big(qt, f), 4)
                c = "0" if ci == 0 else d
                e(f"M {d}, {ar(fr,4)}, {ar((qt*14+ci)*4,4)}, {c}")
            elif kind == "K":
                kt, ks = f >> 3, f & 7
                if ks == 0:
                    assert not any(isinstance(x[1], str) and f"v{sacc(kt,qt)}," in x[1] for x in q), "pending S items"
                d = vr(sacc(kt, qt), 4)
                c = "0" if ks == 0 else d
                e(f"M {d}, {ar(fr,4)}, {ar(QF(qt,ks),4)}, {c}")
            else:
                d = ar((qt * 16 + f) * 4, 4)
                c = "0" if ci == 0 else d
                e(f"M {d}, {ar(fr,4)}, {vr(big(qt,ci),4)}, {c}")
            drain(per)
        if kind == "W" and f < 4:
            d = vr(V_Q8 + f * 4, 4)
            c = "0" if ci == 0 else d
            e(f"M {d}, {ar(fr,4)}, {ar((2*14+ci)*4,4)}, {c}")
            drain(per)
        elif kind == "K":
            kt, ks = f >> 3, f & 7
            if ks == 0:
                while any(isinstance(x[1], tuple) and x[1][0] == "blk" for x in q):
                    rdy, _ = q[0]
                    if rdy is not None and em.n < rdy:
                        em.nop(rdy - em.n)
                    drain(1)
            d = vr(V_S8, 4)
            c = "0" if ks == 0 else d
            if st.get("extra"):
                e(f"M {d}, {ar(fr,4)}, {ar(QF(2,ks),4)}, {c}")
                em.n -= 1
        elif kind == "V":
            p8 = V_P8 + (ci & 1) * 4
            if f == 0 and ci + 1 < 16:
                em.ds(f"R {vr(V_P8 + ((ci+1)&1)*4, 4)}, v{V_SC}, {(ci+1)*1024}", f"P8_{ci+1}")
            if f < 4:
                em.wait_lg(f"P8_{ci}")
                d = ar(A_O8 + f * 4, 4)
                c = "0" if ci == 0 else d
                e(f"M {d}, {ar(fr,4)}, {vr(p8,4)}, {c}")
                drain(per)
                if f == 3:
                    d = ar(A_L8, 4)
                    c = "0" if ci == 0 else d
                    e(f"M {d}, {vr(V_ONE,4)}, {vr(p8,4)}, {c}")
                    drain(per)
        if kind == "W" and ci == 13 and (f & 1):
            push(qconv_items(f >> 1), after=em.n + 9)
        if kind == "K" and (f & 7) == 7:
            push(s_items(ci, f >> 3), after=em.n + 13)
        if kind == "V":
            if f == 0 and ci + 1 < 16:
                push(p_items(ci + 1))
            if ci == 15:
                if f == 0:
                    push(xreduce("add", [V_L, V_L + 1]))
                    push([f"v_rcp_f32 v{V_L+qt}, v{V_L+qt}" for qt in range(NT)])
                    push([("nop", 1)])
                if f == 5:
                    push([f"v_accvgpr_read_b32 v{V_M8}, a{A_L8}", f"v_rcp_f32 v{V_M8}, v{V_M8}", ("nop", 1)], after=em.n + 9)
                    for k in range(2):
                        push(epi_block(A_O8 + k * 8, V_M8, S_OQ + 2, k))
                if f & 1:
                    push(epi_items(f >> 1), after=em.n + 9)

    total = nsteps * 16
    st["li"] = 0

    def body(G):
        if G < total:
            i, f = divmod(G, 16)
            if f == 0:
                kind, ci = chunks[i]
                em.wait_vm(f"{kind}{ci}")
                e("s_barrier")
                if PROF:
                    e("s_memtime s[60:61]")
                    e("s_waitcnt lgkmcnt(0)")
                    em.lg = []
                    e(f"v_writelane_b32 v49, s60, {i}")
                while dq:
                    emit_dma(dq.pop(0))
                if i >= 2 and st["li"] < len(later):
                    c = later[st["li"]]
                    st["li"] += 1
                    slot_of[c] = slot_of[chunks[i - 2]]
                    issue(c, True)
                xload(i + PX)
                if i + 1 < NK0:
                    issue(("K", i + 1), True)
                if i == 0 or chunks[i - 1][0] != kind:
                    drain_all()
                    set_addr(kind)
                set_base(slot_of[chunks[i]] >> 2)
            reads(G)
        m = G - DREAD
        if m >= 0:
            mfmas(m)
        if dq:
            emit_dma(dq.pop(0))

    import copy
    G = 0
    while G < total + DREAD:
        m = G - DREAD
        if m >= 0 and chunks[m // 16][0] == "K" and (m & 7) == 0:
            ci, kt = chunks[m // 16][1], (m >> 3) & 1
            k = 2 * (ci & 1) + kt
            if ci == 0 and kt == 0:
                transition_q8()
                em.wait_lg("q8r")
            while any(isinstance(x[1], tuple) and x[1][0] == "blk" for x in q):
                rdy, _ = q[0]
                if rdy is not None and em.n < rdy:
                    em.nop(rdy - em.n)
                drain(1)
            lab[0] += 1
            LP, LJ = f"Lkp_{lab[0]}", f"Lkj_{lab[0]}"
            e(f"s_mov_b64 vcc, s[{S_OWN+2*k}:{S_OWN+2*k+1}]")
            e(f"s_cbranch_vccz {LP}")
            snap = (list(em.vm), list(em.lg), em.n, list(q), list(dq), dict(st), dict(slot_of), lab[0], list(epi_k))
            st["extra"] = True
            for g2 in range(G, G + 8):
                body(g2)
            e(f"s_branch {LJ}")
            em.raw(f"{LP}:")
            nA = em.n
            em.vm, em.lg, em.n = list(snap[0]), list(snap[1]), snap[2]
            q[:] = snap[3]
            dq[:] = snap[4]
            st.clear(); st.update(snap[5])
            slot_of.clear(); slot_of.update(snap[6])
            lab[0] = snap[7] + 1000
            st["extra"] = False
            for g2 in range(G, G + 8):
                body(g2)
            em.raw(f"{LJ}:")
            G += 8
        else:
            body(G)
            G += 1
    drain_all()
    if PROF:
        e("s_memtime s[60:61]")
        e("s_waitcnt lgkmcnt(0)")
        e("v_writelane_b32 v49, s60, 46")
        e("s_waitcnt vmcnt(0)")
        e("s_memtime s[60:61]")
        e("s_waitcnt lgkmcnt(0)")
        e("v_writelane_b32 v49, s60, 47")
        e("v_writelane_b32 v49, s62, 48")
        e("s_memrealtime s[60:61]")
        e("s_waitcnt lgkmcnt(0)")
        e("v_writelane_b32 v49, s60, 49")
        e("v_writelane_b32 v49, s64, 50")
        e("s_lshl_b32 s60, s2, 2")
        e(f"s_add_u32 s60, s60, s{S_WAVE}")
        e("s_lshl_b32 s60, s60, 8")
        e(f"s_add_u32 s60, s60, {32<<20}")
        e(f"v_lshlrev_b32 v50, 2, v{V_LANE}")
        e(f"s_mov_b32 s{S_O+2}, {64<<20}")
        e(f"buffer_store_dword v49, v50, s[{S_O}:{S_O+3}], s60 offen")
    em.raw("L_k1_exit:")
    e("s_endpgm")


def k2(em):
    e = em.e
    NS = K2NS
    S_WO, S_OS, S_OUT = 8, 12, 16
    S_W, S_WG, S_WL, S_T, S_ST = 20, 21, 22, 23, 24
    V_L, V_DMA, V_B, V_O, V_A = 1, 2, 3, 4, 6
    V_ACC = 12
    V_FR = 32
    V_BF = 64
    em.raw(".globl oproj_kernel\n.p2align 8\n.type oproj_kernel,@function\noproj_kernel:")
    e("s_cmp_ge_u32 s2, 256")
    e("s_cbranch_scc1 L_k2_exit")
    if PROF:
        e("s_memtime s[62:63]")
    e("s_and_b32 s3, s2, 7")
    e("s_lshr_b32 s4, s2, 3")
    e("s_lshl_b32 s3, s3, 5")
    e("s_add_u32 s3, s3, s4")
    e("s_cmp_ge_u32 s3, 252")
    e("s_cbranch_scc1 L_k2_exit")
    e("s_load_dwordx4 s[44:47], s[0:1], 32")
    e("s_load_dwordx2 s[48:49], s[0:1], 56")
    e("s_mul_i32 s4, s3, 9363")
    e("s_lshr_b32 s4, s4, 16")
    e("s_mul_i32 s5, s4, 7")
    e("s_sub_u32 s5, s3, s5")
    e(f"v_and_b32 v{V_L}, 63, v0")
    e("v_lshrrev_b32 v2, 6, v0")
    e("s_nop 0")
    e(f"v_readfirstlane_b32 s{S_W}, v2")
    e("s_waitcnt lgkmcnt(0)")
    e("s_lshl_b32 s6, s5, 7")
    e(f"s_add_u32 s{S_WO}, s44, s6")
    e(f"s_addc_u32 s{S_WO+1}, s45, 0")
    e(f"s_sub_u32 s{S_WO+2}, {4096*896}, s6")
    e(f"s_mov_b32 s{S_WO+3}, 0x20000")
    e("s_lshl_b32 s7, s4, 2")
    e(f"s_add_u32 s7, s7, s{S_W}")
    e("s_lshl_b32 s25, s7, 17")
    e(f"s_add_u32 s{S_OS}, s48, s25")
    e(f"s_addc_u32 s{S_OS+1}, s49, 0")
    e(f"s_mov_b32 s{S_OS+2}, 131072")
    e(f"s_mov_b32 s{S_OS+3}, 0x20000")
    e(f"s_mov_b32 s{S_OUT}, s46")
    e(f"s_mov_b32 s{S_OUT+1}, s47")
    e(f"s_mov_b32 s{S_OUT+2}, {2304*896}")
    e(f"s_mov_b32 s{S_OUT+3}, 0x20000")
    e(f"s_mul_i32 s{S_ST}, s7, {16*896}")
    e(f"s_add_u32 s{S_ST}, s{S_ST}, s6")
    e(f"s_mul_i32 s{S_WG}, s{S_W}, {32*896}")
    e(f"s_lshl_b32 s{S_WL}, s{S_W}, 12")
    e(f"v_lshrrev_b32 v10, 3, v{V_L}")
    e("v_mul_u32_u24 v10, 896, v10")
    e(f"v_bfe_u32 v11, v{V_L}, 1, 2")
    e(f"v_lshrrev_b32 v12, 4, v{V_L}")
    e("v_xor_b32 v11, v11, v12")
    e("v_lshl_add_u32 v10, v11, 5, v10")
    e(f"v_and_b32 v11, 1, v{V_L}")
    e(f"v_lshl_add_u32 v{V_DMA}, v11, 4, v10")
    e(f"v_lshlrev_b32 v{V_B}, 4, v{V_L}")
    e(f"v_and_b32 v10, 15, v{V_L}")
    e("v_mul_u32_u24 v10, 896, v10")
    e(f"v_lshl_add_u32 v{V_O}, v12, 3, v10")
    e(f"v_bfe_u32 v10, v{V_L}, 2, 2")
    e("v_lshl_add_u32 v10, v12, 2, v10")
    e("v_bfe_u32 v11, v10, 1, 2")
    e("v_lshlrev_b32 v10, 7, v10")
    e("v_lshl_add_u32 v10, v11, 5, v10")
    e(f"v_and_b32 v11, 3, v{V_L}")
    e("v_lshl_add_u32 v10, v11, 3, v10")
    for u in range(4):
        e(f"v_xor_b32 v{V_A+u}, {u<<5}, v10")
    st = {"base": 0}

    def issue_ops(cc):
        slot = cc % NS
        tag = f"C{cc}"
        ops = []
        for jj in range(4):
            ops.append([f"s_add_u32 m0, s{S_WL}, {slot*16384 + jj*1024}",
                        f"s_add_u32 s{S_T}, s{S_WG}, {(cc*128 + jj*8)*896}",
                        (f"buffer_load_dwordx4 v{V_DMA}, s[{S_WO}:{S_WO+3}], s{S_T} offen lds", tag)])
            ops.append([f"s_mov_b32 s{S_T}, {cc*4096}",
                        (f"buffer_load_dwordx4 {vr(V_BF + slot*16 + jj*4, 4)}, v{V_B}, s[{S_OS}:{S_OS+3}], s{S_T} offen offset:{jj*1024}{K2NT}", tag)])
        return ops

    def emit_op(op):
        for x in op:
            if isinstance(x, tuple):
                em.vmem(x[0], x[1])
            else:
                e(x)

    def issue(cc):
        for op in issue_ops(cc):
            emit_op(op)

    pend = []
    for cc in range(NS):
        issue(cc)
    D = 4
    total = 32 * 16

    def reads(G):
        cc, f = divmod(G, 16)
        ss, u = f >> 2, f & 3
        slot = cc % NS
        if f == 0:
            grp = slot >> 2
            if grp != st["base"]:
                d = (grp - st["base"]) * 65536
                for b in range(4):
                    e(f"v_add_u32 v{V_A+b}, {d & 0xffffffff}, v{V_A+b}")
                st["base"] = grp
        off = (slot & 3) * 16384 + ss * 4096
        fr = V_FR + (G % 8) * 4
        em.ds(f"T {vr(fr,2)}, v{V_A+u}, {off}", f"F{G}")
        em.ds(f"T {vr(fr+2,2)}, v{V_A+u}, {off+2048}", f"F{G}")

    def mfma(G):
        cc, f = divmod(G, 16)
        ss, u = f >> 2, f & 3
        slot = cc % NS
        fr = V_FR + (G % 8) * 4
        em.wait_lg(f"F{G}")
        d = vr(V_ACC + u * 4, 4)
        c = "0" if (cc == 0 and ss == 0) else d
        e(f"M {d}, {vr(fr,4)}, {vr(V_BF + slot*16 + ss*4, 4)}, {c}")

    for G in range(total + D):
        if G < total:
            cc, f = divmod(G, 16)
            if f == 0:
                em.wait_vm(f"C{cc}")
                e("s_barrier")
                if PROF:
                    e("s_memtime s[60:61]")
                    e("s_waitcnt lgkmcnt(0)")
                    em.lg = []
                    e(f"v_writelane_b32 v5, s60, {cc}")
                if cc >= 2 and cc - 2 + NS < 32:
                    pend.extend(issue_ops(cc - 2 + NS))
            reads(G)
        if G - D >= 0:
            mfma(G - D)
        if pend and (G & 1):
            emit_op(pend.pop(0))
    em.nop(9)
    for u in range(4):
        a = V_ACC + u * 4
        e(f"CV v{28+ (u%2)*2}, v{a}, v{a+1}")
        e(f"CV v{29+ (u%2)*2}, v{a+2}, v{a+3}")
        e(f"buffer_store_dwordx2 v[{28+(u%2)*2}:{29+(u%2)*2}], v{V_O}, s[{S_OUT}:{S_OUT+3}], s{S_ST} offen offset:{u*32}")
    if PROF:
        e("s_waitcnt vmcnt(0)")
        e("s_memtime s[60:61]")
        e("s_waitcnt lgkmcnt(0)")
        e("v_writelane_b32 v5, s60, 47")
        e("v_writelane_b32 v5, s62, 48")
        e("s_lshl_b32 s60, s2, 2")
        e(f"s_add_u32 s60, s60, s{S_W}")
        e("s_lshl_b32 s60, s60, 8")
        e(f"s_add_u32 s60, s60, {33<<20}")
        e(f"v_lshlrev_b32 v10, 2, v{V_L}")
        e(f"s_mov_b32 s{S_OS}, s48")
        e(f"s_mov_b32 s{S_OS+1}, s49")
        e(f"s_mov_b32 s{S_OS+2}, {64<<20}")
        e(f"buffer_store_dword v5, v10, s[{S_OS}:{S_OS+3}], s60 offen")
    em.raw("L_k2_exit:")
    e("s_endpgm")


def kd(name, vgpr, acc):
    return f""".p2align 6
.amdhsa_kernel {name}
  .amdhsa_next_free_vgpr {vgpr}
  .amdhsa_next_free_sgpr 102
  .amdhsa_accum_offset {acc}
  .amdhsa_group_segment_fixed_size 0
  .amdhsa_kernarg_size 64
  .amdhsa_user_sgpr_count 2
  .amdhsa_user_sgpr_kernarg_segment_ptr 1
  .amdhsa_system_sgpr_workgroup_id_x 1
.end_amdhsa_kernel
"""


def main():
    em = Em()
    k1(em)
    em2 = Em()
    k2(em2)
    txt = HEADER + "\n".join(em.lines) + "\n" + "\n".join(em2.lines) + "\n"
    txt += '.section .rodata,"a"\n' + kd("attn_kernel", 512, 256) + kd("oproj_kernel", 256, 256)
    open(OUT, "w").write(txt)
    print("wrote", OUT, len(txt), "bytes")


main()
```

```python
import math, sys, os, struct

OUT = sys.argv[1] if len(sys.argv) > 1 else "standalone__mha_block_cached__near_ridge.s"
PROF = os.environ.get("PROF", "0") == "1"
NSLOT = 9
NW0 = int(os.environ.get("NW0", "4"))
NK0 = NSLOT - NW0
FORK = int(os.environ.get("FORK", "0"))
PREF = int(os.environ.get("PREF", "0"))
PX = int(os.environ.get("PX", "4"))
DREAD = int(os.environ.get("DREAD", "5"))
KVNT = os.environ.get("KVNT", " nt")
K2NS = int(os.environ.get("K2NS", "7"))
K2NT = " nt" if os.environ.get("K2NT", "0") == "1" else ""

HEADER = f"""; Kernarg layout for this problem (64 bytes, ptrs only, base s[0:1]):
; @launch kernel=attn_kernel grid=(256,1,1) block=(256,1,1) lds=163840
; @launch kernel=oproj_kernel grid=(256,1,1) block=(256,1,1) lds={K2NS*16384}
.amdgcn_target "amdgcn-amd-amdhsa--gfx950"
.macro M d, a, b, c
v_mfma_f32_16x16x32_bf16 \\d, \\a, \\b, \\c
.endm
.macro T d, a, o
ds_read_b64_tr_b16 \\d, \\a offset:\\o
.endm
.macro R d, a, o
ds_read_b128 \\d, \\a offset:\\o
.endm
.macro WL n
s_waitcnt lgkmcnt(\\n)
.endm
.macro CV d, a, b
v_cvt_pk_bf16_f32 \\d, \\a, \\b
.endm
.text
"""


class Em:
    def __init__(self):
        self.lines = []
        self.vm = []
        self.lg = []
        self.n = 0

    def e(self, s):
        self.lines.append(s)
        self.n += 1

    def raw(self, s):
        self.lines.append(s)

    def vmem(self, s, tag):
        self.e(s)
        self.vm.append(tag)

    def ds(self, s, tag):
        self.e(s)
        self.lg.append(tag)

    def wait_vm(self, tag):
        idx = max([i for i, t in enumerate(self.vm) if t == tag], default=-1)
        if idx < 0:
            return
        n = min(len(self.vm) - 1 - idx, 63)
        self.e(f"s_waitcnt vmcnt({n})")
        self.vm = self.vm[len(self.vm) - n:] if n > 0 else []

    def wait_lg(self, tag):
        idx = max([i for i, t in enumerate(self.lg) if t == tag], default=-1)
        if idx < 0:
            return
        n = min(len(self.lg) - 1 - idx, 15)
        self.e(f"WL {n}")
        self.lg = self.lg[len(self.lg) - n:] if n > 0 else []

    def nop(self, states):
        while states > 0:
            k = min(states, 16)
            self.e(f"s_nop {k-1}")
            self.n += k - 1
            states -= k


def vr(b, n=1):
    return f"v{b}" if n == 1 else f"v[{b}:{b+n-1}]"


def ar(b, n=1):
    return f"a{b}" if n == 1 else f"a[{b}:{b+n-1}]"


S_X, S_K, S_V, S_W, S_O = 8, 12, 16, 20, 24
S_WAVE = 28
S_C = 29
S_XQ = 32
S_OQ = 36
S_T = 40
S_T2 = 41
V_LANE = 1
V_ADDR = 2
V_D = 10
V_XO = 14
V_ST = 15
V_SACC = 16
V_M = 40
V_L = 43
V_MC = 46
V_T = 50
V_BIG = 64
A_FR = 192


V_Q8 = 192
V_S8 = 208
V_P8 = 212
V_ONE = 220
V_SC = 224
V_M8, V_MC8 = 225, 226
V_SCW = 227
V_T2 = 228
V_QX = 244
V_AD = 248
V_A16 = 16
V_SACC2 = 32
V_EP = 228
A_O8 = 128
A_L8 = 144
SCR = 9 * 16384
S_WL, S_KL = 54, 55
S_XW = 56
S_OWN = 66


def k1(em):
    e = em.e
    global V_M, V_L, V_MC
    V_M, V_L, V_MC = 2, 4, 6
    V_WD, V_KD = 8, 9
    em.raw(".globl attn_kernel\n.p2align 8\n.type attn_kernel,@function\nattn_kernel:")
    e("s_cmp_ge_u32 s2, 256")
    e("s_cbranch_scc1 L_k1_exit")
    if PROF:
        e("s_memtime s[62:63]")
        e("s_memrealtime s[64:65]")
    e("s_load_dwordx8 s[44:51], s[0:1], 0")
    e("s_load_dwordx2 s[52:53], s[0:1], 56")
    if PREF:
        e("s_getpc_b64 s[76:77]")
        e("s_lshr_b32 s4, s2, 3")
        e("s_cmp_ge_u32 s4, 17")
        e("s_cbranch_scc1 L_nopref")
        e("s_lshl_b32 s4, s4, 12")
        e("v_lshlrev_b32 v2, 4, v0")
        e("v_add_u32 v2, s4, v2")
        e("global_load_dwordx4 v[4:7], v2, s[76:77]")
        em.raw("L_nopref:")
    e("s_and_b32 s3, s2, 7")
    e("s_lshr_b32 s4, s2, 3")
    e("s_and_b32 s5, s4, 15")
    e("s_lshl_b32 s6, s3, 1")
    e("s_lshr_b32 s7, s4, 4")
    e("s_add_u32 s6, s6, s7")
    e(f"v_and_b32 v{V_LANE}, 63, v0")
    e("v_lshrrev_b32 v2, 6, v0")
    e("s_nop 0")
    e(f"v_readfirstlane_b32 s{S_WAVE}, v2")
    e(f"s_mov_b32 s{S_C}, {hex(struct.unpack('<I', struct.pack('<f', math.log2(math.e)/16.0))[0])}")
    e("s_waitcnt lgkmcnt(0)")
    e("s_mul_i32 s7, s6, 129024")
    e(f"s_add_u32 s{S_X}, s44, s7")
    e(f"s_addc_u32 s{S_X+1}, s45, 0")
    e(f"s_mov_b32 s{S_X+2}, 129024")
    e(f"s_mov_b32 s{S_X+3}, 0x20000")
    e("s_lshl_b32 s7, s6, 4")
    e("s_add_u32 s7, s7, s5")
    e("s_lshl_b32 s7, s7, 18")
    e(f"s_add_u32 s{S_K}, s46, s7")
    e(f"s_addc_u32 s{S_K+1}, s47, 0")
    e(f"s_mov_b32 s{S_K+2}, 262144")
    e(f"s_mov_b32 s{S_K+3}, 0x20000")
    e(f"s_add_u32 s{S_V}, s48, s7")
    e(f"s_addc_u32 s{S_V+1}, s49, 0")
    e(f"s_mov_b32 s{S_V+2}, 262144")
    e(f"s_mov_b32 s{S_V+3}, 0x20000")
    e("s_lshl_b32 s7, s5, 9")
    e(f"s_add_u32 s{S_W}, s50, s7")
    e(f"s_addc_u32 s{S_W+1}, s51, 0")
    e(f"s_mov_b32 s{S_W+2}, {447*8192+512}")
    e(f"s_mov_b32 s{S_W+3}, 0x20000")
    e(f"s_mov_b32 s{S_O}, s52")
    e(f"s_mov_b32 s{S_O+1}, s53")
    e(f"s_mov_b32 s{S_O+2}, {144*128*1024}")
    e(f"s_mov_b32 s{S_O+3}, 0x20000")
    e(f"s_lshl_b32 s7, s{S_WAVE}, 1")
    for qt in range(3):
        if qt < 2:
            e(f"s_add_u32 s42, s7, {qt}")
        else:
            e("s_mov_b32 s42, 8")
        e(f"s_mul_i32 s{S_XQ+qt}, s42, 14336")
        e("s_mul_i32 s43, s6, 9")
        e("s_add_u32 s43, s43, s42")
        e("s_lshl_b32 s43, s43, 7")
        e("s_lshl_b32 s42, s5, 3")
        e("s_add_u32 s43, s43, s42")
        e(f"s_lshl_b32 s{S_OQ+qt}, s43, 10")
    for a in range(4):
        e(f"s_xor_b32 s42, s{S_WAVE}, {a}")
        e(f"s_lshl_b32 s{S_XW+a}, s42, 11")
    for k in range(4):
        e(f"s_cmp_eq_u32 s{S_WAVE}, {k}")
        e(f"s_cselect_b64 s[{S_OWN+2*k}:{S_OWN+2*k+1}], -1, 0")
    t0, t1, t2, t3 = V_T, V_T + 1, V_T + 2, V_T + 3
    e(f"v_and_b32 v{t0}, 15, v{V_LANE}")
    e(f"v_mul_u32_u24 v{t0}, 896, v{t0}")
    e(f"v_lshrrev_b32 v{t1}, 4, v{V_LANE}")
    e(f"v_lshl_add_u32 v{V_XO}, v{t1}, 4, v{t0}")
    e(f"v_lshlrev_b32 v{V_ST}, 4, v{V_LANE}")
    e(f"s_lshl_b32 s42, s{S_WAVE}, 1")
    e(f"s_lshl_b32 s{S_KL}, s{S_WAVE}, 10")
    e(f"v_lshrrev_b32 v{t0}, 5, v{V_LANE}")
    e(f"v_add_u32 v{t0}, s42, v{t0}")
    e(f"v_and_b32 v{t1}, 31, v{V_LANE}")
    e(f"v_lshlrev_b32 v{t2}, 1, v{t0}")
    e(f"v_xor_b32 v{t2}, v{t1}, v{t2}")
    e(f"v_lshlrev_b32 v{t2}, 4, v{t2}")
    e(f"v_lshl_add_u32 v{V_KD}, v{t0}, 9, v{t2}")
    e(f"s_and_b32 s42, s{S_WAVE}, 1")
    e("s_lshl_b32 s42, s42, 1")
    e(f"s_lshr_b32 s43, s{S_WAVE}, 1")
    e("s_lshl_b32 s43, s43, 3")
    e("s_add_u32 s42, s42, s43")
    e(f"s_lshl_b32 s{S_WL}, s42, 9")
    e(f"v_lshrrev_b32 v{t0}, 5, v{V_LANE}")
    e(f"v_add_u32 v{t0}, s42, v{t0}")
    e(f"v_and_b32 v{t2}, 3, v{t0}")
    e(f"v_bfe_u32 v{t3}, v{t0}, 3, 1")
    e(f"v_lshl_add_u32 v{t2}, v{t3}, 2, v{t2}")
    e(f"v_lshlrev_b32 v{t2}, 1, v{t2}")
    e(f"v_xor_b32 v{t2}, v{t1}, v{t2}")
    e(f"v_lshlrev_b32 v{t2}, 4, v{t2}")
    e(f"v_lshl_add_u32 v{V_WD}, v{t0}, 13, v{t2}")
    e(f"v_lshlrev_b32 v{V_SC}, 4, v{V_LANE}")
    e(f"v_add_u32 v{V_SC}, {SCR}, v{V_SC}")
    for a in range(4):
        e(f"v_add_u32 v{V_QX+a}, s{S_XW+a}, v{V_SC}")
    for j in range(4):
        e(f"v_mov_b32 v{V_ONE+j}, 0x3f803f80")

    NT = 2
    chunks = [("W", i) for i in range(14)] + [("K", i) for i in range(16)] + [("V", i) for i in range(16)]
    nsteps = len(chunks)
    slot_of = {}
    init = [("W", i) for i in range(NW0)] + [("K", i) for i in range(NK0)]
    for s_, c in enumerate(init):
        slot_of[c] = s_
    later = [c for c in chunks if c not in slot_of]
    dq = []

    def emit_dma(item):
        sl, lds, goff, vo, srd, nt, tag = item
        e(f"s_add_u32 m0, s{sl}, {lds}")
        e(f"s_mov_b32 s{S_T}, {goff}")
        em.vmem(f"buffer_load_dwordx4 v{vo}, s[{srd}:{srd+3}], s{S_T} offen{nt} lds", tag)

    def issue(chunk, defer=False):
        kind, ci = chunk
        slot = slot_of[chunk]
        tag = f"{kind}{ci}"
        its = []
        if kind == "W":
            for jr in (0, 4, 16, 20):
                its.append((S_WL, slot * 16384 + jr * 512, (ci * 32 + jr) * 8192, V_WD, S_W, "", tag))
        else:
            srd = S_K if kind == "K" else S_V
            for jj in range(4):
                its.append((S_KL, slot * 16384 + jj * 4096, ci * 16384 + jj * 4096, V_KD, srd, KVNT, tag))
        for it in its:
            if defer:
                dq.append(it)
            else:
                emit_dma(it)

    def xload(c):
        if c < 14:
            for qt in range(3):
                em.vmem(f"buffer_load_dwordx4 {ar((qt*14+c)*4,4)}, v{V_XO}, s[{S_X}:{S_X+3}], s{S_XQ+qt} offen offset:{c*64}", f"x{c}")

    for c in range(max(NW0, PX)):
        if c < NW0:
            issue(("W", c))
        if c < PX:
            xload(c)
    issue(("K", 0))
    st = {"base": 0}

    def set_addr(kind):
        e(f"v_lshrrev_b32 v{t0}, 4, v{V_LANE}")
        e(f"v_bfe_u32 v{t1}, v{V_LANE}, 2, 2")
        e(f"v_and_b32 v{t2}, 3, v{V_LANE}")
        if kind == "W":
            e(f"v_lshl_add_u32 v{t3}, v{t0}, 3, v{t1}")
            e(f"v_lshlrev_b32 v{t3}, 9, v{t3}")
            e(f"v_and_b32 v{t0}, 1, v{t0}")
            e(f"v_lshl_add_u32 v{t0}, v{t0}, 2, v{t1}")
            e(f"v_lshl_add_u32 v{t3}, v{t0}, 5, v{t3}")
            e(f"v_lshl_add_u32 v{t3}, v{t2}, 3, v{t3}")
            nb, sh = 16, 5
        elif kind == "V":
            e(f"v_lshl_add_u32 v{t0}, v{t0}, 2, v{t1}")
            e(f"v_lshlrev_b32 v{t3}, 9, v{t0}")
            e(f"v_and_b32 v{t0}, 7, v{t0}")
            e(f"v_lshl_add_u32 v{t3}, v{t0}, 5, v{t3}")
            e(f"v_lshl_add_u32 v{t3}, v{t2}, 3, v{t3}")
            nb, sh = 16, 5
        else:
            e(f"v_and_b32 v{t1}, 15, v{V_LANE}")
            e(f"v_lshlrev_b32 v{t3}, 9, v{t1}")
            e(f"v_and_b32 v{t1}, 7, v{t1}")
            e(f"v_lshlrev_b32 v{t1}, 1, v{t1}")
            e(f"v_xor_b32 v{t1}, v{t0}, v{t1}")
            e(f"v_lshl_add_u32 v{t3}, v{t1}, 4, v{t3}")
            nb, sh = 8, 6
        e(f"s_lshl_b32 s42, s{S_WAVE}, 7")
        e(f"v_xor_b32 v{t3}, s42, v{t3}")
        for b in range(nb):
            e(f"v_xor_b32 v{V_A16+b}, {b << sh}, v{t3}")
        st["base"] = 0
        st["nb"] = nb

    def set_base(grp):
        if grp != st["base"]:
            d = (grp - st["base"]) * 65536
            for b in range(st["nb"]):
                e(f"v_add_u32 v{V_A16+b}, {d & 0xffffffff}, v{V_A16+b}")
            st["base"] = grp

    def frag_reg(G):
        return A_FR + (G % 16) * 4

    def reads(G):
        i, f = divmod(G, 16)
        kind, ci = chunks[i]
        slot = slot_of[chunks[i]]
        sb = (slot & 3) * 16384
        fr = frag_reg(G)
        tag = f"F{G}"
        if kind == "K":
            kt, ks = f >> 3, f & 7
            em.ds(f"R {ar(fr,4)}, v{V_A16+ks}, {sb + kt*8192}", tag)
        else:
            second = 2048 if kind == "W" else 8192
            em.ds(f"T {ar(fr,2)}, v{V_A16+f}, {sb}", tag)
            em.ds(f"T {ar(fr+2,2)}, v{V_A16+f}, {sb + second}", tag)

    def big(qt, idx):
        return V_BIG + (qt * 16 + idx) * 4

    def sacc(kt, qt):
        return V_SACC2 + (kt * 2 + qt) * 4

    def QF(qt, s):
        return (qt * 14 + s) * 4

    def s8reg(ci):
        return V_Q8 + (ci >> 1) * 2

    q = []
    lab = [0]

    def push(instrs, after=None):
        for k, s in enumerate(instrs):
            q.append((after if k == 0 else None, s))

    def drain(cnt):
        k = 0
        while q and k < cnt:
            rdy, s = q[0]
            if rdy is not None and em.n < rdy:
                return
            q.pop(0)
            if isinstance(s, tuple):
                if s[0] == "nop":
                    em.nop(s[1])
                elif s[0] == "st":
                    em.vmem(s[1], "st")
                elif s[0] == "ds":
                    em.ds(s[1], s[2])
                elif s[0] == "blk":
                    for x in s[1]:
                        if x.endswith(":"):
                            em.raw(x)
                        else:
                            e(x)
            else:
                e(s)
            k += 1

    def drain_all():
        while q:
            rdy, s = q[0]
            if rdy is not None and em.n < rdy:
                em.nop(rdy - em.n)
            drain(1)

    def s_items(ci, kt):
        out = []
        for qt in range(NT):
            a, m, dst = sacc(kt, qt), V_M + qt, big(qt, ci) + 2 * kt
            if ci == 0 and kt == 0:
                out.append(f"v_max_f32 v{m}, v{a}, v{a+1}")
            else:
                out.append(f"v_max3_f32 v{m}, v{a}, v{a+1}, v{m}")
            out.append(f"CV v{dst}, v{a}, v{a+1}")
            out.append(f"v_max3_f32 v{m}, v{a+2}, v{a+3}, v{m}")
            out.append(f"CV v{dst+1}, v{a+2}, v{a+3}")
        k = 2 * (ci & 1) + kt
        lab[0] += 1
        L = f"Ls8_{lab[0]}"
        a, m, dst = V_S8, V_M8, s8reg(ci)
        blk = [f"s_mov_b64 vcc, s[{S_OWN+2*k}:{S_OWN+2*k+1}]", f"s_cbranch_vccz {L}",
               f"v_max3_f32 v{m}, v{a}, v{a+1}, v{m}", f"CV v{dst}, v{a}, v{a+1}",
               f"v_max3_f32 v{m}, v{a+2}, v{a+3}, v{m}", f"CV v{dst+1}, v{a+2}, v{a+3}", f"{L}:"]
        out.append(("blk", blk))
        return out

    def qconv_items(s):
        out = []
        tl = [(V_T + qt * 4, big(qt, 2 * s), big(qt, 2 * s + 1), qt) for qt in range(NT)]
        if s < 2:
            tl.append((V_T + 8, V_Q8 + (2 * s) * 4, V_Q8 + (2 * s + 1) * 4, 8))
        for t, p0, p1, qt in tl:
            out += [f"CV v{t}, v{p0}, v{p0+1}", f"CV v{t+1}, v{p0+2}, v{p0+3}",
                    f"CV v{t+2}, v{p1}, v{p1+1}", f"CV v{t+3}, v{p1+2}, v{p1+3}"]
        out.append(("nop", 2))
        for t, *_ in tl:
            out += [f"v_permlane32_swap_b32 v{t}, v{t+2}", f"v_permlane32_swap_b32 v{t+1}, v{t+3}"]
        out.append(("nop", 2))
        for t, *_ in tl:
            out += [f"v_permlane16_swap_b32 v{t}, v{t+2}", f"v_permlane16_swap_b32 v{t+1}, v{t+3}"]
        out.append(("nop", 1))
        for t, p0, p1, qt in tl:
            if qt == 8:
                out.append(("ds", f"ds_write_b128 v{V_QX}, v[{t}:{t+3}] offset:{s*1024}", "q8w"))
            else:
                for j in range(4):
                    out.append(f"v_accvgpr_write_b32 a{QF(qt, s)+j}, v{t+j}")
        return out

    def xreduce(op, regs):
        out = []
        for sw in ("32", "16"):
            for k, r in enumerate(regs):
                out.append(f"v_mov_b32 v{V_T+k}, v{r}")
            out.append(("nop", 2))
            for k, r in enumerate(regs):
                out.append(f"v_permlane{sw}_swap_b32 v{V_T+k}, v{r}")
            out.append(("nop", 1))
            for k, r in enumerate(regs):
                out.append(f"v_{op}_f32 v{r}, v{r}, v{V_T+k}")
        return out

    def p_group(regs):
        n = len(regs)
        T = [(V_T2 + 2 * k, V_T2 + 2 * k + 1) for k in range(n)]
        o = []
        for (R, mc, l), (ta, tb) in zip(regs, T):
            o += [f"v_lshlrev_b32 v{ta}, 16, v{R}", f"v_and_b32 v{tb}, 0xffff0000, v{R}"]
        for (R, mc, l), (ta, tb) in zip(regs, T):
            o += [f"v_fma_f32 v{ta}, v{ta}, s{S_C}, -v{mc}", f"v_fma_f32 v{tb}, v{tb}, s{S_C}, -v{mc}"]
        for (R, mc, l), (ta, tb) in zip(regs, T):
            o += [f"v_exp_f32 v{ta}, v{ta}", f"v_exp_f32 v{tb}, v{tb}"]
        for which in (0, 1):
            for (R, mc, l), tt in zip(regs, T):
                if l is not None:
                    o.append(f"v_add_f32 v{l}, v{l}, v{tt[which]}")
        for (R, mc, l), (ta, tb) in zip(regs, T):
            o.append(f"CV v{R}, v{ta}, v{tb}")
        return o

    def p_items(ci):
        regs = [(big(qt, ci) + j, V_MC + qt, V_L + qt) for j in range(4) for qt in range(NT)]
        return p_group(regs)

    epi_k = [0]

    def epi_block(areg, lreg, soff, sp):
        out = []
        tb = V_EP + (epi_k[0] % 2) * 12
        epi_k[0] += 1
        for j in range(8):
            out.append(f"v_accvgpr_read_b32 v{tb+j}, a{areg+j}")
        for j in range(8):
            out.append(f"v_mul_f32 v{tb+j}, v{tb+j}, v{lreg}")
        for j in range(4):
            out.append(f"CV v{tb+8+j}, v{tb+2*j}, v{tb+2*j+1}")
        out.append(f"s_add_u32 s{S_T2}, s{soff}, s{S_XW + (sp>>1)}")
        out.append(("st", f"buffer_store_dwordx4 v[{tb+8}:{tb+11}], v{V_ST}, s[{S_O}:{S_O+3}], s{S_T2} offen offset:{(sp&1)*1024}"))
        return out

    def epi_items(s):
        out = []
        for qt in range(NT):
            out += epi_block((qt * 16 + 2 * s) * 4, V_L + qt, S_OQ + qt, s)
        return out

    def transition_q8():
        drain_all()
        e(f"v_mov_b32 v{V_M8}, 0xff800000")
        em.wait_lg("q8w")
        e("s_barrier")
        for s in range(8):
            em.ds(f"R {ar(QF(2, s),4)}, v{V_QX + (s>>1)}, {(s&1)*1024}", "q8r")
        em.nop(2)

    def transition_sm():
        drain_all()
        push(xreduce("max", [V_M, V_M + 1, V_M8]))
        drain_all()
        e(f"v_and_b32 v{t0}, 15, v{V_LANE}")
        e(f"v_lshlrev_b32 v{t0}, 2, v{t0}")
        e(f"v_add_u32 v{t0}, {SCR}, v{t0}")
        e(f"s_lshl_b32 s42, s{S_WAVE}, 6")
        e(f"v_add_u32 v{t1}, s42, v{t0}")
        em.ds(f"ds_write_b32 v{t1}, v{V_M8}", "m8w")
        for qt in range(NT):
            e(f"v_mul_f32 v{V_MC+qt}, s{S_C}, v{V_M+qt}")
            e(f"v_mov_b32 v{V_L+qt}, 0")
        e(f"s_lshr_b32 s42, s{S_WAVE}, 1")
        e("s_lshl_b32 s42, s42, 10")
        e(f"s_and_b32 s43, s{S_WAVE}, 1")
        e("s_lshl_b32 s43, s43, 3")
        e("s_add_u32 s42, s42, s43")
        e(f"v_add_u32 v{V_SCW}, s42, v{V_SC}")
        em.wait_lg("m8w")
        e("s_barrier")
        em.ds(f"ds_read2_b32 v[{t2}:{t3}], v{t0} offset0:0 offset1:16", "m8r")
        em.ds(f"ds_read2_b32 v[{t3+1}:{t3+2}], v{t0} offset0:32 offset1:48", "m8r")
        for s in p_items(0):
            e(s)
        em.wait_lg("m8r")
        e("s_barrier")
        e(f"v_max3_f32 v{V_M8}, v{t2}, v{t3}, v{t3+1}")
        e(f"v_max_f32 v{V_M8}, v{V_M8}, v{t3+2}")
        e(f"v_mul_f32 v{V_MC8}, s{S_C}, v{V_M8}")
        for h in range(0, 8, 4):
            regs = [(V_Q8 + 2 * j + k, V_MC8, None) for j in range(h, h + 4) for k in range(2)]
            for s in p_group(regs):
                e(s)
        for j in range(8):
            em.ds(f"ds_write_b64 v{V_SCW}, v[{V_Q8+2*j}:{V_Q8+2*j+1}] offset:{j*2048}", "p8w")
        em.wait_lg("p8w")
        e("s_barrier")
        em.ds(f"R {vr(V_P8,4)}, v{V_SC}, 0", "P8_0")
        em.nop(2)

    def mfmas(G):
        i, f = divmod(G, 16)
        kind, ci = chunks[i]
        fr = frag_reg(G)
        if kind == "V" and ci == 0 and f == 0:
            transition_sm()
        if kind == "W" and f == 0:
            em.wait_vm(f"x{ci}")
        if kind == "V" and f == 0 and ci > 0:
            drain_all()
            em.nop(2)
        em.wait_lg(f"F{G}")
        per = {"W": 3, "K": 2, "V": 3}[kind]
        for qt in range(NT):
            if kind == "W":
                d = vr(big(qt, f), 4)
                c = "0" if ci == 0 else d
                e(f"M {d}, {ar(fr,4)}, {ar((qt*14+ci)*4,4)}, {c}")
            elif kind == "K":
                kt, ks = f >> 3, f & 7
                if ks == 0:
                    assert not any(isinstance(x[1], str) and f"v{sacc(kt,qt)}," in x[1] for x in q), "pending S items"
                d = vr(sacc(kt, qt), 4)
                c = "0" if ks == 0 else d
                e(f"M {d}, {ar(fr,4)}, {ar(QF(qt,ks),4)}, {c}")
            else:
                d = ar((qt * 16 + f) * 4, 4)
                c = "0" if ci == 0 else d
                e(f"M {d}, {ar(fr,4)}, {vr(big(qt,ci),4)}, {c}")
            drain(per)
        if kind == "W" and f < 4:
            d = vr(V_Q8 + f * 4, 4)
            c = "0" if ci == 0 else d
            e(f"M {d}, {ar(fr,4)}, {ar((2*14+ci)*4,4)}, {c}")
            drain(per)
        elif kind == "K":
            kt, ks = f >> 3, f & 7
            if ks == 0:
                while any(isinstance(x[1], tuple) and x[1][0] == "blk" for x in q):
                    rdy, _ = q[0]
                    if rdy is not None and em.n < rdy:
                        em.nop(rdy - em.n)
                    drain(1)
            d = vr(V_S8, 4)
            c = "0" if ks == 0 else d
            if not FORK:
                k = 2 * (ci & 1) + kt
                lab[0] += 1
                L = f"Lk8_{lab[0]}"
                e(f"s_mov_b64 vcc, s[{S_OWN+2*k}:{S_OWN+2*k+1}]")
                e(f"s_cbranch_vccz {L}")
                e(f"M {d}, {ar(fr,4)}, {ar(QF(2,ks),4)}, {c}")
                em.raw(f"{L}:")
            elif st.get("extra"):
                e(f"M {d}, {ar(fr,4)}, {ar(QF(2,ks),4)}, {c}")
                em.n -= 1
        elif kind == "V":
            p8 = V_P8 + (ci & 1) * 4
            if f == 0 and ci + 1 < 16:
                em.ds(f"R {vr(V_P8 + ((ci+1)&1)*4, 4)}, v{V_SC}, {(ci+1)*1024}", f"P8_{ci+1}")
            if f < 4:
                em.wait_lg(f"P8_{ci}")
                d = ar(A_O8 + f * 4, 4)
                c = "0" if ci == 0 else d
                e(f"M {d}, {ar(fr,4)}, {vr(p8,4)}, {c}")
                drain(per)
                if f == 3:
                    d = ar(A_L8, 4)
                    c = "0" if ci == 0 else d
                    e(f"M {d}, {vr(V_ONE,4)}, {vr(p8,4)}, {c}")
                    drain(per)
        if kind == "W" and ci == 13 and (f & 1):
            push(qconv_items(f >> 1), after=em.n + 9)
        if kind == "K" and (f & 7) == 7:
            push(s_items(ci, f >> 3), after=em.n + 13)
        if kind == "V":
            if f == 0 and ci + 1 < 16:
                push(p_items(ci + 1))
            if ci == 15:
                if f == 0:
                    push(xreduce("add", [V_L, V_L + 1]))
                    push([f"v_rcp_f32 v{V_L+qt}, v{V_L+qt}" for qt in range(NT)])
                    push([("nop", 1)])
                if f == 5:
                    push([f"v_accvgpr_read_b32 v{V_M8}, a{A_L8}", f"v_rcp_f32 v{V_M8}, v{V_M8}", ("nop", 1)], after=em.n + 9)
                    for k in range(2):
                        push(epi_block(A_O8 + k * 8, V_M8, S_OQ + 2, k))
                if f & 1:
                    push(epi_items(f >> 1), after=em.n + 9)

    total = nsteps * 16
    st["li"] = 0

    def body(G):
        if G < total:
            i, f = divmod(G, 16)
            if f == 0:
                kind, ci = chunks[i]
                em.wait_vm(f"{kind}{ci}")
                e("s_barrier")
                if PROF:
                    e("s_memtime s[60:61]")
                    e("s_waitcnt lgkmcnt(0)")
                    em.lg = []
                    e(f"v_writelane_b32 v49, s60, {i}")
                while dq:
                    emit_dma(dq.pop(0))
                if i >= 2 and st["li"] < len(later):
                    c = later[st["li"]]
                    st["li"] += 1
                    slot_of[c] = slot_of[chunks[i - 2]]
                    issue(c, True)
                xload(i + PX)
                if i + 1 < NK0:
                    issue(("K", i + 1), True)
                if i == 0 or chunks[i - 1][0] != kind:
                    drain_all()
                    set_addr(kind)
                set_base(slot_of[chunks[i]] >> 2)
            reads(G)
        m = G - DREAD
        if m >= 0:
            mfmas(m)
        if dq:
            emit_dma(dq.pop(0))

    import copy
    G = 0
    while G < total + DREAD:
        m = G - DREAD
        if not FORK and m == 14 * 16:
            transition_q8()
            em.wait_lg("q8r")
        if FORK and m >= 0 and chunks[m // 16][0] == "K" and (m & 7) == 0:
            ci, kt = chunks[m // 16][1], (m >> 3) & 1
            k = 2 * (ci & 1) + kt
            if ci == 0 and kt == 0:
                transition_q8()
                em.wait_lg("q8r")
            while any(isinstance(x[1], tuple) and x[1][0] == "blk" for x in q):
                rdy, _ = q[0]
                if rdy is not None and em.n < rdy:
                    em.nop(rdy - em.n)
                drain(1)
            lab[0] += 1
            LP, LJ = f"Lkp_{lab[0]}", f"Lkj_{lab[0]}"
            e(f"s_mov_b64 vcc, s[{S_OWN+2*k}:{S_OWN+2*k+1}]")
            e(f"s_cbranch_vccz {LP}")
            snap = (list(em.vm), list(em.lg), em.n, list(q), list(dq), dict(st), dict(slot_of), lab[0], list(epi_k))
            st["extra"] = True
            for g2 in range(G, G + 8):
                body(g2)
            e(f"s_branch {LJ}")
            em.raw(f"{LP}:")
            nA = em.n
            em.vm, em.lg, em.n = list(snap[0]), list(snap[1]), snap[2]
            q[:] = snap[3]
            dq[:] = snap[4]
            st.clear(); st.update(snap[5])
            slot_of.clear(); slot_of.update(snap[6])
            lab[0] = snap[7] + 1000
            st["extra"] = False
            for g2 in range(G, G + 8):
                body(g2)
            em.raw(f"{LJ}:")
            G += 8
        else:
            body(G)
            G += 1
    drain_all()
    if PROF:
        e("s_memtime s[60:61]")
        e("s_waitcnt lgkmcnt(0)")
        e("v_writelane_b32 v49, s60, 46")
        e("s_waitcnt vmcnt(0)")
        e("s_memtime s[60:61]")
        e("s_waitcnt lgkmcnt(0)")
        e("v_writelane_b32 v49, s60, 47")
        e("v_writelane_b32 v49, s62, 48")
        e("s_memrealtime s[60:61]")
        e("s_waitcnt lgkmcnt(0)")
        e("v_writelane_b32 v49, s60, 49")
        e("v_writelane_b32 v49, s64, 50")
        e("s_lshl_b32 s60, s2, 2")
        e(f"s_add_u32 s60, s60, s{S_WAVE}")
        e("s_lshl_b32 s60, s60, 8")
        e(f"s_add_u32 s60, s60, {32<<20}")
        e(f"v_lshlrev_b32 v50, 2, v{V_LANE}")
        e(f"s_mov_b32 s{S_O+2}, {64<<20}")
        e(f"buffer_store_dword v49, v50, s[{S_O}:{S_O+3}], s60 offen")
    em.raw("L_k1_exit:")
    e("s_endpgm")


def k2(em):
    e = em.e
    NS = K2NS
    S_WO, S_OS, S_OUT = 8, 12, 16
    S_W, S_WG, S_WL, S_T, S_ST = 20, 21, 22, 23, 24
    V_L, V_DMA, V_B, V_O, V_A = 1, 2, 3, 4, 6
    V_ACC = 12
    V_FR = 32
    V_BF = 64
    em.raw(".globl oproj_kernel\n.p2align 8\n.type oproj_kernel,@function\noproj_kernel:")
    e("s_cmp_ge_u32 s2, 256")
    e("s_cbranch_scc1 L_k2_exit")
    if PROF:
        e("s_memtime s[62:63]")
    e("s_and_b32 s3, s2, 7")
    e("s_lshr_b32 s4, s2, 3")
    e("s_lshl_b32 s3, s3, 5")
    e("s_add_u32 s3, s3, s4")
    e("s_cmp_ge_u32 s3, 252")
    e("s_cbranch_scc1 L_k2_exit")
    e("s_load_dwordx4 s[44:47], s[0:1], 32")
    e("s_load_dwordx2 s[48:49], s[0:1], 56")
    e("s_mul_i32 s4, s3, 9363")
    e("s_lshr_b32 s4, s4, 16")
    e("s_mul_i32 s5, s4, 7")
    e("s_sub_u32 s5, s3, s5")
    e(f"v_and_b32 v{V_L}, 63, v0")
    e("v_lshrrev_b32 v2, 6, v0")
    e("s_nop 0")
    e(f"v_readfirstlane_b32 s{S_W}, v2")
    e("s_waitcnt lgkmcnt(0)")
    e("s_lshl_b32 s6, s5, 7")
    e(f"s_add_u32 s{S_WO}, s44, s6")
    e(f"s_addc_u32 s{S_WO+1}, s45, 0")
    e(f"s_sub_u32 s{S_WO+2}, {4096*896}, s6")
    e(f"s_mov_b32 s{S_WO+3}, 0x20000")
    e("s_lshl_b32 s7, s4, 2")
    e(f"s_add_u32 s7, s7, s{S_W}")
    e("s_lshl_b32 s25, s7, 17")
    e(f"s_add_u32 s{S_OS}, s48, s25")
    e(f"s_addc_u32 s{S_OS+1}, s49, 0")
    e(f"s_mov_b32 s{S_OS+2}, 131072")
    e(f"s_mov_b32 s{S_OS+3}, 0x20000")
    e(f"s_mov_b32 s{S_OUT}, s46")
    e(f"s_mov_b32 s{S_OUT+1}, s47")
    e(f"s_mov_b32 s{S_OUT+2}, {2304*896}")
    e(f"s_mov_b32 s{S_OUT+3}, 0x20000")
    e(f"s_mul_i32 s{S_ST}, s7, {16*896}")
    e(f"s_add_u32 s{S_ST}, s{S_ST}, s6")
    e(f"s_mul_i32 s{S_WG}, s{S_W}, {32*896}")
    e(f"s_lshl_b32 s{S_WL}, s{S_W}, 12")
    e(f"v_lshrrev_b32 v10, 3, v{V_L}")
    e("v_mul_u32_u24 v10, 896, v10")
    e(f"v_bfe_u32 v11, v{V_L}, 1, 2")
    e(f"v_lshrrev_b32 v12, 4, v{V_L}")
    e("v_xor_b32 v11, v11, v12")
    e("v_lshl_add_u32 v10, v11, 5, v10")
    e(f"v_and_b32 v11, 1, v{V_L}")
    e(f"v_lshl_add_u32 v{V_DMA}, v11, 4, v10")
    e(f"v_lshlrev_b32 v{V_B}, 4, v{V_L}")
    e(f"v_and_b32 v10, 15, v{V_L}")
    e("v_mul_u32_u24 v10, 896, v10")
    e(f"v_lshl_add_u32 v{V_O}, v12, 3, v10")
    e(f"v_bfe_u32 v10, v{V_L}, 2, 2")
    e("v_lshl_add_u32 v10, v12, 2, v10")
    e("v_bfe_u32 v11, v10, 1, 2")
    e("v_lshlrev_b32 v10, 7, v10")
    e("v_lshl_add_u32 v10, v11, 5, v10")
    e(f"v_and_b32 v11, 3, v{V_L}")
    e("v_lshl_add_u32 v10, v11, 3, v10")
    for u in range(4):
        e(f"v_xor_b32 v{V_A+u}, {u<<5}, v10")
    st = {"base": 0}

    def issue_ops(cc):
        slot = cc % NS
        tag = f"C{cc}"
        ops = []
        for jj in range(4):
            ops.append([f"s_add_u32 m0, s{S_WL}, {slot*16384 + jj*1024}",
                        f"s_add_u32 s{S_T}, s{S_WG}, {(cc*128 + jj*8)*896}",
                        (f"buffer_load_dwordx4 v{V_DMA}, s[{S_WO}:{S_WO+3}], s{S_T} offen lds", tag)])
            ops.append([f"s_mov_b32 s{S_T}, {cc*4096}",
                        (f"buffer_load_dwordx4 {vr(V_BF + slot*16 + jj*4, 4)}, v{V_B}, s[{S_OS}:{S_OS+3}], s{S_T} offen offset:{jj*1024}{K2NT}", tag)])
        return ops

    def emit_op(op):
        for x in op:
            if isinstance(x, tuple):
                em.vmem(x[0], x[1])
            else:
                e(x)

    def issue(cc):
        for op in issue_ops(cc):
            emit_op(op)

    pend = []
    for cc in range(NS):
        issue(cc)
    D = 4
    total = 32 * 16

    def reads(G):
        cc, f = divmod(G, 16)
        ss, u = f >> 2, f & 3
        slot = cc % NS
        if f == 0:
            grp = slot >> 2
            if grp != st["base"]:
                d = (grp - st["base"]) * 65536
                for b in range(4):
                    e(f"v_add_u32 v{V_A+b}, {d & 0xffffffff}, v{V_A+b}")
                st["base"] = grp
        off = (slot & 3) * 16384 + ss * 4096
        fr = V_FR + (G % 8) * 4
        em.ds(f"T {vr(fr,2)}, v{V_A+u}, {off}", f"F{G}")
        em.ds(f"T {vr(fr+2,2)}, v{V_A+u}, {off+2048}", f"F{G}")

    def mfma(G):
        cc, f = divmod(G, 16)
        ss, u = f >> 2, f & 3
        slot = cc % NS
        fr = V_FR + (G % 8) * 4
        em.wait_lg(f"F{G}")
        d = vr(V_ACC + u * 4, 4)
        c = "0" if (cc == 0 and ss == 0) else d
        e(f"M {d}, {vr(fr,4)}, {vr(V_BF + slot*16 + ss*4, 4)}, {c}")

    for G in range(total + D):
        if G < total:
            cc, f = divmod(G, 16)
            if f == 0:
                em.wait_vm(f"C{cc}")
                e("s_barrier")
                if PROF:
                    e("s_memtime s[60:61]")
                    e("s_waitcnt lgkmcnt(0)")
                    em.lg = []
                    e(f"v_writelane_b32 v5, s60, {cc}")
                if cc >= 2 and cc - 2 + NS < 32:
                    pend.extend(issue_ops(cc - 2 + NS))
            reads(G)
        if G - D >= 0:
            mfma(G - D)
        if pend and (G & 1):
            emit_op(pend.pop(0))
    em.nop(9)
    for u in range(4):
        a = V_ACC + u * 4
        e(f"CV v{28+ (u%2)*2}, v{a}, v{a+1}")
        e(f"CV v{29+ (u%2)*2}, v{a+2}, v{a+3}")
        e(f"buffer_store_dwordx2 v[{28+(u%2)*2}:{29+(u%2)*2}], v{V_O}, s[{S_OUT}:{S_OUT+3}], s{S_ST} offen offset:{u*32}")
    if PROF:
        e("s_waitcnt vmcnt(0)")
        e("s_memtime s[60:61]")
        e("s_waitcnt lgkmcnt(0)")
        e("v_writelane_b32 v5, s60, 47")
        e("v_writelane_b32 v5, s62, 48")
        e("s_lshl_b32 s60, s2, 2")
        e(f"s_add_u32 s60, s60, s{S_W}")
        e("s_lshl_b32 s60, s60, 8")
        e(f"s_add_u32 s60, s60, {33<<20}")
        e(f"v_lshlrev_b32 v10, 2, v{V_L}")
        e(f"s_mov_b32 s{S_OS}, s48")
        e(f"s_mov_b32 s{S_OS+1}, s49")
        e(f"s_mov_b32 s{S_OS+2}, {64<<20}")
        e(f"buffer_store_dword v5, v10, s[{S_OS}:{S_OS+3}], s60 offen")
    em.raw("L_k2_exit:")
    e("s_endpgm")


def kd(name, vgpr, acc):
    return f""".p2align 6
.amdhsa_kernel {name}
  .amdhsa_next_free_vgpr {vgpr}
  .amdhsa_next_free_sgpr 102
  .amdhsa_accum_offset {acc}
  .amdhsa_group_segment_fixed_size 0
  .amdhsa_kernarg_size 64
  .amdhsa_user_sgpr_count 2
  .amdhsa_user_sgpr_kernarg_segment_ptr 1
  .amdhsa_system_sgpr_workgroup_id_x 1
.end_amdhsa_kernel
"""


def main():
    em = Em()
    k1(em)
    em2 = Em()
    k2(em2)
    txt = HEADER + "\n".join(em.lines) + "\n" + "\n".join(em2.lines) + "\n"
    txt += '.section .rodata,"a"\n' + kd("attn_kernel", 512, 256) + kd("oproj_kernel", 256, 256)
    open(OUT, "w").write(txt)
    print("wrote", OUT, len(txt), "bytes")


main()
```

```python
import math, sys, os, struct

OUT = sys.argv[1] if len(sys.argv) > 1 else "standalone__mha_block_cached__near_ridge.s"
PROF = os.environ.get("PROF", "0") == "1"
NSLOT = 9
NW0 = int(os.environ.get("NW0", "4"))
NK0 = NSLOT - NW0
FORK = int(os.environ.get("FORK", "0"))
PREF = int(os.environ.get("PREF", "0"))
PX = int(os.environ.get("PX", "4"))
DREAD = int(os.environ.get("DREAD", "5"))
KVNT = os.environ.get("KVNT", " nt")
K2NS = int(os.environ.get("K2NS", "7"))
K2NT = " nt" if os.environ.get("K2NT", "0") == "1" else ""

HEADER = f"""; Kernarg layout for this problem (64 bytes, ptrs only, base s[0:1]):
; @launch kernel=attn_kernel grid=(256,1,1) block=(256,1,1) lds=163840
; @launch kernel=oproj_kernel grid=(256,1,1) block=(256,1,1) lds={K2NS*16384}
.amdgcn_target "amdgcn-amd-amdhsa--gfx950"
.macro M d, a, b, c
v_mfma_f32_16x16x32_bf16 \\d, \\a, \\b, \\c
.endm
.macro T d, a, o
ds_read_b64_tr_b16 \\d, \\a offset:\\o
.endm
.macro R d, a, o
ds_read_b128 \\d, \\a offset:\\o
.endm
.macro WL n
s_waitcnt lgkmcnt(\\n)
.endm
.macro CV d, a, b
v_cvt_pk_bf16_f32 \\d, \\a, \\b
.endm
.text
"""


class Em:
    def __init__(self):
        self.lines = []
        self.vm = []
        self.lg = []
        self.n = 0

    def e(self, s):
        self.lines.append(s)
        self.n += 1

    def raw(self, s):
        self.lines.append(s)

    def vmem(self, s, tag):
        self.e(s)
        self.vm.append(tag)

    def ds(self, s, tag):
        self.e(s)
        self.lg.append(tag)

    def wait_vm(self, tag):
        idx = max([i for i, t in enumerate(self.vm) if t == tag], default=-1)
        if idx < 0:
            return
        n = min(len(self.vm) - 1 - idx, 63)
        self.e(f"s_waitcnt vmcnt({n})")
        self.vm = self.vm[len(self.vm) - n:] if n > 0 else []

    def wait_lg(self, tag):
        idx = max([i for i, t in enumerate(self.lg) if t == tag], default=-1)
        if idx < 0:
            return
        n = min(len(self.lg) - 1 - idx, 15)
        self.e(f"WL {n}")
        self.lg = self.lg[len(self.lg) - n:] if n > 0 else []

    def nop(self, states):
        while states > 0:
            k = min(states, 16)
            self.e(f"s_nop {k-1}")
            self.n += k - 1
            states -= k


def vr(b, n=1):
    return f"v{b}" if n == 1 else f"v[{b}:{b+n-1}]"


def ar(b, n=1):
    return f"a{b}" if n == 1 else f"a[{b}:{b+n-1}]"


S_X, S_K, S_V, S_W, S_O = 8, 12, 16, 20, 24
S_WAVE = 28
S_C = 29
S_XQ = 32
S_OQ = 36
S_T = 40
S_T2 = 41
V_LANE = 1
V_ADDR = 2
V_D = 10
V_XO = 14
V_ST = 15
V_SACC = 16
V_M = 40
V_L = 43
V_MC = 46
V_T = 50
V_BIG = 64
A_FR = 192


V_Q8 = 192
V_S8 = 208
V_P8 = 212
V_ONE = 220
V_SC = 224
V_M8, V_MC8 = 225, 226
V_SCW = 227
V_T2 = 228
V_QX = 244
V_AD = 248
V_A16 = 16
V_SACC2 = 32
V_EP = 228
A_O8 = 128
A_L8 = 144
SCR = 9 * 16384
S_WL, S_KL = 54, 55
S_XW = 56
S_OWN = 66


def k1(em):
    e = em.e
    global V_M, V_L, V_MC
    V_M, V_L, V_MC = 2, 4, 6
    V_WD, V_KD = 8, 9
    em.raw(".globl attn_kernel\n.p2align 8\n.type attn_kernel,@function\nattn_kernel:")
    e("s_cmp_ge_u32 s2, 256")
    e("s_cbranch_scc1 L_k1_exit")
    if PROF:
        e("s_memtime s[62:63]")
        e("s_memrealtime s[64:65]")
    e("s_load_dwordx8 s[44:51], s[0:1], 0")
    e("s_load_dwordx2 s[52:53], s[0:1], 56")
    if PREF:
        e("s_getpc_b64 s[76:77]")
        e("s_lshr_b32 s4, s2, 3")
        e("s_cmp_ge_u32 s4, 17")
        e("s_cbranch_scc1 L_nopref")
        e("s_lshl_b32 s4, s4, 12")
        e("v_lshlrev_b32 v2, 4, v0")
        e("v_add_u32 v2, s4, v2")
        e("global_load_dwordx4 v[4:7], v2, s[76:77]")
        em.raw("L_nopref:")
    e("s_and_b32 s3, s2, 7")
    e("s_lshr_b32 s4, s2, 3")
    MAPH = int(os.environ.get("MAPH", "16"))
    lg = {4: 2, 8: 3, 16: 4}[MAPH]
    e(f"s_and_b32 s5, s3, {16 // MAPH - 1}")
    e(f"s_lshl_b32 s5, s5, {lg}")
    e(f"s_and_b32 s6, s4, {MAPH - 1}")
    e("s_add_u32 s5, s5, s6")
    e(f"s_lshr_b32 s6, s3, {4 - lg}")
    e(f"s_lshl_b32 s6, s6, {5 - lg}")
    e(f"s_lshr_b32 s7, s4, {lg}")
    e("s_add_u32 s6, s6, s7")
    e(f"v_and_b32 v{V_LANE}, 63, v0")
    e("v_lshrrev_b32 v2, 6, v0")
    e("s_nop 0")
    e(f"v_readfirstlane_b32 s{S_WAVE}, v2")
    e(f"s_mov_b32 s{S_C}, {hex(struct.unpack('<I', struct.pack('<f', math.log2(math.e)/16.0))[0])}")
    e("s_waitcnt lgkmcnt(0)")
    e("s_mul_i32 s7, s6, 129024")
    e(f"s_add_u32 s{S_X}, s44, s7")
    e(f"s_addc_u32 s{S_X+1}, s45, 0")
    e(f"s_mov_b32 s{S_X+2}, 129024")
    e(f"s_mov_b32 s{S_X+3}, 0x20000")
    e("s_lshl_b32 s7, s6, 4")
    e("s_add_u32 s7, s7, s5")
    e("s_lshl_b32 s7, s7, 18")
    e(f"s_add_u32 s{S_K}, s46, s7")
    e(f"s_addc_u32 s{S_K+1}, s47, 0")
    e(f"s_mov_b32 s{S_K+2}, 262144")
    e(f"s_mov_b32 s{S_K+3}, 0x20000")
    e(f"s_add_u32 s{S_V}, s48, s7")
    e(f"s_addc_u32 s{S_V+1}, s49, 0")
    e(f"s_mov_b32 s{S_V+2}, 262144")
    e(f"s_mov_b32 s{S_V+3}, 0x20000")
    e("s_lshl_b32 s7, s5, 9")
    e(f"s_add_u32 s{S_W}, s50, s7")
    e(f"s_addc_u32 s{S_W+1}, s51, 0")
    e(f"s_mov_b32 s{S_W+2}, {447*8192+512}")
    e(f"s_mov_b32 s{S_W+3}, 0x20000")
    e(f"s_mov_b32 s{S_O}, s52")
    e(f"s_mov_b32 s{S_O+1}, s53")
    e(f"s_mov_b32 s{S_O+2}, {144*128*1024}")
    e(f"s_mov_b32 s{S_O+3}, 0x20000")
    e(f"s_lshl_b32 s7, s{S_WAVE}, 1")
    for qt in range(3):
        if qt < 2:
            e(f"s_add_u32 s42, s7, {qt}")
        else:
            e("s_mov_b32 s42, 8")
        e(f"s_mul_i32 s{S_XQ+qt}, s42, 14336")
        e("s_mul_i32 s43, s6, 9")
        e("s_add_u32 s43, s43, s42")
        e("s_lshl_b32 s43, s43, 7")
        e("s_lshl_b32 s42, s5, 3")
        e("s_add_u32 s43, s43, s42")
        e(f"s_lshl_b32 s{S_OQ+qt}, s43, 10")
    for a in range(4):
        e(f"s_xor_b32 s42, s{S_WAVE}, {a}")
        e(f"s_lshl_b32 s{S_XW+a}, s42, 11")
    for k in range(4):
        e(f"s_cmp_eq_u32 s{S_WAVE}, {k}")
        e(f"s_cselect_b64 s[{S_OWN+2*k}:{S_OWN+2*k+1}], -1, 0")
    t0, t1, t2, t3 = V_T, V_T + 1, V_T + 2, V_T + 3
    e(f"v_and_b32 v{t0}, 15, v{V_LANE}")
    e(f"v_mul_u32_u24 v{t0}, 896, v{t0}")
    e(f"v_lshrrev_b32 v{t1}, 4, v{V_LANE}")
    e(f"v_lshl_add_u32 v{V_XO}, v{t1}, 4, v{t0}")
    e(f"v_lshlrev_b32 v{V_ST}, 4, v{V_LANE}")
    e(f"s_lshl_b32 s42, s{S_WAVE}, 1")
    e(f"s_lshl_b32 s{S_KL}, s{S_WAVE}, 10")
    e(f"v_lshrrev_b32 v{t0}, 5, v{V_LANE}")
    e(f"v_add_u32 v{t0}, s42, v{t0}")
    e(f"v_and_b32 v{t1}, 31, v{V_LANE}")
    e(f"v_lshlrev_b32 v{t2}, 1, v{t0}")
    e(f"v_xor_b32 v{t2}, v{t1}, v{t2}")
    e(f"v_lshlrev_b32 v{t2}, 4, v{t2}")
    e(f"v_lshl_add_u32 v{V_KD}, v{t0}, 9, v{t2}")
    e(f"s_and_b32 s42, s{S_WAVE}, 1")
    e("s_lshl_b32 s42, s42, 1")
    e(f"s_lshr_b32 s43, s{S_WAVE}, 1")
    e("s_lshl_b32 s43, s43, 3")
    e("s_add_u32 s42, s42, s43")
    e(f"s_lshl_b32 s{S_WL}, s42, 9")
    e(f"v_lshrrev_b32 v{t0}, 5, v{V_LANE}")
    e(f"v_add_u32 v{t0}, s42, v{t0}")
    e(f"v_and_b32 v{t2}, 3, v{t0}")
    e(f"v_bfe_u32 v{t3}, v{t0}, 3, 1")
    e(f"v_lshl_add_u32 v{t2}, v{t3}, 2, v{t2}")
    e(f"v_lshlrev_b32 v{t2}, 1, v{t2}")
    e(f"v_xor_b32 v{t2}, v{t1}, v{t2}")
    e(f"v_lshlrev_b32 v{t2}, 4, v{t2}")
    e(f"v_lshl_add_u32 v{V_WD}, v{t0}, 13, v{t2}")
    e(f"v_lshlrev_b32 v{V_SC}, 4, v{V_LANE}")
    e(f"v_add_u32 v{V_SC}, {SCR}, v{V_SC}")
    for a in range(4):
        e(f"v_add_u32 v{V_QX+a}, s{S_XW+a}, v{V_SC}")
    for j in range(4):
        e(f"v_mov_b32 v{V_ONE+j}, 0x3f803f80")

    NT = 2
    chunks = [("W", i) for i in range(14)] + [("K", i) for i in range(16)] + [("V", i) for i in range(16)]
    nsteps = len(chunks)
    slot_of = {}
    init = [("W", i) for i in range(NW0)] + [("K", i) for i in range(NK0)]
    for s_, c in enumerate(init):
        slot_of[c] = s_
    later = [c for c in chunks if c not in slot_of]
    dq = []

    def emit_dma(item):
        sl, lds, goff, vo, srd, nt, tag = item
        e(f"s_add_u32 m0, s{sl}, {lds}")
        e(f"s_mov_b32 s{S_T}, {goff}")
        em.vmem(f"buffer_load_dwordx4 v{vo}, s[{srd}:{srd+3}], s{S_T} offen{nt} lds", tag)

    def issue(chunk, defer=False):
        kind, ci = chunk
        slot = slot_of[chunk]
        tag = f"{kind}{ci}"
        its = []
        if kind == "W":
            for jr in (0, 4, 16, 20):
                its.append((S_WL, slot * 16384 + jr * 512, (ci * 32 + jr) * 8192, V_WD, S_W, "", tag))
        else:
            srd = S_K if kind == "K" else S_V
            for jj in range(4):
                its.append((S_KL, slot * 16384 + jj * 4096, ci * 16384 + jj * 4096, V_KD, srd, KVNT, tag))
        for it in its:
            if defer:
                dq.append(it)
            else:
                emit_dma(it)

    def xload(c):
        if c < 14:
            for qt in range(3):
                em.vmem(f"buffer_load_dwordx4 {ar((qt*14+c)*4,4)}, v{V_XO}, s[{S_X}:{S_X+3}], s{S_XQ+qt} offen offset:{c*64}", f"x{c}")

    for c in range(max(NW0, PX)):
        if c < NW0:
            issue(("W", c))
        if c < PX:
            xload(c)
    issue(("K", 0))
    st = {"base": 0}

    def set_addr(kind):
        e(f"v_lshrrev_b32 v{t0}, 4, v{V_LANE}")
        e(f"v_bfe_u32 v{t1}, v{V_LANE}, 2, 2")
        e(f"v_and_b32 v{t2}, 3, v{V_LANE}")
        if kind == "W":
            e(f"v_lshl_add_u32 v{t3}, v{t0}, 3, v{t1}")
            e(f"v_lshlrev_b32 v{t3}, 9, v{t3}")
            e(f"v_and_b32 v{t0}, 1, v{t0}")
            e(f"v_lshl_add_u32 v{t0}, v{t0}, 2, v{t1}")
            e(f"v_lshl_add_u32 v{t3}, v{t0}, 5, v{t3}")
            e(f"v_lshl_add_u32 v{t3}, v{t2}, 3, v{t3}")
            nb, sh = 16, 5
        elif kind == "V":
            e(f"v_lshl_add_u32 v{t0}, v{t0}, 2, v{t1}")
            e(f"v_lshlrev_b32 v{t3}, 9, v{t0}")
            e(f"v_and_b32 v{t0}, 7, v{t0}")
            e(f"v_lshl_add_u32 v{t3}, v{t0}, 5, v{t3}")
            e(f"v_lshl_add_u32 v{t3}, v{t2}, 3, v{t3}")
            nb, sh = 16, 5
        else:
            e(f"v_and_b32 v{t1}, 15, v{V_LANE}")
            e(f"v_lshlrev_b32 v{t3}, 9, v{t1}")
            e(f"v_and_b32 v{t1}, 7, v{t1}")
            e(f"v_lshlrev_b32 v{t1}, 1, v{t1}")
            e(f"v_xor_b32 v{t1}, v{t0}, v{t1}")
            e(f"v_lshl_add_u32 v{t3}, v{t1}, 4, v{t3}")
            nb, sh = 8, 6
        e(f"s_lshl_b32 s42, s{S_WAVE}, 7")
        e(f"v_xor_b32 v{t3}, s42, v{t3}")
        for b in range(nb):
            e(f"v_xor_b32 v{V_A16+b}, {b << sh}, v{t3}")
        st["base"] = 0
        st["nb"] = nb

    def set_base(grp):
        if grp != st["base"]:
            d = (grp - st["base"]) * 65536
            for b in range(st["nb"]):
                e(f"v_add_u32 v{V_A16+b}, {d & 0xffffffff}, v{V_A16+b}")
            st["base"] = grp

    def frag_reg(G):
        return A_FR + (G % 16) * 4

    def reads(G):
        i, f = divmod(G, 16)
        kind, ci = chunks[i]
        slot = slot_of[chunks[i]]
        sb = (slot & 3) * 16384
        fr = frag_reg(G)
        tag = f"F{G}"
        if kind == "K":
            kt, ks = f >> 3, f & 7
            em.ds(f"R {ar(fr,4)}, v{V_A16+ks}, {sb + kt*8192}", tag)
        else:
            second = 2048 if kind == "W" else 8192
            em.ds(f"T {ar(fr,2)}, v{V_A16+f}, {sb}", tag)
            em.ds(f"T {ar(fr+2,2)}, v{V_A16+f}, {sb + second}", tag)

    def big(qt, idx):
        return V_BIG + (qt * 16 + idx) * 4

    def sacc(kt, qt):
        return V_SACC2 + (kt * 2 + qt) * 4

    def QF(qt, s):
        return (qt * 14 + s) * 4

    def s8reg(ci):
        return V_Q8 + (ci >> 1) * 2

    q = []
    lab = [0]

    def push(instrs, after=None):
        for k, s in enumerate(instrs):
            q.append((after if k == 0 else None, s))

    def drain(cnt):
        k = 0
        while q and k < cnt:
            rdy, s = q[0]
            if rdy is not None and em.n < rdy:
                return
            q.pop(0)
            if isinstance(s, tuple):
                if s[0] == "nop":
                    em.nop(s[1])
                elif s[0] == "st":
                    em.vmem(s[1], "st")
                elif s[0] == "ds":
                    em.ds(s[1], s[2])
                elif s[0] == "blk":
                    for x in s[1]:
                        if x.endswith(":"):
                            em.raw(x)
                        else:
                            e(x)
            else:
                e(s)
            k += 1

    def drain_all():
        while q:
            rdy, s = q[0]
            if rdy is not None and em.n < rdy:
                em.nop(rdy - em.n)
            drain(1)

    def s_items(ci, kt):
        out = []
        for qt in range(NT):
            a, m, dst = sacc(kt, qt), V_M + qt, big(qt, ci) + 2 * kt
            if ci == 0 and kt == 0:
                out.append(f"v_max_f32 v{m}, v{a}, v{a+1}")
            else:
                out.append(f"v_max3_f32 v{m}, v{a}, v{a+1}, v{m}")
            out.append(f"CV v{dst}, v{a}, v{a+1}")
            out.append(f"v_max3_f32 v{m}, v{a+2}, v{a+3}, v{m}")
            out.append(f"CV v{dst+1}, v{a+2}, v{a+3}")
        k = 2 * (ci & 1) + kt
        lab[0] += 1
        L = f"Ls8_{lab[0]}"
        a, m, dst = V_S8, V_M8, s8reg(ci)
        blk = [f"s_mov_b64 vcc, s[{S_OWN+2*k}:{S_OWN+2*k+1}]", f"s_cbranch_vccz {L}",
               f"v_max3_f32 v{m}, v{a}, v{a+1}, v{m}", f"CV v{dst}, v{a}, v{a+1}",
               f"v_max3_f32 v{m}, v{a+2}, v{a+3}, v{m}", f"CV v{dst+1}, v{a+2}, v{a+3}", f"{L}:"]
        out.append(("blk", blk))
        return out

    def qconv_items(s):
        out = []
        tl = [(V_T + qt * 4, big(qt, 2 * s), big(qt, 2 * s + 1), qt) for qt in range(NT)]
        if s < 2:
            tl.append((V_T + 8, V_Q8 + (2 * s) * 4, V_Q8 + (2 * s + 1) * 4, 8))
        for t, p0, p1, qt in tl:
            out += [f"CV v{t}, v{p0}, v{p0+1}", f"CV v{t+1}, v{p0+2}, v{p0+3}",
                    f"CV v{t+2}, v{p1}, v{p1+1}", f"CV v{t+3}, v{p1+2}, v{p1+3}"]
        out.append(("nop", 2))
        for t, *_ in tl:
            out += [f"v_permlane32_swap_b32 v{t}, v{t+2}", f"v_permlane32_swap_b32 v{t+1}, v{t+3}"]
        out.append(("nop", 2))
        for t, *_ in tl:
            out += [f"v_permlane16_swap_b32 v{t}, v{t+2}", f"v_permlane16_swap_b32 v{t+1}, v{t+3}"]
        out.append(("nop", 1))
        for t, p0, p1, qt in tl:
            if qt == 8:
                out.append(("ds", f"ds_write_b128 v{V_QX}, v[{t}:{t+3}] offset:{s*1024}", "q8w"))
            else:
                for j in range(4):
                    out.append(f"v_accvgpr_write_b32 a{QF(qt, s)+j}, v{t+j}")
        return out

    def xreduce(op, regs):
        out = []
        for sw in ("32", "16"):
            for k, r in enumerate(regs):
                out.append(f"v_mov_b32 v{V_T+k}, v{r}")
            out.append(("nop", 2))
            for k, r in enumerate(regs):
                out.append(f"v_permlane{sw}_swap_b32 v{V_T+k}, v{r}")
            out.append(("nop", 1))
            for k, r in enumerate(regs):
                out.append(f"v_{op}_f32 v{r}, v{r}, v{V_T+k}")
        return out

    def p_group(regs):
        n = len(regs)
        T = [(V_T2 + 2 * k, V_T2 + 2 * k + 1) for k in range(n)]
        o = []
        for (R, mc, l), (ta, tb) in zip(regs, T):
            o += [f"v_lshlrev_b32 v{ta}, 16, v{R}", f"v_and_b32 v{tb}, 0xffff0000, v{R}"]
        for (R, mc, l), (ta, tb) in zip(regs, T):
            o += [f"v_fma_f32 v{ta}, v{ta}, s{S_C}, -v{mc}", f"v_fma_f32 v{tb}, v{tb}, s{S_C}, -v{mc}"]
        for (R, mc, l), (ta, tb) in zip(regs, T):
            o += [f"v_exp_f32 v{ta}, v{ta}", f"v_exp_f32 v{tb}, v{tb}"]
        for which in (0, 1):
            for (R, mc, l), tt in zip(regs, T):
                if l is not None:
                    o.append(f"v_add_f32 v{l}, v{l}, v{tt[which]}")
        for (R, mc, l), (ta, tb) in zip(regs, T):
            o.append(f"CV v{R}, v{ta}, v{tb}")
        return o

    def p_items(ci):
        regs = [(big(qt, ci) + j, V_MC + qt, V_L + qt) for j in range(4) for qt in range(NT)]
        return p_group(regs)

    epi_k = [0]

    def epi_block(areg, lreg, soff, sp):
        out = []
        tb = V_EP + (epi_k[0] % 2) * 12
        epi_k[0] += 1
        for j in range(8):
            out.append(f"v_accvgpr_read_b32 v{tb+j}, a{areg+j}")
        for j in range(8):
            out.append(f"v_mul_f32 v{tb+j}, v{tb+j}, v{lreg}")
        for j in range(4):
            out.append(f"CV v{tb+8+j}, v{tb+2*j}, v{tb+2*j+1}")
        out.append(f"s_add_u32 s{S_T2}, s{soff}, s{S_XW + (sp>>1)}")
        out.append(("st", f"buffer_store_dwordx4 v[{tb+8}:{tb+11}], v{V_ST}, s[{S_O}:{S_O+3}], s{S_T2} offen offset:{(sp&1)*1024}"))
        return out

    def epi_items(s):
        out = []
        for qt in range(NT):
            out += epi_block((qt * 16 + 2 * s) * 4, V_L + qt, S_OQ + qt, s)
        return out

    def transition_q8():
        drain_all()
        e(f"v_mov_b32 v{V_M8}, 0xff800000")
        em.wait_lg("q8w")
        e("s_barrier")
        for s in range(8):
            em.ds(f"R {ar(QF(2, s),4)}, v{V_QX + (s>>1)}, {(s&1)*1024}", "q8r")
        em.nop(2)

    def transition_sm():
        drain_all()
        push(xreduce("max", [V_M, V_M + 1, V_M8]))
        drain_all()
        e(f"v_and_b32 v{t0}, 15, v{V_LANE}")
        e(f"v_lshlrev_b32 v{t0}, 2, v{t0}")
        e(f"v_add_u32 v{t0}, {SCR}, v{t0}")
        e(f"s_lshl_b32 s42, s{S_WAVE}, 6")
        e(f"v_add_u32 v{t1}, s42, v{t0}")
        em.ds(f"ds_write_b32 v{t1}, v{V_M8}", "m8w")
        for qt in range(NT):
            e(f"v_mul_f32 v{V_MC+qt}, s{S_C}, v{V_M+qt}")
            e(f"v_mov_b32 v{V_L+qt}, 0")
        e(f"s_lshr_b32 s42, s{S_WAVE}, 1")
        e("s_lshl_b32 s42, s42, 10")
        e(f"s_and_b32 s43, s{S_WAVE}, 1")
        e("s_lshl_b32 s43, s43, 3")
        e("s_add_u32 s42, s42, s43")
        e(f"v_add_u32 v{V_SCW}, s42, v{V_SC}")
        em.wait_lg("m8w")
        e("s_barrier")
        em.ds(f"ds_read2_b32 v[{t2}:{t3}], v{t0} offset0:0 offset1:16", "m8r")
        em.ds(f"ds_read2_b32 v[{t3+1}:{t3+2}], v{t0} offset0:32 offset1:48", "m8r")
        for s in p_items(0):
            e(s)
        em.wait_lg("m8r")
        e("s_barrier")
        e(f"v_max3_f32 v{V_M8}, v{t2}, v{t3}, v{t3+1}")
        e(f"v_max_f32 v{V_M8}, v{V_M8}, v{t3+2}")
        e(f"v_mul_f32 v{V_MC8}, s{S_C}, v{V_M8}")
        for h in range(0, 8, 4):
            regs = [(V_Q8 + 2 * j + k, V_MC8, None) for j in range(h, h + 4) for k in range(2)]
            for s in p_group(regs):
                e(s)
        for j in range(8):
            em.ds(f"ds_write_b64 v{V_SCW}, v[{V_Q8+2*j}:{V_Q8+2*j+1}] offset:{j*2048}", "p8w")
        em.wait_lg("p8w")
        e("s_barrier")
        em.ds(f"R {vr(V_P8,4)}, v{V_SC}, 0", "P8_0")
        em.nop(2)

    def mfmas(G):
        i, f = divmod(G, 16)
        kind, ci = chunks[i]
        fr = frag_reg(G)
        if kind == "V" and ci == 0 and f == 0:
            transition_sm()
        if kind == "W" and f == 0:
            em.wait_vm(f"x{ci}")
        if kind == "V" and f == 0 and ci > 0:
            drain_all()
            em.nop(2)
        em.wait_lg(f"F{G}")
        per = {"W": 3, "K": 2, "V": 3}[kind]
        for qt in range(NT):
            if kind == "W":
                d = vr(big(qt, f), 4)
                c = "0" if ci == 0 else d
                e(f"M {d}, {ar(fr,4)}, {ar((qt*14+ci)*4,4)}, {c}")
            elif kind == "K":
                kt, ks = f >> 3, f & 7
                if ks == 0:
                    assert not any(isinstance(x[1], str) and f"v{sacc(kt,qt)}," in x[1] for x in q), "pending S items"
                d = vr(sacc(kt, qt), 4)
                c = "0" if ks == 0 else d
                e(f"M {d}, {ar(fr,4)}, {ar(QF(qt,ks),4)}, {c}")
            else:
                d = ar((qt * 16 + f) * 4, 4)
                c = "0" if ci == 0 else d
                e(f"M {d}, {ar(fr,4)}, {vr(big(qt,ci),4)}, {c}")
            drain(per)
        if kind == "W" and f < 4:
            d = vr(V_Q8 + f * 4, 4)
            c = "0" if ci == 0 else d
            e(f"M {d}, {ar(fr,4)}, {ar((2*14+ci)*4,4)}, {c}")
            drain(per)
        elif kind == "K":
            kt, ks = f >> 3, f & 7
            if ks == 0:
                while any(isinstance(x[1], tuple) and x[1][0] == "blk" for x in q):
                    rdy, _ = q[0]
                    if rdy is not None and em.n < rdy:
                        em.nop(rdy - em.n)
                    drain(1)
            d = vr(V_S8, 4)
            c = "0" if ks == 0 else d
            if not FORK:
                k = 2 * (ci & 1) + kt
                lab[0] += 1
                L = f"Lk8_{lab[0]}"
                e(f"s_mov_b64 vcc, s[{S_OWN+2*k}:{S_OWN+2*k+1}]")
                e(f"s_cbranch_vccz {L}")
                e(f"M {d}, {ar(fr,4)}, {ar(QF(2,ks),4)}, {c}")
                em.raw(f"{L}:")
            elif st.get("extra"):
                e(f"M {d}, {ar(fr,4)}, {ar(QF(2,ks),4)}, {c}")
                em.n -= 1
        elif kind == "V":
            p8 = V_P8 + (ci & 1) * 4
            if f == 0 and ci + 1 < 16:
                em.ds(f"R {vr(V_P8 + ((ci+1)&1)*4, 4)}, v{V_SC}, {(ci+1)*1024}", f"P8_{ci+1}")
            if f < 4:
                em.wait_lg(f"P8_{ci}")
                d = ar(A_O8 + f * 4, 4)
                c = "0" if ci == 0 else d
                e(f"M {d}, {ar(fr,4)}, {vr(p8,4)}, {c}")
                drain(per)
                if f == 3:
                    d = ar(A_L8, 4)
                    c = "0" if ci == 0 else d
                    e(f"M {d}, {vr(V_ONE,4)}, {vr(p8,4)}, {c}")
                    drain(per)
        if kind == "W" and ci == 13 and (f & 1):
            push(qconv_items(f >> 1), after=em.n + 9)
        if kind == "K" and (f & 7) == 7:
            push(s_items(ci, f >> 3), after=em.n + 13)
        if kind == "V":
            if f == 0 and ci + 1 < 16:
                push(p_items(ci + 1))
            if ci == 15:
                if f == 0:
                    push(xreduce("add", [V_L, V_L + 1]))
                    push([f"v_rcp_f32 v{V_L+qt}, v{V_L+qt}" for qt in range(NT)])
                    push([("nop", 1)])
                if f == 5:
                    push([f"v_accvgpr_read_b32 v{V_M8}, a{A_L8}", f"v_rcp_f32 v{V_M8}, v{V_M8}", ("nop", 1)], after=em.n + 9)
                    for k in range(2):
                        push(epi_block(A_O8 + k * 8, V_M8, S_OQ + 2, k))
                if f & 1:
                    push(epi_items(f >> 1), after=em.n + 9)

    total = nsteps * 16
    st["li"] = 0

    def body(G):
        if G < total:
            i, f = divmod(G, 16)
            if f == 0:
                kind, ci = chunks[i]
                em.wait_vm(f"{kind}{ci}")
                e("s_barrier")
                if PROF:
                    e("s_memtime s[60:61]")
                    e("s_waitcnt lgkmcnt(0)")
                    em.lg = []
                    e(f"v_writelane_b32 v49, s60, {i}")
                while dq:
                    emit_dma(dq.pop(0))
                if i >= 2 and st["li"] < len(later):
                    c = later[st["li"]]
                    st["li"] += 1
                    slot_of[c] = slot_of[chunks[i - 2]]
                    issue(c, True)
                xload(i + PX)
                if i + 1 < NK0:
                    issue(("K", i + 1), True)
                if i == 0 or chunks[i - 1][0] != kind:
                    drain_all()
                    set_addr(kind)
                set_base(slot_of[chunks[i]] >> 2)
            reads(G)
        m = G - DREAD
        if m >= 0:
            mfmas(m)
        FS = int(os.environ.get("FS", "35"))
        if PROF and FS * 16 <= G < FS * 16 + 24:
            e("s_memtime s[60:61]")
            e("s_waitcnt lgkmcnt(0)")
            em.lg = []
            e(f"v_writelane_b32 v48, s60, {2*(G - FS*16)}")
        if dq:
            emit_dma(dq.pop(0))
        if PROF and FS * 16 <= G < FS * 16 + 24:
            e("s_memtime s[60:61]")
            e("s_waitcnt lgkmcnt(0)")
            em.lg = []
            e(f"v_writelane_b32 v48, s60, {2*(G - FS*16)+1}")

    import copy
    G = 0
    while G < total + DREAD:
        m = G - DREAD
        if not FORK and m == 14 * 16:
            transition_q8()
            em.wait_lg("q8r")
        if FORK and m >= 0 and chunks[m // 16][0] == "K" and (m & 7) == 0:
            ci, kt = chunks[m // 16][1], (m >> 3) & 1
            k = 2 * (ci & 1) + kt
            if ci == 0 and kt == 0:
                transition_q8()
                em.wait_lg("q8r")
            while any(isinstance(x[1], tuple) and x[1][0] == "blk" for x in q):
                rdy, _ = q[0]
                if rdy is not None and em.n < rdy:
                    em.nop(rdy - em.n)
                drain(1)
            lab[0] += 1
            LP, LJ = f"Lkp_{lab[0]}", f"Lkj_{lab[0]}"
            e(f"s_mov_b64 vcc, s[{S_OWN+2*k}:{S_OWN+2*k+1}]")
            e(f"s_cbranch_vccz {LP}")
            snap = (list(em.vm), list(em.lg), em.n, list(q), list(dq), dict(st), dict(slot_of), lab[0], list(epi_k))
            st["extra"] = True
            for g2 in range(G, G + 8):
                body(g2)
            e(f"s_branch {LJ}")
            em.raw(f"{LP}:")
            nA = em.n
            em.vm, em.lg, em.n = list(snap[0]), list(snap[1]), snap[2]
            q[:] = snap[3]
            dq[:] = snap[4]
            st.clear(); st.update(snap[5])
            slot_of.clear(); slot_of.update(snap[6])
            lab[0] = snap[7] + 1000
            st["extra"] = False
            for g2 in range(G, G + 8):
                body(g2)
            em.raw(f"{LJ}:")
            G += 8
        else:
            body(G)
            G += 1
    drain_all()
    if PROF:
        e("s_memtime s[60:61]")
        e("s_waitcnt lgkmcnt(0)")
        e("v_writelane_b32 v49, s60, 46")
        e("s_waitcnt vmcnt(0)")
        e("s_memtime s[60:61]")
        e("s_waitcnt lgkmcnt(0)")
        e("v_writelane_b32 v49, s60, 47")
        e("v_writelane_b32 v49, s62, 48")
        e("s_memrealtime s[60:61]")
        e("s_waitcnt lgkmcnt(0)")
        e("v_writelane_b32 v49, s60, 49")
        e("v_writelane_b32 v49, s64, 50")
        e("s_lshl_b32 s60, s2, 2")
        e(f"s_add_u32 s60, s60, s{S_WAVE}")
        e("s_lshl_b32 s60, s60, 8")
        e(f"s_add_u32 s60, s60, {32<<20}")
        e(f"v_lshlrev_b32 v50, 2, v{V_LANE}")
        e(f"s_mov_b32 s{S_O+2}, {64<<20}")
        e(f"buffer_store_dword v49, v50, s[{S_O}:{S_O+3}], s60 offen")
        e(f"s_add_u32 s60, s60, {2<<20}")
        e(f"buffer_store_dword v48, v50, s[{S_O}:{S_O+3}], s60 offen")
    em.raw("L_k1_exit:")
    e("s_endpgm")


def k2(em):
    e = em.e
    NS = K2NS
    S_WO, S_OS, S_OUT = 8, 12, 16
    S_W, S_WG, S_WL, S_T, S_ST = 20, 21, 22, 23, 24
    V_L, V_DMA, V_B, V_O, V_A = 1, 2, 3, 4, 6
    V_ACC = 12
    V_FR = 32
    V_BF = 64
    em.raw(".globl oproj_kernel\n.p2align 8\n.type oproj_kernel,@function\noproj_kernel:")
    e("s_cmp_ge_u32 s2, 256")
    e("s_cbranch_scc1 L_k2_exit")
    if PROF:
        e("s_memtime s[62:63]")
    e("s_and_b32 s3, s2, 7")
    e("s_lshr_b32 s4, s2, 3")
    e("s_lshl_b32 s3, s3, 5")
    e("s_add_u32 s3, s3, s4")
    e("s_cmp_ge_u32 s3, 252")
    e("s_cbranch_scc1 L_k2_exit")
    e("s_load_dwordx4 s[44:47], s[0:1], 32")
    e("s_load_dwordx2 s[48:49], s[0:1], 56")
    e("s_mul_i32 s4, s3, 9363")
    e("s_lshr_b32 s4, s4, 16")
    e("s_mul_i32 s5, s4, 7")
    e("s_sub_u32 s5, s3, s5")
    e(f"v_and_b32 v{V_L}, 63, v0")
    e("v_lshrrev_b32 v2, 6, v0")
    e("s_nop 0")
    e(f"v_readfirstlane_b32 s{S_W}, v2")
    e("s_waitcnt lgkmcnt(0)")
    e("s_lshl_b32 s6, s5, 7")
    e(f"s_add_u32 s{S_WO}, s44, s6")
    e(f"s_addc_u32 s{S_WO+1}, s45, 0")
    e(f"s_sub_u32 s{S_WO+2}, {4096*896}, s6")
    e(f"s_mov_b32 s{S_WO+3}, 0x20000")
    e("s_lshl_b32 s7, s4, 2")
    e(f"s_add_u32 s7, s7, s{S_W}")
    e("s_lshl_b32 s25, s7, 17")
    e(f"s_add_u32 s{S_OS}, s48, s25")
    e(f"s_addc_u32 s{S_OS+1}, s49, 0")
    e(f"s_mov_b32 s{S_OS+2}, 131072")
    e(f"s_mov_b32 s{S_OS+3}, 0x20000")
    e(f"s_mov_b32 s{S_OUT}, s46")
    e(f"s_mov_b32 s{S_OUT+1}, s47")
    e(f"s_mov_b32 s{S_OUT+2}, {2304*896}")
    e(f"s_mov_b32 s{S_OUT+3}, 0x20000")
    e(f"s_mul_i32 s{S_ST}, s7, {16*896}")
    e(f"s_add_u32 s{S_ST}, s{S_ST}, s6")
    e(f"s_mul_i32 s{S_WG}, s{S_W}, {32*896}")
    e(f"s_lshl_b32 s{S_WL}, s{S_W}, 12")
    e(f"v_lshrrev_b32 v10, 3, v{V_L}")
    e("v_mul_u32_u24 v10, 896, v10")
    e(f"v_bfe_u32 v11, v{V_L}, 1, 2")
    e(f"v_lshrrev_b32 v12, 4, v{V_L}")
    e("v_xor_b32 v11, v11, v12")
    e("v_lshl_add_u32 v10, v11, 5, v10")
    e(f"v_and_b32 v11, 1, v{V_L}")
    e(f"v_lshl_add_u32 v{V_DMA}, v11, 4, v10")
    e(f"v_lshlrev_b32 v{V_B}, 4, v{V_L}")
    e(f"v_and_b32 v10, 15, v{V_L}")
    e("v_mul_u32_u24 v10, 896, v10")
    e(f"v_lshl_add_u32 v{V_O}, v12, 3, v10")
    e(f"v_bfe_u32 v10, v{V_L}, 2, 2")
    e("v_lshl_add_u32 v10, v12, 2, v10")
    e("v_bfe_u32 v11, v10, 1, 2")
    e("v_lshlrev_b32 v10, 7, v10")
    e("v_lshl_add_u32 v10, v11, 5, v10")
    e(f"v_and_b32 v11, 3, v{V_L}")
    e("v_lshl_add_u32 v10, v11, 3, v10")
    for u in range(4):
        e(f"v_xor_b32 v{V_A+u}, {u<<5}, v10")
    st = {"base": 0}

    def issue_ops(cc):
        slot = cc % NS
        tag = f"C{cc}"
        ops = []
        for jj in range(4):
            ops.append([f"s_add_u32 m0, s{S_WL}, {slot*16384 + jj*1024}",
                        f"s_add_u32 s{S_T}, s{S_WG}, {(cc*128 + jj*8)*896}",
                        (f"buffer_load_dwordx4 v{V_DMA}, s[{S_WO}:{S_WO+3}], s{S_T} offen lds", tag)])
            ops.append([f"s_mov_b32 s{S_T}, {cc*4096}",
                        (f"buffer_load_dwordx4 {vr(V_BF + slot*16 + jj*4, 4)}, v{V_B}, s[{S_OS}:{S_OS+3}], s{S_T} offen offset:{jj*1024}{K2NT}", tag)])
        return ops

    def emit_op(op):
        for x in op:
            if isinstance(x, tuple):
                em.vmem(x[0], x[1])
            else:
                e(x)

    def issue(cc):
        for op in issue_ops(cc):
            emit_op(op)

    pend = []
    for cc in range(NS):
        issue(cc)
    D = 4
    total = 32 * 16

    def reads(G):
        cc, f = divmod(G, 16)
        ss, u = f >> 2, f & 3
        slot = cc % NS
        if f == 0:
            grp = slot >> 2
            if grp != st["base"]:
                d = (grp - st["base"]) * 65536
                for b in range(4):
                    e(f"v_add_u32 v{V_A+b}, {d & 0xffffffff}, v{V_A+b}")
                st["base"] = grp
        off = (slot & 3) * 16384 + ss * 4096
        fr = V_FR + (G % 8) * 4
        em.ds(f"T {vr(fr,2)}, v{V_A+u}, {off}", f"F{G}")
        em.ds(f"T {vr(fr+2,2)}, v{V_A+u}, {off+2048}", f"F{G}")

    def mfma(G):
        cc, f = divmod(G, 16)
        ss, u = f >> 2, f & 3
        slot = cc % NS
        fr = V_FR + (G % 8) * 4
        em.wait_lg(f"F{G}")
        d = vr(V_ACC + u * 4, 4)
        c = "0" if (cc == 0 and ss == 0) else d
        e(f"M {d}, {vr(fr,4)}, {vr(V_BF + slot*16 + ss*4, 4)}, {c}")

    for G in range(total + D):
        if G < total:
            cc, f = divmod(G, 16)
            if f == 0:
                em.wait_vm(f"C{cc}")
                e("s_barrier")
                if PROF:
                    e("s_memtime s[60:61]")
                    e("s_waitcnt lgkmcnt(0)")
                    em.lg = []
                    e(f"v_writelane_b32 v5, s60, {cc}")
                if cc >= 2 and cc - 2 + NS < 32:
                    pend.extend(issue_ops(cc - 2 + NS))
            reads(G)
        if G - D >= 0:
            mfma(G - D)
        if pend and (G & 1):
            emit_op(pend.pop(0))
    em.nop(9)
    for u in range(4):
        a = V_ACC + u * 4
        e(f"CV v{28+ (u%2)*2}, v{a}, v{a+1}")
        e(f"CV v{29+ (u%2)*2}, v{a+2}, v{a+3}")
        e(f"buffer_store_dwordx2 v[{28+(u%2)*2}:{29+(u%2)*2}], v{V_O}, s[{S_OUT}:{S_OUT+3}], s{S_ST} offen offset:{u*32}")
    if PROF:
        e("s_waitcnt vmcnt(0)")
        e("s_memtime s[60:61]")
        e("s_waitcnt lgkmcnt(0)")
        e("v_writelane_b32 v5, s60, 47")
        e("v_writelane_b32 v5, s62, 48")
        e("s_lshl_b32 s60, s2, 2")
        e(f"s_add_u32 s60, s60, s{S_W}")
        e("s_lshl_b32 s60, s60, 8")
        e(f"s_add_u32 s60, s60, {33<<20}")
        e(f"v_lshlrev_b32 v10, 2, v{V_L}")
        e(f"s_mov_b32 s{S_OS}, s48")
        e(f"s_mov_b32 s{S_OS+1}, s49")
        e(f"s_mov_b32 s{S_OS+2}, {64<<20}")
        e(f"buffer_store_dword v5, v10, s[{S_OS}:{S_OS+3}], s60 offen")
    em.raw("L_k2_exit:")
    e("s_endpgm")


def kd(name, vgpr, acc):
    return f""".p2align 6
.amdhsa_kernel {name}
  .amdhsa_next_free_vgpr {vgpr}
  .amdhsa_next_free_sgpr 102
  .amdhsa_accum_offset {acc}
  .amdhsa_group_segment_fixed_size 0
  .amdhsa_kernarg_size 64
  .amdhsa_user_sgpr_count 2
  .amdhsa_user_sgpr_kernarg_segment_ptr 1
  .amdhsa_system_sgpr_workgroup_id_x 1
.end_amdhsa_kernel
"""


def main():
    em = Em()
    k1(em)
    em2 = Em()
    k2(em2)
    txt = HEADER + "\n".join(em.lines) + "\n" + "\n".join(em2.lines) + "\n"
    txt += '.section .rodata,"a"\n' + kd("attn_kernel", 512, 256) + kd("oproj_kernel", 256, 256)
    open(OUT, "w").write(txt)
    print("wrote", OUT, len(txt), "bytes")


main()
```

```python
import math, sys, os, struct

OUT = sys.argv[1] if len(sys.argv) > 1 else "standalone__mha_block_cached__near_ridge.s"
PROF = os.environ.get("PROF", "0") == "1"
NSLOT = 9
NW0 = int(os.environ.get("NW0", "4"))
NK0 = NSLOT - NW0
FORK = int(os.environ.get("FORK", "0"))
PREF = int(os.environ.get("PREF", "1"))
PX = int(os.environ.get("PX", "4"))
DREAD = int(os.environ.get("DREAD", "5"))
KVNT = os.environ.get("KVNT", " nt")
K2NS = int(os.environ.get("K2NS", "7"))
K2NT = " nt" if os.environ.get("K2NT", "0") == "1" else ""

HEADER = f"""; Kernarg layout for this problem (64 bytes, ptrs only, base s[0:1]):
; @launch grid=(256,1,1) block=(256,1,1) lds=163840
.amdgcn_target "amdgcn-amd-amdhsa--gfx950"
.macro M d, a, b, c
v_mfma_f32_16x16x32_bf16 \\d, \\a, \\b, \\c
.endm
.macro T d, a, o
ds_read_b64_tr_b16 \\d, \\a offset:\\o
.endm
.macro R d, a, o
ds_read_b128 \\d, \\a offset:\\o
.endm
.macro WL n
s_waitcnt lgkmcnt(\\n)
.endm
.macro CV d, a, b
v_cvt_pk_bf16_f32 \\d, \\a, \\b
.endm
.text
"""


class Em:
    def __init__(self):
        self.lines = []
        self.vm = []
        self.lg = []
        self.n = 0

    def e(self, s):
        self.lines.append(s)
        self.n += 1

    def raw(self, s):
        self.lines.append(s)

    def vmem(self, s, tag):
        self.e(s)
        self.vm.append(tag)

    def ds(self, s, tag):
        self.e(s)
        self.lg.append(tag)

    def wait_vm(self, tag):
        idx = max([i for i, t in enumerate(self.vm) if t == tag], default=-1)
        if idx < 0:
            return
        n = min(len(self.vm) - 1 - idx, 63)
        self.e(f"s_waitcnt vmcnt({n})")
        self.vm = self.vm[len(self.vm) - n:] if n > 0 else []

    def wait_lg(self, tag):
        idx = max([i for i, t in enumerate(self.lg) if t == tag], default=-1)
        if idx < 0:
            return
        n = min(len(self.lg) - 1 - idx, 15)
        self.e(f"WL {n}")
        self.lg = self.lg[len(self.lg) - n:] if n > 0 else []

    def nop(self, states):
        while states > 0:
            k = min(states, 16)
            self.e(f"s_nop {k-1}")
            self.n += k - 1
            states -= k


def vr(b, n=1):
    return f"v{b}" if n == 1 else f"v[{b}:{b+n-1}]"


def ar(b, n=1):
    return f"a{b}" if n == 1 else f"a[{b}:{b+n-1}]"


S_X, S_K, S_V, S_W, S_O = 8, 12, 16, 20, 24
S_WAVE = 28
S_C = 29
S_XQ = 32
S_OQ = 36
S_T = 40
S_T2 = 41
V_LANE = 1
V_ADDR = 2
V_D = 10
V_XO = 14
V_ST = 15
V_SACC = 16
V_M = 40
V_L = 43
V_MC = 46
V_T = 50
V_BIG = 64
A_FR = 192


V_Q8 = 192
V_S8 = 208
V_P8 = 212
V_ONE = 220
V_SC = 224
V_M8, V_MC8 = 225, 226
V_SCW = 227
V_T2 = 228
V_QX = 244
V_AD = 248
V_A16 = 16
V_SACC2 = 32
V_EP = 228
A_O8 = 128
A_L8 = 144
SCR = 9 * 16384
S_WL, S_KL = 54, 55
S_XW = 56
S_OWN = 66


def k1(em):
    e = em.e
    global V_M, V_L, V_MC
    V_M, V_L, V_MC = 2, 4, 6
    V_WD, V_KD = 8, 9
    em.raw(".globl standalone__mha_block_cached__near_ridge_kernel\n.p2align 8\n.type standalone__mha_block_cached__near_ridge_kernel,@function\nstandalone__mha_block_cached__near_ridge_kernel:")
    e("s_cmp_ge_u32 s2, 256")
    e("s_cbranch_scc1 L_k1_exit")
    if PROF:
        e("s_memtime s[62:63]")
        e("s_memrealtime s[64:65]")
    e("s_load_dwordx8 s[44:51], s[0:1], 0")
    e("s_load_dwordx2 s[52:53], s[0:1], 56")
    if PREF:
        e("s_getpc_b64 s[76:77]")
        e("s_lshr_b32 s4, s2, 3")
        e("s_cmp_ge_u32 s4, 17")
        e("s_cbranch_scc1 L_nopref")
        e("s_lshl_b32 s4, s4, 12")
        e("v_lshlrev_b32 v2, 4, v0")
        e("v_add_u32 v2, s4, v2")
        e("global_load_dwordx4 v[4:7], v2, s[76:77]")
        em.raw("L_nopref:")
    e("s_and_b32 s3, s2, 7")
    e("s_lshr_b32 s4, s2, 3")
    MAPH = int(os.environ.get("MAPH", "4"))
    lg = {4: 2, 8: 3, 16: 4}[MAPH]
    e(f"s_and_b32 s5, s3, {16 // MAPH - 1}")
    e(f"s_lshl_b32 s5, s5, {lg}")
    e(f"s_and_b32 s6, s4, {MAPH - 1}")
    e("s_add_u32 s5, s5, s6")
    e(f"s_lshr_b32 s6, s3, {4 - lg}")
    e(f"s_lshl_b32 s6, s6, {5 - lg}")
    e(f"s_lshr_b32 s7, s4, {lg}")
    e("s_add_u32 s6, s6, s7")
    e(f"v_and_b32 v{V_LANE}, 63, v0")
    e("v_lshrrev_b32 v2, 6, v0")
    e("s_nop 0")
    e(f"v_readfirstlane_b32 s{S_WAVE}, v2")
    e(f"s_mov_b32 s{S_C}, {hex(struct.unpack('<I', struct.pack('<f', math.log2(math.e)/16.0))[0])}")
    e("s_waitcnt lgkmcnt(0)")
    e("s_mul_i32 s7, s6, 129024")
    e(f"s_add_u32 s{S_X}, s44, s7")
    e(f"s_addc_u32 s{S_X+1}, s45, 0")
    e(f"s_mov_b32 s{S_X+2}, 129024")
    e(f"s_mov_b32 s{S_X+3}, 0x20000")
    e("s_lshl_b32 s7, s6, 4")
    e("s_add_u32 s7, s7, s5")
    e("s_lshl_b32 s7, s7, 18")
    e(f"s_add_u32 s{S_K}, s46, s7")
    e(f"s_addc_u32 s{S_K+1}, s47, 0")
    e(f"s_mov_b32 s{S_K+2}, 262144")
    e(f"s_mov_b32 s{S_K+3}, 0x20000")
    e(f"s_add_u32 s{S_V}, s48, s7")
    e(f"s_addc_u32 s{S_V+1}, s49, 0")
    e(f"s_mov_b32 s{S_V+2}, 262144")
    e(f"s_mov_b32 s{S_V+3}, 0x20000")
    e("s_lshl_b32 s7, s5, 9")
    e(f"s_add_u32 s{S_W}, s50, s7")
    e(f"s_addc_u32 s{S_W+1}, s51, 0")
    e(f"s_mov_b32 s{S_W+2}, {447*8192+512}")
    e(f"s_mov_b32 s{S_W+3}, 0x20000")
    e(f"s_mov_b32 s{S_O}, s52")
    e(f"s_mov_b32 s{S_O+1}, s53")
    e(f"s_mov_b32 s{S_O+2}, {144*128*1024}")
    e(f"s_mov_b32 s{S_O+3}, 0x20000")
    e(f"s_lshl_b32 s7, s{S_WAVE}, 1")
    for qt in range(3):
        if qt < 2:
            e(f"s_add_u32 s42, s7, {qt}")
        else:
            e("s_mov_b32 s42, 8")
        e(f"s_mul_i32 s{S_XQ+qt}, s42, 14336")
        e("s_mul_i32 s43, s6, 9")
        e("s_add_u32 s43, s43, s42")
        e("s_lshl_b32 s43, s43, 7")
        e("s_lshl_b32 s42, s5, 3")
        e("s_add_u32 s43, s43, s42")
        e(f"s_lshl_b32 s{S_OQ+qt}, s43, 10")
    for a in range(4):
        e(f"s_xor_b32 s42, s{S_WAVE}, {a}")
        e(f"s_lshl_b32 s{S_XW+a}, s42, 11")
    for k in range(4):
        e(f"s_cmp_eq_u32 s{S_WAVE}, {k}")
        e(f"s_cselect_b64 s[{S_OWN+2*k}:{S_OWN+2*k+1}], -1, 0")
    t0, t1, t2, t3 = V_T, V_T + 1, V_T + 2, V_T + 3
    e(f"v_and_b32 v{t0}, 15, v{V_LANE}")
    e(f"v_mul_u32_u24 v{t0}, 896, v{t0}")
    e(f"v_lshrrev_b32 v{t1}, 4, v{V_LANE}")
    e(f"v_lshl_add_u32 v{V_XO}, v{t1}, 4, v{t0}")
    e(f"v_lshlrev_b32 v{V_ST}, 4, v{V_LANE}")
    e(f"s_lshl_b32 s42, s{S_WAVE}, 1")
    e(f"s_lshl_b32 s{S_KL}, s{S_WAVE}, 10")
    e(f"v_lshrrev_b32 v{t0}, 5, v{V_LANE}")
    e(f"v_add_u32 v{t0}, s42, v{t0}")
    e(f"v_and_b32 v{t1}, 31, v{V_LANE}")
    e(f"v_lshlrev_b32 v{t2}, 1, v{t0}")
    e(f"v_xor_b32 v{t2}, v{t1}, v{t2}")
    e(f"v_lshlrev_b32 v{t2}, 4, v{t2}")
    e(f"v_lshl_add_u32 v{V_KD}, v{t0}, 9, v{t2}")
    e(f"s_and_b32 s42, s{S_WAVE}, 1")
    e("s_lshl_b32 s42, s42, 1")
    e(f"s_lshr_b32 s43, s{S_WAVE}, 1")
    e("s_lshl_b32 s43, s43, 3")
    e("s_add_u32 s42, s42, s43")
    e(f"s_lshl_b32 s{S_WL}, s42, 9")
    e(f"v_lshrrev_b32 v{t0}, 5, v{V_LANE}")
    e(f"v_add_u32 v{t0}, s42, v{t0}")
    e(f"v_and_b32 v{t2}, 3, v{t0}")
    e(f"v_bfe_u32 v{t3}, v{t0}, 3, 1")
    e(f"v_lshl_add_u32 v{t2}, v{t3}, 2, v{t2}")
    e(f"v_lshlrev_b32 v{t2}, 1, v{t2}")
    e(f"v_xor_b32 v{t2}, v{t1}, v{t2}")
    e(f"v_lshlrev_b32 v{t2}, 4, v{t2}")
    e(f"v_lshl_add_u32 v{V_WD}, v{t0}, 13, v{t2}")
    e(f"v_lshlrev_b32 v{V_SC}, 4, v{V_LANE}")
    e(f"v_add_u32 v{V_SC}, {SCR}, v{V_SC}")
    for a in range(4):
        e(f"v_add_u32 v{V_QX+a}, s{S_XW+a}, v{V_SC}")
    for j in range(4):
        e(f"v_mov_b32 v{V_ONE+j}, 0x3f803f80")

    NT = 2
    chunks = [("W", i) for i in range(14)] + [("K", i) for i in range(16)] + [("V", i) for i in range(16)]
    nsteps = len(chunks)
    slot_of = {}
    init = [("W", i) for i in range(NW0)] + [("K", i) for i in range(NK0)]
    for s_, c in enumerate(init):
        slot_of[c] = s_
    later = [c for c in chunks if c not in slot_of]
    dq = []

    def emit_dma(item):
        sl, lds, goff, vo, srd, nt, tag = item
        e(f"s_add_u32 m0, s{sl}, {lds}")
        e(f"s_mov_b32 s{S_T}, {goff}")
        em.vmem(f"buffer_load_dwordx4 v{vo}, s[{srd}:{srd+3}], s{S_T} offen{nt} lds", tag)

    def issue(chunk, defer=False):
        kind, ci = chunk
        slot = slot_of[chunk]
        tag = f"{kind}{ci}"
        its = []
        if kind == "W":
            for jr in (0, 4, 16, 20):
                its.append((S_WL, slot * 16384 + jr * 512, (ci * 32 + jr) * 8192, V_WD, S_W, "", tag))
        else:
            srd = S_K if kind == "K" else S_V
            for jj in range(4):
                its.append((S_KL, slot * 16384 + jj * 4096, ci * 16384 + jj * 4096, V_KD, srd, KVNT, tag))
        for it in its:
            if defer:
                dq.append(it)
            else:
                emit_dma(it)

    def xload(c):
        if c < 14:
            for qt in range(3):
                em.vmem(f"buffer_load_dwordx4 {ar((qt*14+c)*4,4)}, v{V_XO}, s[{S_X}:{S_X+3}], s{S_XQ+qt} offen offset:{c*64}", f"x{c}")

    for c in range(max(NW0, PX)):
        if c < NW0:
            issue(("W", c))
        if c < PX:
            xload(c)
    issue(("K", 0))
    st = {"base": 0}

    def set_addr(kind):
        e(f"v_lshrrev_b32 v{t0}, 4, v{V_LANE}")
        e(f"v_bfe_u32 v{t1}, v{V_LANE}, 2, 2")
        e(f"v_and_b32 v{t2}, 3, v{V_LANE}")
        if kind == "W":
            e(f"v_lshl_add_u32 v{t3}, v{t0}, 3, v{t1}")
            e(f"v_lshlrev_b32 v{t3}, 9, v{t3}")
            e(f"v_and_b32 v{t0}, 1, v{t0}")
            e(f"v_lshl_add_u32 v{t0}, v{t0}, 2, v{t1}")
            e(f"v_lshl_add_u32 v{t3}, v{t0}, 5, v{t3}")
            e(f"v_lshl_add_u32 v{t3}, v{t2}, 3, v{t3}")
            nb, sh = 16, 5
        elif kind == "V":
            e(f"v_lshl_add_u32 v{t0}, v{t0}, 2, v{t1}")
            e(f"v_lshlrev_b32 v{t3}, 9, v{t0}")
            e(f"v_and_b32 v{t0}, 7, v{t0}")
            e(f"v_lshl_add_u32 v{t3}, v{t0}, 5, v{t3}")
            e(f"v_lshl_add_u32 v{t3}, v{t2}, 3, v{t3}")
            nb, sh = 16, 5
        else:
            e(f"v_and_b32 v{t1}, 15, v{V_LANE}")
            e(f"v_lshlrev_b32 v{t3}, 9, v{t1}")
            e(f"v_and_b32 v{t1}, 7, v{t1}")
            e(f"v_lshlrev_b32 v{t1}, 1, v{t1}")
            e(f"v_xor_b32 v{t1}, v{t0}, v{t1}")
            e(f"v_lshl_add_u32 v{t3}, v{t1}, 4, v{t3}")
            nb, sh = 8, 6
        e(f"s_lshl_b32 s42, s{S_WAVE}, 7")
        e(f"v_xor_b32 v{t3}, s42, v{t3}")
        for b in range(nb):
            e(f"v_xor_b32 v{V_A16+b}, {b << sh}, v{t3}")
        st["base"] = 0
        st["nb"] = nb

    def set_base(grp):
        if grp != st["base"]:
            d = (grp - st["base"]) * 65536
            for b in range(st["nb"]):
                e(f"v_add_u32 v{V_A16+b}, {d & 0xffffffff}, v{V_A16+b}")
            st["base"] = grp

    def frag_reg(G):
        return A_FR + (G % 16) * 4

    def reads(G):
        i, f = divmod(G, 16)
        kind, ci = chunks[i]
        slot = slot_of[chunks[i]]
        sb = (slot & 3) * 16384
        fr = frag_reg(G)
        tag = f"F{G}"
        if kind == "K":
            kt, ks = f >> 3, f & 7
            em.ds(f"R {ar(fr,4)}, v{V_A16+ks}, {sb + kt*8192}", tag)
        else:
            second = 2048 if kind == "W" else 8192
            em.ds(f"T {ar(fr,2)}, v{V_A16+f}, {sb}", tag)
            em.ds(f"T {ar(fr+2,2)}, v{V_A16+f}, {sb + second}", tag)

    def big(qt, idx):
        return V_BIG + (qt * 16 + idx) * 4

    def sacc(kt, qt):
        return V_SACC2 + (kt * 2 + qt) * 4

    def QF(qt, s):
        return (qt * 14 + s) * 4

    def s8reg(ci):
        return V_Q8 + (ci >> 1) * 2

    q = []
    lab = [0]

    def push(instrs, after=None):
        for k, s in enumerate(instrs):
            q.append((after if k == 0 else None, s))

    def drain(cnt):
        k = 0
        while q and k < cnt:
            rdy, s = q[0]
            if rdy is not None and em.n < rdy:
                return
            q.pop(0)
            if isinstance(s, tuple):
                if s[0] == "nop":
                    em.nop(s[1])
                elif s[0] == "st":
                    em.vmem(s[1], "st")
                elif s[0] == "ds":
                    em.ds(s[1], s[2])
                elif s[0] == "blk":
                    for x in s[1]:
                        if x.endswith(":"):
                            em.raw(x)
                        else:
                            e(x)
            else:
                e(s)
            k += 1

    def drain_all():
        while q:
            rdy, s = q[0]
            if rdy is not None and em.n < rdy:
                em.nop(rdy - em.n)
            drain(1)

    def s_items(ci, kt):
        out = []
        for qt in range(NT):
            a, m, dst = sacc(kt, qt), V_M + qt, big(qt, ci) + 2 * kt
            if ci == 0 and kt == 0:
                out.append(f"v_max_f32 v{m}, v{a}, v{a+1}")
            else:
                out.append(f"v_max3_f32 v{m}, v{a}, v{a+1}, v{m}")
            out.append(f"CV v{dst}, v{a}, v{a+1}")
            out.append(f"v_max3_f32 v{m}, v{a+2}, v{a+3}, v{m}")
            out.append(f"CV v{dst+1}, v{a+2}, v{a+3}")
        k = 2 * (ci & 1) + kt
        lab[0] += 1
        L = f"Ls8_{lab[0]}"
        a, m, dst = V_S8, V_M8, s8reg(ci)
        blk = [f"s_mov_b64 vcc, s[{S_OWN+2*k}:{S_OWN+2*k+1}]", f"s_cbranch_vccz {L}",
               f"v_max3_f32 v{m}, v{a}, v{a+1}, v{m}", f"CV v{dst}, v{a}, v{a+1}",
               f"v_max3_f32 v{m}, v{a+2}, v{a+3}, v{m}", f"CV v{dst+1}, v{a+2}, v{a+3}", f"{L}:"]
        out.append(("blk", blk))
        return out

    def qconv_items(s):
        out = []
        tl = [(V_T + qt * 4, big(qt, 2 * s), big(qt, 2 * s + 1), qt) for qt in range(NT)]
        if s < 2:
            tl.append((V_T + 8, V_Q8 + (2 * s) * 4, V_Q8 + (2 * s + 1) * 4, 8))
        for t, p0, p1, qt in tl:
            out += [f"CV v{t}, v{p0}, v{p0+1}", f"CV v{t+1}, v{p0+2}, v{p0+3}",
                    f"CV v{t+2}, v{p1}, v{p1+1}", f"CV v{t+3}, v{p1+2}, v{p1+3}"]
        out.append(("nop", 2))
        for t, *_ in tl:
            out += [f"v_permlane32_swap_b32 v{t}, v{t+2}", f"v_permlane32_swap_b32 v{t+1}, v{t+3}"]
        out.append(("nop", 2))
        for t, *_ in tl:
            out += [f"v_permlane16_swap_b32 v{t}, v{t+2}", f"v_permlane16_swap_b32 v{t+1}, v{t+3}"]
        out.append(("nop", 1))
        for t, p0, p1, qt in tl:
            if qt == 8:
                out.append(("ds", f"ds_write_b128 v{V_QX}, v[{t}:{t+3}] offset:{s*1024}", "q8w"))
            else:
                for j in range(4):
                    out.append(f"v_accvgpr_write_b32 a{QF(qt, s)+j}, v{t+j}")
        return out

    def xreduce(op, regs):
        out = []
        for sw in ("32", "16"):
            for k, r in enumerate(regs):
                out.append(f"v_mov_b32 v{V_T+k}, v{r}")
            out.append(("nop", 2))
            for k, r in enumerate(regs):
                out.append(f"v_permlane{sw}_swap_b32 v{V_T+k}, v{r}")
            out.append(("nop", 1))
            for k, r in enumerate(regs):
                out.append(f"v_{op}_f32 v{r}, v{r}, v{V_T+k}")
        return out

    def p_group(regs):
        n = len(regs)
        T = [(V_T2 + 2 * k, V_T2 + 2 * k + 1) for k in range(n)]
        o = []
        for (R, mc, l), (ta, tb) in zip(regs, T):
            o += [f"v_lshlrev_b32 v{ta}, 16, v{R}", f"v_and_b32 v{tb}, 0xffff0000, v{R}"]
        for (R, mc, l), (ta, tb) in zip(regs, T):
            o += [f"v_fma_f32 v{ta}, v{ta}, s{S_C}, -v{mc}", f"v_fma_f32 v{tb}, v{tb}, s{S_C}, -v{mc}"]
        for (R, mc, l), (ta, tb) in zip(regs, T):
            o += [f"v_exp_f32 v{ta}, v{ta}", f"v_exp_f32 v{tb}, v{tb}"]
        for which in (0, 1):
            for (R, mc, l), tt in zip(regs, T):
                if l is not None:
                    o.append(f"v_add_f32 v{l}, v{l}, v{tt[which]}")
        for (R, mc, l), (ta, tb) in zip(regs, T):
            o.append(f"CV v{R}, v{ta}, v{tb}")
        return o

    def p_items(ci):
        regs = [(big(qt, ci) + j, V_MC + qt, V_L + qt) for j in range(4) for qt in range(NT)]
        return p_group(regs)

    epi_k = [0]

    def epi_block(areg, lreg, soff, sp):
        out = []
        tb = V_EP + (epi_k[0] % 2) * 12
        epi_k[0] += 1
        for j in range(8):
            out.append(f"v_accvgpr_read_b32 v{tb+j}, a{areg+j}")
        for j in range(8):
            out.append(f"v_mul_f32 v{tb+j}, v{tb+j}, v{lreg}")
        for j in range(4):
            out.append(f"CV v{tb+8+j}, v{tb+2*j}, v{tb+2*j+1}")
        out.append(f"s_add_u32 s{S_T2}, s{soff}, s{S_XW + (sp>>1)}")
        out.append(("st", f"buffer_store_dwordx4 v[{tb+8}:{tb+11}], v{V_ST}, s[{S_O}:{S_O+3}], s{S_T2} offen offset:{(sp&1)*1024} sc1"))
        return out

    def epi_items(s):
        out = []
        for qt in range(NT):
            out += epi_block((qt * 16 + 2 * s) * 4, V_L + qt, S_OQ + qt, s)
        return out

    def transition_q8():
        drain_all()
        e(f"v_mov_b32 v{V_M8}, 0xff800000")
        em.wait_lg("q8w")
        e("s_barrier")
        for s in range(8):
            em.ds(f"R {ar(QF(2, s),4)}, v{V_QX + (s>>1)}, {(s&1)*1024}", "q8r")
        em.nop(2)

    def transition_sm():
        drain_all()
        push(xreduce("max", [V_M, V_M + 1, V_M8]))
        drain_all()
        e(f"v_and_b32 v{t0}, 15, v{V_LANE}")
        e(f"v_lshlrev_b32 v{t0}, 2, v{t0}")
        e(f"v_add_u32 v{t0}, {SCR}, v{t0}")
        e(f"s_lshl_b32 s42, s{S_WAVE}, 6")
        e(f"v_add_u32 v{t1}, s42, v{t0}")
        em.ds(f"ds_write_b32 v{t1}, v{V_M8}", "m8w")
        for qt in range(NT):
            e(f"v_mul_f32 v{V_MC+qt}, s{S_C}, v{V_M+qt}")
            e(f"v_mov_b32 v{V_L+qt}, 0")
        e(f"s_lshr_b32 s42, s{S_WAVE}, 1")
        e("s_lshl_b32 s42, s42, 10")
        e(f"s_and_b32 s43, s{S_WAVE}, 1")
        e("s_lshl_b32 s43, s43, 3")
        e("s_add_u32 s42, s42, s43")
        e(f"v_add_u32 v{V_SCW}, s42, v{V_SC}")
        em.wait_lg("m8w")
        e("s_barrier")
        em.ds(f"ds_read2_b32 v[{t2}:{t3}], v{t0} offset0:0 offset1:16", "m8r")
        em.ds(f"ds_read2_b32 v[{t3+1}:{t3+2}], v{t0} offset0:32 offset1:48", "m8r")
        for s in p_items(0):
            e(s)
        em.wait_lg("m8r")
        e("s_barrier")
        e(f"v_max3_f32 v{V_M8}, v{t2}, v{t3}, v{t3+1}")
        e(f"v_max_f32 v{V_M8}, v{V_M8}, v{t3+2}")
        e(f"v_mul_f32 v{V_MC8}, s{S_C}, v{V_M8}")
        for h in range(0, 8, 4):
            regs = [(V_Q8 + 2 * j + k, V_MC8, None) for j in range(h, h + 4) for k in range(2)]
            for s in p_group(regs):
                e(s)
        for j in range(8):
            em.ds(f"ds_write_b64 v{V_SCW}, v[{V_Q8+2*j}:{V_Q8+2*j+1}] offset:{j*2048}", "p8w")
        em.wait_lg("p8w")
        e("s_barrier")
        em.ds(f"R {vr(V_P8,4)}, v{V_SC}, 0", "P8_0")
        em.nop(2)

    def mfmas(G):
        i, f = divmod(G, 16)
        kind, ci = chunks[i]
        fr = frag_reg(G)
        if kind == "V" and ci == 0 and f == 0:
            transition_sm()
        if kind == "W" and f == 0:
            em.wait_vm(f"x{ci}")
        if kind == "V" and f == 0 and ci > 0:
            drain_all()
            em.nop(2)
        em.wait_lg(f"F{G}")
        per = {"W": 3, "K": 2, "V": 3}[kind]
        for qt in range(NT):
            if kind == "W":
                d = vr(big(qt, f), 4)
                c = "0" if ci == 0 else d
                e(f"M {d}, {ar(fr,4)}, {ar((qt*14+ci)*4,4)}, {c}")
            elif kind == "K":
                kt, ks = f >> 3, f & 7
                if ks == 0:
                    assert not any(isinstance(x[1], str) and f"v{sacc(kt,qt)}," in x[1] for x in q), "pending S items"
                d = vr(sacc(kt, qt), 4)
                c = "0" if ks == 0 else d
                e(f"M {d}, {ar(fr,4)}, {ar(QF(qt,ks),4)}, {c}")
            else:
                d = ar((qt * 16 + f) * 4, 4)
                c = "0" if ci == 0 else d
                e(f"M {d}, {ar(fr,4)}, {vr(big(qt,ci),4)}, {c}")
            drain(per)
        if kind == "W" and f < 4:
            d = vr(V_Q8 + f * 4, 4)
            c = "0" if ci == 0 else d
            e(f"M {d}, {ar(fr,4)}, {ar((2*14+ci)*4,4)}, {c}")
            drain(per)
        elif kind == "K":
            kt, ks = f >> 3, f & 7
            if ks == 0:
                while any(isinstance(x[1], tuple) and x[1][0] == "blk" for x in q):
                    rdy, _ = q[0]
                    if rdy is not None and em.n < rdy:
                        em.nop(rdy - em.n)
                    drain(1)
            d = vr(V_S8, 4)
            c = "0" if ks == 0 else d
            if not FORK:
                k = 2 * (ci & 1) + kt
                lab[0] += 1
                L = f"Lk8_{lab[0]}"
                e(f"s_mov_b64 vcc, s[{S_OWN+2*k}:{S_OWN+2*k+1}]")
                e(f"s_cbranch_vccz {L}")
                e(f"M {d}, {ar(fr,4)}, {ar(QF(2,ks),4)}, {c}")
                em.raw(f"{L}:")
            elif st.get("extra"):
                e(f"M {d}, {ar(fr,4)}, {ar(QF(2,ks),4)}, {c}")
                em.n -= 1
        elif kind == "V":
            p8 = V_P8 + (ci & 1) * 4
            if f == 0 and ci + 1 < 16:
                em.ds(f"R {vr(V_P8 + ((ci+1)&1)*4, 4)}, v{V_SC}, {(ci+1)*1024}", f"P8_{ci+1}")
            if f < 4:
                em.wait_lg(f"P8_{ci}")
                d = ar(A_O8 + f * 4, 4)
                c = "0" if ci == 0 else d
                e(f"M {d}, {ar(fr,4)}, {vr(p8,4)}, {c}")
                drain(per)
                if f == 3:
                    d = ar(A_L8, 4)
                    c = "0" if ci == 0 else d
                    e(f"M {d}, {vr(V_ONE,4)}, {vr(p8,4)}, {c}")
                    drain(per)
        if kind == "W" and ci == 13 and (f & 1):
            push(qconv_items(f >> 1), after=em.n + 9)
        if kind == "K" and (f & 7) == 7:
            push(s_items(ci, f >> 3), after=em.n + 13)
        if kind == "V":
            if f == 0 and ci + 1 < 16:
                push(p_items(ci + 1))
            if ci == 15:
                if f == 0:
                    push(xreduce("add", [V_L, V_L + 1]))
                    push([f"v_rcp_f32 v{V_L+qt}, v{V_L+qt}" for qt in range(NT)])
                    push([("nop", 1)])
                if f == 5:
                    push([f"v_accvgpr_read_b32 v{V_M8}, a{A_L8}", f"v_rcp_f32 v{V_M8}, v{V_M8}", ("nop", 1)], after=em.n + 9)
                    for k in range(2):
                        push(epi_block(A_O8 + k * 8, V_M8, S_OQ + 2, k))
                if f & 1:
                    push(epi_items(f >> 1), after=em.n + 9)

    total = nsteps * 16
    st["li"] = 0

    def body(G):
        if G < total:
            i, f = divmod(G, 16)
            if f == 0:
                kind, ci = chunks[i]
                em.wait_vm(f"{kind}{ci}")
                e("s_barrier")
                if PROF:
                    e("s_memtime s[60:61]")
                    e("s_waitcnt lgkmcnt(0)")
                    em.lg = []
                    e(f"v_writelane_b32 v49, s60, {i}")
                while dq:
                    emit_dma(dq.pop(0))
                if i >= 2 and st["li"] < len(later):
                    c = later[st["li"]]
                    st["li"] += 1
                    slot_of[c] = slot_of[chunks[i - 2]]
                    issue(c, True)
                xload(i + PX)
                if i + 1 < NK0:
                    issue(("K", i + 1), True)
                if i == 0 or chunks[i - 1][0] != kind:
                    drain_all()
                    set_addr(kind)
                set_base(slot_of[chunks[i]] >> 2)
            reads(G)
        m = G - DREAD
        if m >= 0:
            mfmas(m)
        FS = int(os.environ.get("FS", "35"))
        if PROF and FS * 16 <= G < FS * 16 + 24:
            e("s_memtime s[60:61]")
            e("s_waitcnt lgkmcnt(0)")
            em.lg = []
            e(f"v_writelane_b32 v48, s60, {2*(G - FS*16)}")
        if dq:
            emit_dma(dq.pop(0))
        if PROF and FS * 16 <= G < FS * 16 + 24:
            e("s_memtime s[60:61]")
            e("s_waitcnt lgkmcnt(0)")
            em.lg = []
            e(f"v_writelane_b32 v48, s60, {2*(G - FS*16)+1}")

    import copy
    G = 0
    while G < total + DREAD:
        m = G - DREAD
        if not FORK and m == 14 * 16:
            transition_q8()
            em.wait_lg("q8r")
        if FORK and m >= 0 and chunks[m // 16][0] == "K" and (m & 7) == 0:
            ci, kt = chunks[m // 16][1], (m >> 3) & 1
            k = 2 * (ci & 1) + kt
            if ci == 0 and kt == 0:
                transition_q8()
                em.wait_lg("q8r")
            while any(isinstance(x[1], tuple) and x[1][0] == "blk" for x in q):
                rdy, _ = q[0]
                if rdy is not None and em.n < rdy:
                    em.nop(rdy - em.n)
                drain(1)
            lab[0] += 1
            LP, LJ = f"Lkp_{lab[0]}", f"Lkj_{lab[0]}"
            e(f"s_mov_b64 vcc, s[{S_OWN+2*k}:{S_OWN+2*k+1}]")
            e(f"s_cbranch_vccz {LP}")
            snap = (list(em.vm), list(em.lg), em.n, list(q), list(dq), dict(st), dict(slot_of), lab[0], list(epi_k))
            st["extra"] = True
            for g2 in range(G, G + 8):
                body(g2)
            e(f"s_branch {LJ}")
            em.raw(f"{LP}:")
            nA = em.n
            em.vm, em.lg, em.n = list(snap[0]), list(snap[1]), snap[2]
            q[:] = snap[3]
            dq[:] = snap[4]
            st.clear(); st.update(snap[5])
            slot_of.clear(); slot_of.update(snap[6])
            lab[0] = snap[7] + 1000
            st["extra"] = False
            for g2 in range(G, G + 8):
                body(g2)
            em.raw(f"{LJ}:")
            G += 8
        else:
            body(G)
            G += 1
    drain_all()
    if PROF:
        e("s_memtime s[60:61]")
        e("s_waitcnt lgkmcnt(0)")
        e("v_writelane_b32 v49, s60, 46")
        e("s_waitcnt vmcnt(0)")
        e("s_memtime s[60:61]")
        e("s_waitcnt lgkmcnt(0)")
        e("v_writelane_b32 v49, s60, 47")
        e("v_writelane_b32 v49, s62, 48")
        e("s_memrealtime s[60:61]")
        e("s_waitcnt lgkmcnt(0)")
        e("v_writelane_b32 v49, s60, 49")
        e("v_writelane_b32 v49, s64, 50")
        e("s_lshl_b32 s60, s2, 2")
        e(f"s_add_u32 s60, s60, s{S_WAVE}")
        e("s_lshl_b32 s60, s60, 8")
        e(f"s_add_u32 s60, s60, {32<<20}")
        e(f"v_lshlrev_b32 v50, 2, v{V_LANE}")
        e(f"s_mov_b32 s{S_O+2}, {64<<20}")
        e(f"buffer_store_dword v49, v50, s[{S_O}:{S_O+3}], s60 offen")
        e(f"s_add_u32 s60, s60, {2<<20}")
        e(f"buffer_store_dword v48, v50, s[{S_O}:{S_O+3}], s60 offen")
    tail(em)
    em.raw("L_k1_exit:")
    e("s_endpgm")


def tail(em):
    e = em.e
    NS = 9
    S_WO, S_OS, S_OUT, S_DB = 8, 12, 16, 20
    S_WG, S_WLD, S_TT, S_ST = 30, 31, 32, 33
    V_L, V_DMA, V_B, V_O, V_A = 1, 2, 3, 4, 6
    V_ACC = 12
    V_FR = 32
    V_BF = 64
    e("s_load_dwordx4 s[44:47], s[0:1], 32")
    e("s_load_dwordx2 s[48:49], s[0:1], 48")
    e("s_waitcnt vmcnt(0) lgkmcnt(0)")
    em.vm = []
    em.lg = []
    e("s_barrier")
    e(f"s_mov_b32 s{S_DB}, s48")
    e(f"s_mov_b32 s{S_DB+1}, s49")
    e(f"s_mov_b32 s{S_DB+2}, 256")
    e(f"s_mov_b32 s{S_DB+3}, 0x20000")
    e(f"s_cmp_lg_u32 s{S_WAVE}, 0")
    e("s_cbranch_scc1 L_nosig")
    e("s_lshl_b32 s42, s6, 2")
    e("v_mov_b32 v10, s42")
    e("v_mov_b32 v11, 1")
    e("s_mov_b64 exec, 1")
    e(f"buffer_atomic_add v11, v10, s[{S_DB}:{S_DB+3}], 0 offen sc1")
    e("s_mov_b64 exec, -1")
    em.raw("L_nosig:")
    e("s_and_b32 s3, s2, 7")
    e("s_lshr_b32 s4, s2, 3")
    e("s_lshl_b32 s3, s3, 5")
    e("s_add_u32 s3, s3, s4")
    e("s_cmp_ge_u32 s3, 252")
    e("s_cbranch_scc1 L_k1_exit")
    e("s_mul_i32 s4, s3, 9363")
    e("s_lshr_b32 s4, s4, 16")
    e("s_mul_i32 s5, s4, 7")
    e("s_sub_u32 s5, s3, s5")
    e("s_lshl_b32 s6, s5, 7")
    e(f"s_add_u32 s{S_WO}, s44, s6")
    e(f"s_addc_u32 s{S_WO+1}, s45, 0")
    e(f"s_sub_u32 s{S_WO+2}, {4096*896}, s6")
    e(f"s_mov_b32 s{S_WO+3}, 0x20000")
    e("s_lshl_b32 s7, s4, 2")
    e(f"s_add_u32 s7, s7, s{S_WAVE}")
    e("s_lshl_b32 s25, s7, 17")
    e(f"s_add_u32 s{S_OS}, s52, s25")
    e(f"s_addc_u32 s{S_OS+1}, s53, 0")
    e(f"s_mov_b32 s{S_OS+2}, 131072")
    e(f"s_mov_b32 s{S_OS+3}, 0x20000")
    e(f"s_mov_b32 s{S_OUT}, s46")
    e(f"s_mov_b32 s{S_OUT+1}, s47")
    e(f"s_mov_b32 s{S_OUT+2}, {2304*896}")
    e(f"s_mov_b32 s{S_OUT+3}, 0x20000")
    e(f"s_mul_i32 s{S_ST}, s7, {16*896}")
    e(f"s_add_u32 s{S_ST}, s{S_ST}, s6")
    e(f"s_mul_i32 s{S_WG}, s{S_WAVE}, {32*896}")
    e(f"s_lshl_b32 s{S_WLD}, s{S_WAVE}, 12")
    e(f"v_lshrrev_b32 v10, 3, v{V_L}")
    e("v_mul_u32_u24 v10, 896, v10")
    e(f"v_bfe_u32 v11, v{V_L}, 1, 2")
    e(f"v_lshrrev_b32 v12, 4, v{V_L}")
    e("v_xor_b32 v11, v11, v12")
    e("v_lshl_add_u32 v10, v11, 5, v10")
    e(f"v_and_b32 v11, 1, v{V_L}")
    e(f"v_lshl_add_u32 v{V_DMA}, v11, 4, v10")
    e(f"v_lshlrev_b32 v{V_B}, 4, v{V_L}")
    e(f"v_and_b32 v10, 15, v{V_L}")
    e("v_mul_u32_u24 v10, 896, v10")
    e(f"v_lshl_add_u32 v{V_O}, v12, 3, v10")
    e(f"v_bfe_u32 v10, v{V_L}, 2, 2")
    e("v_lshl_add_u32 v10, v12, 2, v10")
    e("v_bfe_u32 v11, v10, 1, 2")
    e("v_lshlrev_b32 v10, 7, v10")
    e("v_lshl_add_u32 v10, v11, 5, v10")
    e(f"v_and_b32 v11, 3, v{V_L}")
    e("v_lshl_add_u32 v10, v11, 3, v10")
    for u in range(4):
        e(f"v_xor_b32 v{V_A+u}, {u<<5}, v10")
    st = {"base": 0}
    NB = 6

    def dma_ops(cc):
        slot = cc % NS
        return [[f"s_add_u32 m0, s{S_WLD}, {slot*16384 + jj*1024}",
                 f"s_add_u32 s{S_TT}, s{S_WG}, {(cc*128 + jj*8)*896}",
                 (f"buffer_load_dwordx4 v{V_DMA}, s[{S_WO}:{S_WO+3}], s{S_TT} offen lds", f"D{cc}")] for jj in range(4)]

    def b_ops(cc):
        rs = cc % NB
        return [[f"s_mov_b32 s{S_TT}, {cc*4096}",
                 (f"buffer_load_dwordx4 {vr(V_BF + rs*16 + jj*4, 4)}, v{V_B}, s[{S_OS}:{S_OS+3}], s{S_TT} offen offset:{jj*1024} sc1", f"B{cc}")] for jj in range(4)]

    def emit_op(op):
        for x in op:
            if isinstance(x, tuple):
                em.vmem(x[0], x[1])
            else:
                e(x)

    for cc in range(NS - 2):
        for op in dma_ops(cc):
            emit_op(op)
    e(f"s_cmp_lg_u32 s{S_WAVE}, 0")
    e("s_cbranch_scc1 L_nopoll")
    e("s_lshl_b32 s42, s4, 2")
    e("s_mul_i32 s43, s42, 7282")
    e("s_lshr_b32 s43, s43, 16")
    e("s_add_u32 s42, s42, 3")
    e("s_mul_i32 s42, s42, 7282")
    e("s_lshr_b32 s42, s42, 16")
    e("s_lshl_b32 s42, s42, 2")
    e("s_lshl_b32 s43, s43, 2")
    e("v_mov_b32 v10, s43")
    e("v_writelane_b32 v10, s42, 1")
    e("s_mov_b32 s42, 0")
    e("s_mov_b64 exec, 3")
    em.raw("L_poll:")
    e(f"buffer_load_dword v11, v10, s[{S_DB}:{S_DB+3}], 0 offen sc1")
    e("s_waitcnt vmcnt(0)")
    e("v_cmp_le_u32 vcc, 16, v11")
    e("s_nop 1")
    e("s_cmp_eq_u64 vcc, 3")
    e("s_cbranch_scc1 L_polled")
    e("s_sleep 2")
    e("s_add_u32 s42, s42, 1")
    e("s_cmp_lt_u32 s42, 0x400000")
    e("s_cbranch_scc1 L_poll")
    em.raw("L_polled:")
    e("s_mov_b64 exec, -1")
    em.raw("L_nopoll:")
    e("s_barrier")
    for cc in range(NB):
        for op in b_ops(cc):
            emit_op(op)
    D = 4
    total = 32 * 16
    pend = []

    def reads(G):
        cc, f = divmod(G, 16)
        ss, u = f >> 2, f & 3
        slot = cc % NS
        if f == 0:
            grp = slot >> 2
            if grp != st["base"]:
                d = (grp - st["base"]) * 65536
                for b in range(4):
                    e(f"v_add_u32 v{V_A+b}, {d & 0xffffffff}, v{V_A+b}")
                st["base"] = grp
        off = (slot & 3) * 16384 + ss * 4096
        fr = V_FR + (G % 8) * 4
        em.ds(f"T {vr(fr,2)}, v{V_A+u}, {off}", f"F{G}")
        em.ds(f"T {vr(fr+2,2)}, v{V_A+u}, {off+2048}", f"F{G}")

    def mfma(G):
        cc, f = divmod(G, 16)
        ss, u = f >> 2, f & 3
        fr = V_FR + (G % 8) * 4
        if f == 0:
            em.wait_vm(f"B{cc}")
        em.wait_lg(f"F{G}")
        d = vr(V_ACC + u * 4, 4)
        c = "0" if (cc == 0 and ss == 0) else d
        e(f"M {d}, {vr(fr,4)}, {vr(V_BF + (cc % NB)*16 + ss*4, 4)}, {c}")
        if f == 0 and cc >= 1 and cc - 1 + NB < 32:
            pend.extend(b_ops(cc - 1 + NB))

    for G in range(total + D):
        if G < total:
            cc, f = divmod(G, 16)
            if f == 0:
                em.wait_vm(f"D{cc}")
                e("s_barrier")
                if cc - 2 + NS < 32:
                    pend.extend(dma_ops(cc - 2 + NS))
            reads(G)
        if G - D >= 0:
            mfma(G - D)
        if pend and (G & 1):
            emit_op(pend.pop(0))
    em.nop(9)
    for u in range(4):
        a = V_ACC + u * 4
        e(f"CV v{28+ (u%2)*2}, v{a}, v{a+1}")
        e(f"CV v{29+ (u%2)*2}, v{a+2}, v{a+3}")
        e(f"buffer_store_dwordx2 v[{28+(u%2)*2}:{29+(u%2)*2}], v{V_O}, s[{S_OUT}:{S_OUT+3}], s{S_ST} offen offset:{u*32}")


def kd(name, vgpr, acc):
    return f""".p2align 6
.amdhsa_kernel {name}
  .amdhsa_next_free_vgpr {vgpr}
  .amdhsa_next_free_sgpr 102
  .amdhsa_accum_offset {acc}
  .amdhsa_group_segment_fixed_size 0
  .amdhsa_kernarg_size 64
  .amdhsa_user_sgpr_count 2
  .amdhsa_user_sgpr_kernarg_segment_ptr 1
  .amdhsa_system_sgpr_workgroup_id_x 1
.end_amdhsa_kernel
"""


def main():
    em = Em()
    k1(em)
    for t in range(144):
        assert (t * 7282) >> 16 == t // 9
    txt = HEADER + "\n".join(em.lines) + "\n"
    txt += '.section .rodata,"a"\n' + kd("standalone__mha_block_cached__near_ridge_kernel", 512, 256)
    open(OUT, "w").write(txt)
    print("wrote", OUT, len(txt), "bytes")


main()
```

```python
import math, sys, os, struct

OUT = sys.argv[1] if len(sys.argv) > 1 else "standalone__mha_block_cached__near_ridge.s"
PROF = os.environ.get("PROF", "0") == "1"
NSLOT = 9
NW0 = int(os.environ.get("NW0", "4"))
NK0 = NSLOT - NW0
ROT = int(os.environ.get("ROT", "3"))
FORK = int(os.environ.get("FORK", "0"))
PREF = int(os.environ.get("PREF", "1"))
PX = int(os.environ.get("PX", "4"))
DREAD = int(os.environ.get("DREAD", "5"))
KVNT = os.environ.get("KVNT", " nt")
K2NS = int(os.environ.get("K2NS", "7"))
K2NT = " nt" if os.environ.get("K2NT", "0") == "1" else ""

HEADER = f"""; Kernarg layout for this problem (64 bytes, ptrs only, base s[0:1]):
; @launch grid=(256,1,1) block=(256,1,1) lds=163840
.amdgcn_target "amdgcn-amd-amdhsa--gfx950"
.macro M d, a, b, c
v_mfma_f32_16x16x32_bf16 \\d, \\a, \\b, \\c
.endm
.macro T d, a, o
ds_read_b64_tr_b16 \\d, \\a offset:\\o
.endm
.macro R d, a, o
ds_read_b128 \\d, \\a offset:\\o
.endm
.macro WL n
s_waitcnt lgkmcnt(\\n)
.endm
.macro CV d, a, b
v_cvt_pk_bf16_f32 \\d, \\a, \\b
.endm
.text
"""


class Em:
    def __init__(self):
        self.lines = []
        self.vm = []
        self.lg = []
        self.n = 0

    def e(self, s):
        self.lines.append(s)
        self.n += 1

    def raw(self, s):
        self.lines.append(s)

    def vmem(self, s, tag):
        self.e(s)
        self.vm.append(tag)

    def ds(self, s, tag):
        self.e(s)
        self.lg.append(tag)

    def wait_vm(self, tag):
        idx = max([i for i, t in enumerate(self.vm) if t == tag], default=-1)
        if idx < 0:
            return
        n = min(len(self.vm) - 1 - idx, 63)
        self.e(f"s_waitcnt vmcnt({n})")
        self.vm = self.vm[len(self.vm) - n:] if n > 0 else []

    def wait_lg(self, tag):
        idx = max([i for i, t in enumerate(self.lg) if t == tag], default=-1)
        if idx < 0:
            return
        n = min(len(self.lg) - 1 - idx, 15)
        self.e(f"WL {n}")
        self.lg = self.lg[len(self.lg) - n:] if n > 0 else []

    def nop(self, states):
        while states > 0:
            k = min(states, 16)
            self.e(f"s_nop {k-1}")
            self.n += k - 1
            states -= k


def vr(b, n=1):
    return f"v{b}" if n == 1 else f"v[{b}:{b+n-1}]"


def ar(b, n=1):
    return f"a{b}" if n == 1 else f"a[{b}:{b+n-1}]"


S_X, S_K, S_V, S_W, S_O = 8, 12, 16, 20, 24
S_WAVE = 28
S_C = 29
S_XQ = 32
S_OQ = 36
S_T = 40
S_T2 = 41
V_LANE = 1
V_ADDR = 2
V_D = 10
V_XO = 14
V_ST = 15
V_SACC = 16
V_M = 40
V_L = 43
V_MC = 46
V_T = 50
V_BIG = 64
A_FR = 192


V_Q8 = 192
V_S8 = 208
V_P8 = 212
V_ONE = 220
V_SC = 224
V_M8, V_MC8 = 225, 226
V_SCW = 227
V_T2 = 228
V_QX = 244
V_AD = 248
V_A16 = 16
V_SACC2 = 32
V_EP = 228
A_O8 = 128
A_L8 = 144
SCR = 9 * 16384
S_WL, S_KL = 54, 55
S_XW = 56
S_OWN = 66


def k1(em):
    e = em.e
    global V_M, V_L, V_MC
    V_M, V_L, V_MC = 2, 4, 6
    V_WD, V_KD = 8, 9
    em.raw(".globl standalone__mha_block_cached__near_ridge_kernel\n.p2align 8\n.type standalone__mha_block_cached__near_ridge_kernel,@function\nstandalone__mha_block_cached__near_ridge_kernel:")
    e("s_cmp_ge_u32 s2, 256")
    e("s_cbranch_scc1 L_k1_exit")
    if PROF:
        e("s_memtime s[62:63]")
        e("s_memrealtime s[64:65]")
    e("s_load_dwordx8 s[44:51], s[0:1], 0")
    e("s_load_dwordx2 s[52:53], s[0:1], 56")
    if PREF:
        e("s_getpc_b64 s[76:77]")
        e("s_lshr_b32 s4, s2, 3")
        e("s_cmp_ge_u32 s4, 17")
        e("s_cbranch_scc1 L_nopref")
        e("s_lshl_b32 s4, s4, 12")
        e("v_lshlrev_b32 v2, 4, v0")
        e("v_add_u32 v2, s4, v2")
        e("global_load_dwordx4 v[4:7], v2, s[76:77]")
        em.raw("L_nopref:")
    e("s_and_b32 s3, s2, 7")
    e("s_lshr_b32 s4, s2, 3")
    MAPH = int(os.environ.get("MAPH", "4"))
    lg = {4: 2, 8: 3, 16: 4}[MAPH]
    e(f"s_and_b32 s5, s3, {16 // MAPH - 1}")
    e(f"s_lshl_b32 s5, s5, {lg}")
    e(f"s_and_b32 s6, s4, {MAPH - 1}")
    e("s_add_u32 s5, s5, s6")
    e(f"s_lshr_b32 s6, s3, {4 - lg}")
    e(f"s_lshl_b32 s6, s6, {5 - lg}")
    e(f"s_lshr_b32 s7, s4, {lg}")
    e("s_add_u32 s6, s6, s7")
    e(f"v_and_b32 v{V_LANE}, 63, v0")
    e("v_lshrrev_b32 v2, 6, v0")
    e("s_nop 0")
    e(f"v_readfirstlane_b32 s{S_WAVE}, v2")
    e(f"s_mov_b32 s{S_C}, {hex(struct.unpack('<I', struct.pack('<f', math.log2(math.e)/16.0))[0])}")
    e("s_waitcnt lgkmcnt(0)")
    e("s_mul_i32 s7, s6, 129024")
    e(f"s_add_u32 s{S_X}, s44, s7")
    e(f"s_addc_u32 s{S_X+1}, s45, 0")
    e(f"s_mov_b32 s{S_X+2}, 129024")
    e(f"s_mov_b32 s{S_X+3}, 0x20000")
    e("s_lshl_b32 s7, s6, 4")
    e("s_add_u32 s7, s7, s5")
    e("s_lshl_b32 s7, s7, 18")
    e(f"s_add_u32 s{S_K}, s46, s7")
    e(f"s_addc_u32 s{S_K+1}, s47, 0")
    e(f"s_mov_b32 s{S_K+2}, 262144")
    e(f"s_mov_b32 s{S_K+3}, 0x20000")
    e(f"s_add_u32 s{S_V}, s48, s7")
    e(f"s_addc_u32 s{S_V+1}, s49, 0")
    e(f"s_mov_b32 s{S_V+2}, 262144")
    e(f"s_mov_b32 s{S_V+3}, 0x20000")
    e("s_lshl_b32 s7, s5, 9")
    e(f"s_add_u32 s{S_W}, s50, s7")
    e(f"s_addc_u32 s{S_W+1}, s51, 0")
    e(f"s_mov_b32 s{S_W+2}, {447*8192+512}")
    e(f"s_mov_b32 s{S_W+3}, 0x20000")
    e(f"s_mov_b32 s{S_O}, s52")
    e(f"s_mov_b32 s{S_O+1}, s53")
    e(f"s_mov_b32 s{S_O+2}, {144*128*1024}")
    e(f"s_mov_b32 s{S_O+3}, 0x20000")
    e(f"s_lshl_b32 s7, s{S_WAVE}, 1")
    for qt in range(3):
        if qt < 2:
            e(f"s_add_u32 s42, s7, {qt}")
        else:
            e("s_mov_b32 s42, 8")
        e(f"s_mul_i32 s{S_XQ+qt}, s42, 14336")
        e("s_mul_i32 s43, s6, 9")
        e("s_add_u32 s43, s43, s42")
        e("s_lshl_b32 s43, s43, 7")
        e("s_lshl_b32 s42, s5, 3")
        e("s_add_u32 s43, s43, s42")
        e(f"s_lshl_b32 s{S_OQ+qt}, s43, 10")
    e("s_mul_i32 s78, s4, 3")
    e("s_mul_i32 s42, s78, 4682")
    e("s_lshr_b32 s42, s42, 16")
    e("s_mul_i32 s42, s42, 14")
    e("s_sub_u32 s78, s78, s42")
    if not (ROT & 1):
        e("s_mov_b32 s78, 0")
    for a in range(4):
        e(f"s_xor_b32 s42, s{S_WAVE}, {a}")
        e(f"s_lshl_b32 s{S_XW+a}, s42, 11")
    for k in range(4):
        e(f"s_cmp_eq_u32 s{S_WAVE}, {k}")
        e(f"s_cselect_b64 s[{S_OWN+2*k}:{S_OWN+2*k+1}], -1, 0")
    t0, t1, t2, t3 = V_T, V_T + 1, V_T + 2, V_T + 3
    e(f"v_and_b32 v{t0}, 15, v{V_LANE}")
    e(f"v_mul_u32_u24 v{t0}, 896, v{t0}")
    e(f"v_lshrrev_b32 v{t1}, 4, v{V_LANE}")
    e(f"v_lshl_add_u32 v{V_XO}, v{t1}, 4, v{t0}")
    e(f"v_lshlrev_b32 v{V_ST}, 4, v{V_LANE}")
    e(f"s_lshl_b32 s42, s{S_WAVE}, 1")
    e(f"s_lshl_b32 s{S_KL}, s{S_WAVE}, 10")
    e(f"v_lshrrev_b32 v{t0}, 5, v{V_LANE}")
    e(f"v_add_u32 v{t0}, s42, v{t0}")
    e(f"v_and_b32 v{t1}, 31, v{V_LANE}")
    e(f"v_lshlrev_b32 v{t2}, 1, v{t0}")
    e(f"v_xor_b32 v{t2}, v{t1}, v{t2}")
    e(f"v_lshlrev_b32 v{t2}, 4, v{t2}")
    e(f"v_lshl_add_u32 v{V_KD}, v{t0}, 9, v{t2}")
    e(f"s_and_b32 s42, s{S_WAVE}, 1")
    e("s_lshl_b32 s42, s42, 1")
    e(f"s_lshr_b32 s43, s{S_WAVE}, 1")
    e("s_lshl_b32 s43, s43, 3")
    e("s_add_u32 s42, s42, s43")
    e(f"s_lshl_b32 s{S_WL}, s42, 9")
    e(f"v_lshrrev_b32 v{t0}, 5, v{V_LANE}")
    e(f"v_add_u32 v{t0}, s42, v{t0}")
    e(f"v_and_b32 v{t2}, 3, v{t0}")
    e(f"v_bfe_u32 v{t3}, v{t0}, 3, 1")
    e(f"v_lshl_add_u32 v{t2}, v{t3}, 2, v{t2}")
    e(f"v_lshlrev_b32 v{t2}, 1, v{t2}")
    e(f"v_xor_b32 v{t2}, v{t1}, v{t2}")
    e(f"v_lshlrev_b32 v{t2}, 4, v{t2}")
    e(f"v_lshl_add_u32 v{V_WD}, v{t0}, 13, v{t2}")
    e(f"v_lshlrev_b32 v{V_SC}, 4, v{V_LANE}")
    e(f"v_add_u32 v{V_SC}, {SCR}, v{V_SC}")
    for a in range(4):
        e(f"v_add_u32 v{V_QX+a}, s{S_XW+a}, v{V_SC}")
    for j in range(4):
        e(f"v_mov_b32 v{V_ONE+j}, 0x3f803f80")

    NT = 2
    chunks = [("W", i) for i in range(14)] + [("K", i) for i in range(16)] + [("V", i) for i in range(16)]
    nsteps = len(chunks)
    slot_of = {}
    init = [("W", i) for i in range(NW0)] + [("K", i) for i in range(NK0)]
    for s_, c in enumerate(init):
        slot_of[c] = s_
    later = [c for c in chunks if c not in slot_of]
    dq = []

    def kc(c, dst):
        e(f"s_add_u32 s{dst}, s78, {c}")
        e(f"s_cmp_ge_u32 s{dst}, 14")
        e(f"s_cselect_b32 s79, 14, 0")
        e(f"s_sub_u32 s{dst}, s{dst}, s79")

    def emit_dma(item):
        sl, lds, goff, vo, srd, nt, tag = item
        if srd == S_W:
            ci, jr = goff
            if jr == 0:
                kc(ci, 80)
                e("s_lshl_b32 s80, s80, 18")
            e(f"s_add_u32 m0, s{sl}, {lds}")
            e(f"s_add_u32 s{S_T}, s80, {jr*8192}")
        else:
            e(f"s_add_u32 m0, s{sl}, {lds}")
            e(f"s_mov_b32 s{S_T}, {goff}")
        em.vmem(f"buffer_load_dwordx4 v{vo}, s[{srd}:{srd+3}], s{S_T} offen{nt} lds", tag)

    def issue(chunk, defer=False):
        kind, ci = chunk
        slot = slot_of[chunk]
        tag = f"{kind}{ci}"
        its = []
        if kind == "W":
            for jr in (0, 4, 16, 20):
                its.append((S_WL, slot * 16384 + jr * 512, (ci, jr), V_WD, S_W, "", tag))
        else:
            srd = S_K if kind == "K" else S_V
            for jj in range(4):
                its.append((S_KL, slot * 16384 + jj * 4096, ci * 16384 + jj * 4096, V_KD, srd, KVNT, tag))
        for it in its:
            if defer:
                dq.append(it)
            else:
                emit_dma(it)

    def xload(c):
        if c < 14:
            kc(c, 81)
            e("s_lshl_b32 s81, s81, 6")
            for qt in range(3):
                e(f"s_add_u32 s82, s81, s{S_XQ+qt}")
                em.vmem(f"buffer_load_dwordx4 {ar((qt*14+c)*4,4)}, v{V_XO}, s[{S_X}:{S_X+3}], s82 offen", f"x{c}")

    for c in range(max(NW0, PX)):
        if c < NW0:
            issue(("W", c))
        if c < PX:
            xload(c)
    issue(("K", 0))
    st = {"base": 0}

    def set_addr(kind):
        e(f"v_lshrrev_b32 v{t0}, 4, v{V_LANE}")
        e(f"v_bfe_u32 v{t1}, v{V_LANE}, 2, 2")
        e(f"v_and_b32 v{t2}, 3, v{V_LANE}")
        if kind == "W":
            e(f"v_lshl_add_u32 v{t3}, v{t0}, 3, v{t1}")
            e(f"v_lshlrev_b32 v{t3}, 9, v{t3}")
            e(f"v_and_b32 v{t0}, 1, v{t0}")
            e(f"v_lshl_add_u32 v{t0}, v{t0}, 2, v{t1}")
            e(f"v_lshl_add_u32 v{t3}, v{t0}, 5, v{t3}")
            e(f"v_lshl_add_u32 v{t3}, v{t2}, 3, v{t3}")
            nb, sh = 16, 5
        elif kind == "V":
            e(f"v_lshl_add_u32 v{t0}, v{t0}, 2, v{t1}")
            e(f"v_lshlrev_b32 v{t3}, 9, v{t0}")
            e(f"v_and_b32 v{t0}, 7, v{t0}")
            e(f"v_lshl_add_u32 v{t3}, v{t0}, 5, v{t3}")
            e(f"v_lshl_add_u32 v{t3}, v{t2}, 3, v{t3}")
            nb, sh = 16, 5
        else:
            e(f"v_and_b32 v{t1}, 15, v{V_LANE}")
            e(f"v_lshlrev_b32 v{t3}, 9, v{t1}")
            e(f"v_and_b32 v{t1}, 7, v{t1}")
            e(f"v_lshlrev_b32 v{t1}, 1, v{t1}")
            e(f"v_xor_b32 v{t1}, v{t0}, v{t1}")
            e(f"v_lshl_add_u32 v{t3}, v{t1}, 4, v{t3}")
            nb, sh = 8, 6
        e(f"s_lshl_b32 s42, s{S_WAVE}, 7")
        e(f"v_xor_b32 v{t3}, s42, v{t3}")
        for b in range(nb):
            e(f"v_xor_b32 v{V_A16+b}, {b << sh}, v{t3}")
        st["base"] = 0
        st["nb"] = nb

    def set_base(grp):
        if grp != st["base"]:
            d = (grp - st["base"]) * 65536
            for b in range(st["nb"]):
                e(f"v_add_u32 v{V_A16+b}, {d & 0xffffffff}, v{V_A16+b}")
            st["base"] = grp

    def frag_reg(G):
        return A_FR + (G % 16) * 4

    def reads(G):
        i, f = divmod(G, 16)
        kind, ci = chunks[i]
        slot = slot_of[chunks[i]]
        sb = (slot & 3) * 16384
        fr = frag_reg(G)
        tag = f"F{G}"
        if kind == "K":
            kt, ks = f >> 3, f & 7
            em.ds(f"R {ar(fr,4)}, v{V_A16+ks}, {sb + kt*8192}", tag)
        else:
            second = 2048 if kind == "W" else 8192
            em.ds(f"T {ar(fr,2)}, v{V_A16+f}, {sb}", tag)
            em.ds(f"T {ar(fr+2,2)}, v{V_A16+f}, {sb + second}", tag)

    def big(qt, idx):
        return V_BIG + (qt * 16 + idx) * 4

    def sacc(kt, qt):
        return V_SACC2 + (kt * 2 + qt) * 4

    def QF(qt, s):
        return (qt * 14 + s) * 4

    def s8reg(ci):
        return V_Q8 + (ci >> 1) * 2

    q = []
    lab = [0]

    def push(instrs, after=None):
        for k, s in enumerate(instrs):
            q.append((after if k == 0 else None, s))

    def drain(cnt):
        k = 0
        while q and k < cnt:
            rdy, s = q[0]
            if rdy is not None and em.n < rdy:
                return
            q.pop(0)
            if isinstance(s, tuple):
                if s[0] == "nop":
                    em.nop(s[1])
                elif s[0] == "st":
                    em.vmem(s[1], "st")
                elif s[0] == "ds":
                    em.ds(s[1], s[2])
                elif s[0] == "blk":
                    for x in s[1]:
                        if x.endswith(":"):
                            em.raw(x)
                        else:
                            e(x)
            else:
                e(s)
            k += 1

    def drain_all():
        while q:
            rdy, s = q[0]
            if rdy is not None and em.n < rdy:
                em.nop(rdy - em.n)
            drain(1)

    def s_items(ci, kt):
        out = []
        for qt in range(NT):
            a, m, dst = sacc(kt, qt), V_M + qt, big(qt, ci) + 2 * kt
            if ci == 0 and kt == 0:
                out.append(f"v_max_f32 v{m}, v{a}, v{a+1}")
            else:
                out.append(f"v_max3_f32 v{m}, v{a}, v{a+1}, v{m}")
            out.append(f"CV v{dst}, v{a}, v{a+1}")
            out.append(f"v_max3_f32 v{m}, v{a+2}, v{a+3}, v{m}")
            out.append(f"CV v{dst+1}, v{a+2}, v{a+3}")
        k = 2 * (ci & 1) + kt
        lab[0] += 1
        L = f"Ls8_{lab[0]}"
        a, m, dst = V_S8, V_M8, s8reg(ci)
        blk = [f"s_mov_b64 vcc, s[{S_OWN+2*k}:{S_OWN+2*k+1}]", f"s_cbranch_vccz {L}",
               f"v_max3_f32 v{m}, v{a}, v{a+1}, v{m}", f"CV v{dst}, v{a}, v{a+1}",
               f"v_max3_f32 v{m}, v{a+2}, v{a+3}, v{m}", f"CV v{dst+1}, v{a+2}, v{a+3}", f"{L}:"]
        out.append(("blk", blk))
        return out

    def qconv_items(s):
        out = []
        tl = [(V_T + qt * 4, big(qt, 2 * s), big(qt, 2 * s + 1), qt) for qt in range(NT)]
        if s < 2:
            tl.append((V_T + 8, V_Q8 + (2 * s) * 4, V_Q8 + (2 * s + 1) * 4, 8))
        for t, p0, p1, qt in tl:
            out += [f"CV v{t}, v{p0}, v{p0+1}", f"CV v{t+1}, v{p0+2}, v{p0+3}",
                    f"CV v{t+2}, v{p1}, v{p1+1}", f"CV v{t+3}, v{p1+2}, v{p1+3}"]
        out.append(("nop", 2))
        for t, *_ in tl:
            out += [f"v_permlane32_swap_b32 v{t}, v{t+2}", f"v_permlane32_swap_b32 v{t+1}, v{t+3}"]
        out.append(("nop", 2))
        for t, *_ in tl:
            out += [f"v_permlane16_swap_b32 v{t}, v{t+2}", f"v_permlane16_swap_b32 v{t+1}, v{t+3}"]
        out.append(("nop", 1))
        for t, p0, p1, qt in tl:
            if qt == 8:
                out.append(("ds", f"ds_write_b128 v{V_QX}, v[{t}:{t+3}] offset:{s*1024}", "q8w"))
            else:
                for j in range(4):
                    out.append(f"v_accvgpr_write_b32 a{QF(qt, s)+j}, v{t+j}")
        return out

    def xreduce(op, regs):
        out = []
        for sw in ("32", "16"):
            for k, r in enumerate(regs):
                out.append(f"v_mov_b32 v{V_T+k}, v{r}")
            out.append(("nop", 2))
            for k, r in enumerate(regs):
                out.append(f"v_permlane{sw}_swap_b32 v{V_T+k}, v{r}")
            out.append(("nop", 1))
            for k, r in enumerate(regs):
                out.append(f"v_{op}_f32 v{r}, v{r}, v{V_T+k}")
        return out

    def p_group(regs):
        n = len(regs)
        T = [(V_T2 + 2 * k, V_T2 + 2 * k + 1) for k in range(n)]
        o = []
        for (R, mc, l), (ta, tb) in zip(regs, T):
            o += [f"v_lshlrev_b32 v{ta}, 16, v{R}", f"v_and_b32 v{tb}, 0xffff0000, v{R}"]
        for (R, mc, l), (ta, tb) in zip(regs, T):
            o += [f"v_fma_f32 v{ta}, v{ta}, s{S_C}, -v{mc}", f"v_fma_f32 v{tb}, v{tb}, s{S_C}, -v{mc}"]
        for (R, mc, l), (ta, tb) in zip(regs, T):
            o += [f"v_exp_f32 v{ta}, v{ta}", f"v_exp_f32 v{tb}, v{tb}"]
        for which in (0, 1):
            for (R, mc, l), tt in zip(regs, T):
                if l is not None:
                    o.append(f"v_add_f32 v{l}, v{l}, v{tt[which]}")
        for (R, mc, l), (ta, tb) in zip(regs, T):
            o.append(f"CV v{R}, v{ta}, v{tb}")
        return o

    def p_items(ci):
        regs = [(big(qt, ci) + j, V_MC + qt, V_L + qt) for j in range(4) for qt in range(NT)]
        return p_group(regs)

    epi_k = [0]

    def epi_block(areg, lreg, soff, sp):
        out = []
        tb = V_EP + (epi_k[0] % 2) * 12
        epi_k[0] += 1
        for j in range(8):
            out.append(f"v_accvgpr_read_b32 v{tb+j}, a{areg+j}")
        for j in range(8):
            out.append(f"v_mul_f32 v{tb+j}, v{tb+j}, v{lreg}")
        for j in range(4):
            out.append(f"CV v{tb+8+j}, v{tb+2*j}, v{tb+2*j+1}")
        out.append(f"s_add_u32 s{S_T2}, s{soff}, s{S_XW + (sp>>1)}")
        out.append(("st", f"buffer_store_dwordx4 v[{tb+8}:{tb+11}], v{V_ST}, s[{S_O}:{S_O+3}], s{S_T2} offen offset:{(sp&1)*1024} sc1"))
        return out

    def epi_items(s):
        out = []
        for qt in range(NT):
            out += epi_block((qt * 16 + 2 * s) * 4, V_L + qt, S_OQ + qt, s)
        return out

    def transition_q8():
        drain_all()
        e(f"v_mov_b32 v{V_M8}, 0xff800000")
        em.wait_lg("q8w")
        e("s_barrier")
        for s in range(8):
            em.ds(f"R {ar(QF(2, s),4)}, v{V_QX + (s>>1)}, {(s&1)*1024}", "q8r")
        em.nop(2)

    def transition_sm():
        drain_all()
        push(xreduce("max", [V_M, V_M + 1, V_M8]))
        drain_all()
        e(f"v_and_b32 v{t0}, 15, v{V_LANE}")
        e(f"v_lshlrev_b32 v{t0}, 2, v{t0}")
        e(f"v_add_u32 v{t0}, {SCR}, v{t0}")
        e(f"s_lshl_b32 s42, s{S_WAVE}, 6")
        e(f"v_add_u32 v{t1}, s42, v{t0}")
        em.ds(f"ds_write_b32 v{t1}, v{V_M8}", "m8w")
        for qt in range(NT):
            e(f"v_mul_f32 v{V_MC+qt}, s{S_C}, v{V_M+qt}")
            e(f"v_mov_b32 v{V_L+qt}, 0")
        e(f"s_lshr_b32 s42, s{S_WAVE}, 1")
        e("s_lshl_b32 s42, s42, 10")
        e(f"s_and_b32 s43, s{S_WAVE}, 1")
        e("s_lshl_b32 s43, s43, 3")
        e("s_add_u32 s42, s42, s43")
        e(f"v_add_u32 v{V_SCW}, s42, v{V_SC}")
        em.wait_lg("m8w")
        e("s_barrier")
        em.ds(f"ds_read2_b32 v[{t2}:{t3}], v{t0} offset0:0 offset1:16", "m8r")
        em.ds(f"ds_read2_b32 v[{t3+1}:{t3+2}], v{t0} offset0:32 offset1:48", "m8r")
        for s in p_items(0):
            e(s)
        em.wait_lg("m8r")
        e("s_barrier")
        e(f"v_max3_f32 v{V_M8}, v{t2}, v{t3}, v{t3+1}")
        e(f"v_max_f32 v{V_M8}, v{V_M8}, v{t3+2}")
        e(f"v_mul_f32 v{V_MC8}, s{S_C}, v{V_M8}")
        for h in range(0, 8, 4):
            regs = [(V_Q8 + 2 * j + k, V_MC8, None) for j in range(h, h + 4) for k in range(2)]
            for s in p_group(regs):
                e(s)
        for j in range(8):
            em.ds(f"ds_write_b64 v{V_SCW}, v[{V_Q8+2*j}:{V_Q8+2*j+1}] offset:{j*2048}", "p8w")
        em.wait_lg("p8w")
        e("s_barrier")
        em.ds(f"R {vr(V_P8,4)}, v{V_SC}, 0", "P8_0")
        em.nop(2)

    def mfmas(G):
        i, f = divmod(G, 16)
        kind, ci = chunks[i]
        fr = frag_reg(G)
        if kind == "V" and ci == 0 and f == 0:
            transition_sm()
        if kind == "W" and f == 0:
            em.wait_vm(f"x{ci}")
        if kind == "V" and f == 0 and ci > 0:
            drain_all()
            em.nop(2)
        em.wait_lg(f"F{G}")
        per = {"W": 3, "K": 2, "V": 3}[kind]
        for qt in range(NT):
            if kind == "W":
                d = vr(big(qt, f), 4)
                c = "0" if ci == 0 else d
                e(f"M {d}, {ar(fr,4)}, {ar((qt*14+ci)*4,4)}, {c}")
            elif kind == "K":
                kt, ks = f >> 3, f & 7
                if ks == 0:
                    assert not any(isinstance(x[1], str) and f"v{sacc(kt,qt)}," in x[1] for x in q), "pending S items"
                d = vr(sacc(kt, qt), 4)
                c = "0" if ks == 0 else d
                e(f"M {d}, {ar(fr,4)}, {ar(QF(qt,ks),4)}, {c}")
            else:
                d = ar((qt * 16 + f) * 4, 4)
                c = "0" if ci == 0 else d
                e(f"M {d}, {ar(fr,4)}, {vr(big(qt,ci),4)}, {c}")
            drain(per)
        if kind == "W" and f < 4:
            d = vr(V_Q8 + f * 4, 4)
            c = "0" if ci == 0 else d
            e(f"M {d}, {ar(fr,4)}, {ar((2*14+ci)*4,4)}, {c}")
            drain(per)
        elif kind == "K":
            kt, ks = f >> 3, f & 7
            if ks == 0:
                while any(isinstance(x[1], tuple) and x[1][0] == "blk" for x in q):
                    rdy, _ = q[0]
                    if rdy is not None and em.n < rdy:
                        em.nop(rdy - em.n)
                    drain(1)
            d = vr(V_S8, 4)
            c = "0" if ks == 0 else d
            if not FORK:
                k = 2 * (ci & 1) + kt
                lab[0] += 1
                L = f"Lk8_{lab[0]}"
                e(f"s_mov_b64 vcc, s[{S_OWN+2*k}:{S_OWN+2*k+1}]")
                e(f"s_cbranch_vccz {L}")
                e(f"M {d}, {ar(fr,4)}, {ar(QF(2,ks),4)}, {c}")
                em.raw(f"{L}:")
            elif st.get("extra"):
                e(f"M {d}, {ar(fr,4)}, {ar(QF(2,ks),4)}, {c}")
                em.n -= 1
        elif kind == "V":
            p8 = V_P8 + (ci & 1) * 4
            if f == 0 and ci + 1 < 16:
                em.ds(f"R {vr(V_P8 + ((ci+1)&1)*4, 4)}, v{V_SC}, {(ci+1)*1024}", f"P8_{ci+1}")
            if f < 4:
                em.wait_lg(f"P8_{ci}")
                d = ar(A_O8 + f * 4, 4)
                c = "0" if ci == 0 else d
                e(f"M {d}, {ar(fr,4)}, {vr(p8,4)}, {c}")
                drain(per)
                if f == 3:
                    d = ar(A_L8, 4)
                    c = "0" if ci == 0 else d
                    e(f"M {d}, {vr(V_ONE,4)}, {vr(p8,4)}, {c}")
                    drain(per)
        if kind == "W" and ci == 13 and (f & 1):
            push(qconv_items(f >> 1), after=em.n + 9)
        if kind == "K" and (f & 7) == 7:
            push(s_items(ci, f >> 3), after=em.n + 13)
        if kind == "V":
            if f == 0 and ci + 1 < 16:
                push(p_items(ci + 1))
            if ci == 15:
                if f == 0:
                    push(xreduce("add", [V_L, V_L + 1]))
                    push([f"v_rcp_f32 v{V_L+qt}, v{V_L+qt}" for qt in range(NT)])
                    push([("nop", 1)])
                if f == 5:
                    push([f"v_accvgpr_read_b32 v{V_M8}, a{A_L8}", f"v_rcp_f32 v{V_M8}, v{V_M8}", ("nop", 1)], after=em.n + 9)
                    for k in range(2):
                        push(epi_block(A_O8 + k * 8, V_M8, S_OQ + 2, k))
                if f & 1:
                    push(epi_items(f >> 1), after=em.n + 9)

    total = nsteps * 16
    st["li"] = 0

    def body(G):
        if G < total:
            i, f = divmod(G, 16)
            if f == 0:
                kind, ci = chunks[i]
                em.wait_vm(f"{kind}{ci}")
                e("s_barrier")
                if PROF:
                    e("s_memtime s[60:61]")
                    e("s_waitcnt lgkmcnt(0)")
                    em.lg = []
                    e(f"v_writelane_b32 v49, s60, {i}")
                while dq:
                    emit_dma(dq.pop(0))
                if i >= 2 and st["li"] < len(later):
                    c = later[st["li"]]
                    st["li"] += 1
                    slot_of[c] = slot_of[chunks[i - 2]]
                    issue(c, True)
                xload(i + PX)
                if i + 1 < NK0:
                    issue(("K", i + 1), True)
                if i == 0 or chunks[i - 1][0] != kind:
                    drain_all()
                    set_addr(kind)
                set_base(slot_of[chunks[i]] >> 2)
            reads(G)
        m = G - DREAD
        if m >= 0:
            mfmas(m)
        FS = int(os.environ.get("FS", "35"))
        if PROF and FS * 16 <= G < FS * 16 + 24:
            e("s_memtime s[60:61]")
            e("s_waitcnt lgkmcnt(0)")
            em.lg = []
            e(f"v_writelane_b32 v48, s60, {2*(G - FS*16)}")
        if dq:
            emit_dma(dq.pop(0))
        if PROF and FS * 16 <= G < FS * 16 + 24:
            e("s_memtime s[60:61]")
            e("s_waitcnt lgkmcnt(0)")
            em.lg = []
            e(f"v_writelane_b32 v48, s60, {2*(G - FS*16)+1}")

    import copy
    G = 0
    while G < total + DREAD:
        m = G - DREAD
        if not FORK and m == 14 * 16:
            transition_q8()
            em.wait_lg("q8r")
        if FORK and m >= 0 and chunks[m // 16][0] == "K" and (m & 7) == 0:
            ci, kt = chunks[m // 16][1], (m >> 3) & 1
            k = 2 * (ci & 1) + kt
            if ci == 0 and kt == 0:
                transition_q8()
                em.wait_lg("q8r")
            while any(isinstance(x[1], tuple) and x[1][0] == "blk" for x in q):
                rdy, _ = q[0]
                if rdy is not None and em.n < rdy:
                    em.nop(rdy - em.n)
                drain(1)
            lab[0] += 1
            LP, LJ = f"Lkp_{lab[0]}", f"Lkj_{lab[0]}"
            e(f"s_mov_b64 vcc, s[{S_OWN+2*k}:{S_OWN+2*k+1}]")
            e(f"s_cbranch_vccz {LP}")
            snap = (list(em.vm), list(em.lg), em.n, list(q), list(dq), dict(st), dict(slot_of), lab[0], list(epi_k))
            st["extra"] = True
            for g2 in range(G, G + 8):
                body(g2)
            e(f"s_branch {LJ}")
            em.raw(f"{LP}:")
            nA = em.n
            em.vm, em.lg, em.n = list(snap[0]), list(snap[1]), snap[2]
            q[:] = snap[3]
            dq[:] = snap[4]
            st.clear(); st.update(snap[5])
            slot_of.clear(); slot_of.update(snap[6])
            lab[0] = snap[7] + 1000
            st["extra"] = False
            for g2 in range(G, G + 8):
                body(g2)
            em.raw(f"{LJ}:")
            G += 8
        else:
            body(G)
            G += 1
    drain_all()
    if PROF:
        e("s_memtime s[60:61]")
        e("s_waitcnt lgkmcnt(0)")
        e("v_writelane_b32 v49, s60, 46")
        e("s_waitcnt vmcnt(0)")
        e("s_memtime s[60:61]")
        e("s_waitcnt lgkmcnt(0)")
        e("v_writelane_b32 v49, s60, 47")
        e("v_writelane_b32 v49, s62, 48")
        e("s_memrealtime s[60:61]")
        e("s_waitcnt lgkmcnt(0)")
        e("v_writelane_b32 v49, s60, 49")
        e("v_writelane_b32 v49, s64, 50")
        e("s_lshl_b32 s60, s2, 2")
        e(f"s_add_u32 s60, s60, s{S_WAVE}")
        e("s_lshl_b32 s60, s60, 8")
        e(f"s_add_u32 s60, s60, {32<<20}")
        e(f"v_lshlrev_b32 v50, 2, v{V_LANE}")
        e(f"s_mov_b32 s{S_O+2}, {64<<20}")
        e(f"buffer_store_dword v49, v50, s[{S_O}:{S_O+3}], s60 offen")
        e(f"s_add_u32 s60, s60, {2<<20}")
        e(f"buffer_store_dword v48, v50, s[{S_O}:{S_O+3}], s60 offen")
    tail(em)
    em.raw("L_k1_exit:")
    e("s_endpgm")


def tail(em):
    e = em.e
    NS = 9
    S_WO, S_OS, S_OUT, S_DB = 8, 12, 16, 20
    S_WG, S_WLD, S_TT, S_ST = 30, 31, 32, 33
    V_L, V_DMA, V_B, V_O, V_A = 1, 2, 3, 4, 6
    V_ACC = 12
    V_FR = 32
    V_BF = 64
    e("s_load_dwordx4 s[44:47], s[0:1], 32")
    e("s_load_dwordx2 s[48:49], s[0:1], 48")
    e("s_waitcnt vmcnt(0) lgkmcnt(0)")
    em.vm = []
    em.lg = []
    e("s_barrier")
    if PROF:
        e("s_memtime s[60:61]")
        e("s_waitcnt lgkmcnt(0)")
        e("v_writelane_b32 v5, s60, 40")
    e(f"s_mov_b32 s{S_DB}, s48")
    e(f"s_mov_b32 s{S_DB+1}, s49")
    e(f"s_mov_b32 s{S_DB+2}, 256")
    e(f"s_mov_b32 s{S_DB+3}, 0x20000")
    e(f"s_cmp_lg_u32 s{S_WAVE}, 0")
    e("s_cbranch_scc1 L_nosig")
    e("s_lshl_b32 s42, s6, 2")
    e("v_mov_b32 v10, s42")
    e("v_mov_b32 v11, 1")
    e("s_mov_b64 exec, 1")
    e(f"buffer_atomic_add v11, v10, s[{S_DB}:{S_DB+3}], 0 offen sc1")
    e("s_mov_b64 exec, -1")
    em.raw("L_nosig:")
    e("s_and_b32 s3, s2, 7")
    e("s_lshr_b32 s4, s2, 3")
    e("s_lshl_b32 s3, s3, 5")
    e("s_add_u32 s3, s3, s4")
    e("s_cmp_ge_u32 s3, 252")
    e("s_cbranch_scc1 L_k1_exit")
    e("s_mul_i32 s4, s3, 9363")
    e("s_lshr_b32 s4, s4, 16")
    e("s_mul_i32 s5, s4, 7")
    e("s_sub_u32 s5, s3, s5")
    e("s_lshl_b32 s6, s5, 7")
    e(f"s_add_u32 s{S_WO}, s44, s6")
    e(f"s_addc_u32 s{S_WO+1}, s45, 0")
    e(f"s_sub_u32 s{S_WO+2}, {4096*896}, s6")
    e(f"s_mov_b32 s{S_WO+3}, 0x20000")
    e("s_lshl_b32 s7, s4, 2")
    e(f"s_add_u32 s7, s7, s{S_WAVE}")
    e("s_lshl_b32 s25, s7, 17")
    e(f"s_add_u32 s{S_OS}, s52, s25")
    e(f"s_addc_u32 s{S_OS+1}, s53, 0")
    e(f"s_mov_b32 s{S_OS+2}, 131072")
    e(f"s_mov_b32 s{S_OS+3}, 0x20000")
    e(f"s_mov_b32 s{S_OUT}, s46")
    e(f"s_mov_b32 s{S_OUT+1}, s47")
    e(f"s_mov_b32 s{S_OUT+2}, {2304*896}")
    e(f"s_mov_b32 s{S_OUT+3}, 0x20000")
    e(f"s_mul_i32 s{S_ST}, s7, {16*896}")
    e(f"s_add_u32 s{S_ST}, s{S_ST}, s6")
    e(f"s_mul_i32 s{S_WG}, s{S_WAVE}, {32*896}")
    e(f"s_lshl_b32 s{S_WLD}, s{S_WAVE}, 12")
    e(f"v_lshrrev_b32 v10, 3, v{V_L}")
    e("v_mul_u32_u24 v10, 896, v10")
    e(f"v_bfe_u32 v11, v{V_L}, 1, 2")
    e(f"v_lshrrev_b32 v12, 4, v{V_L}")
    e("v_xor_b32 v11, v11, v12")
    e("v_lshl_add_u32 v10, v11, 5, v10")
    e(f"v_and_b32 v11, 1, v{V_L}")
    e(f"v_lshl_add_u32 v{V_DMA}, v11, 4, v10")
    e(f"v_lshlrev_b32 v{V_B}, 4, v{V_L}")
    e(f"v_and_b32 v10, 15, v{V_L}")
    e("v_mul_u32_u24 v10, 896, v10")
    e(f"v_lshl_add_u32 v{V_O}, v12, 3, v10")
    e(f"v_bfe_u32 v10, v{V_L}, 2, 2")
    e("v_lshl_add_u32 v10, v12, 2, v10")
    e("v_bfe_u32 v11, v10, 1, 2")
    e("v_lshlrev_b32 v10, 7, v10")
    e("v_lshl_add_u32 v10, v11, 5, v10")
    e(f"v_and_b32 v11, 3, v{V_L}")
    e("v_lshl_add_u32 v10, v11, 3, v10")
    for u in range(4):
        e(f"v_xor_b32 v{V_A+u}, {u<<5}, v10")
    st = {"base": 0}
    NB = 6
    if ROT & 2:
        e("s_and_b32 s78, s3, 31")
    else:
        e("s_mov_b32 s78, 0")

    def dma_ops(cc):
        slot = cc % NS
        pre = [f"s_add_u32 s80, s78, {cc}", "s_and_b32 s80, s80, 31", f"s_mul_i32 s80, s80, {128*896}", f"s_add_u32 s80, s80, s{S_WG}"]
        return [(pre if jj == 0 else []) + [f"s_add_u32 m0, s{S_WLD}, {slot*16384 + jj*1024}",
                 f"s_add_u32 s{S_TT}, s80, {jj*8*896}",
                 (f"buffer_load_dwordx4 v{V_DMA}, s[{S_WO}:{S_WO+3}], s{S_TT} offen lds", f"D{cc}")] for jj in range(4)]

    def b_ops(cc):
        rs = cc % NB
        pre = [f"s_add_u32 s81, s78, {cc}", "s_and_b32 s81, s81, 31", "s_lshl_b32 s81, s81, 12"]
        return [(pre if jj == 0 else []) +
                [(f"buffer_load_dwordx4 {vr(V_BF + rs*16 + jj*4, 4)}, v{V_B}, s[{S_OS}:{S_OS+3}], s81 offen offset:{jj*1024} sc1", f"B{cc}")] for jj in range(4)]

    def emit_op(op):
        for x in op:
            if isinstance(x, tuple):
                em.vmem(x[0], x[1])
            else:
                e(x)

    for cc in range(NS - 2):
        for op in dma_ops(cc):
            emit_op(op)
    e(f"s_cmp_lg_u32 s{S_WAVE}, 0")
    e("s_cbranch_scc1 L_nopoll")
    e("s_lshl_b32 s42, s4, 2")
    e("s_mul_i32 s43, s42, 7282")
    e("s_lshr_b32 s43, s43, 16")
    e("s_add_u32 s42, s42, 3")
    e("s_mul_i32 s42, s42, 7282")
    e("s_lshr_b32 s42, s42, 16")
    e("s_lshl_b32 s42, s42, 2")
    e("s_lshl_b32 s43, s43, 2")
    e("v_mov_b32 v10, s43")
    e("v_writelane_b32 v10, s42, 1")
    e("s_mov_b32 s42, 0")
    e("s_mov_b64 exec, 3")
    em.raw("L_poll:")
    e(f"buffer_load_dword v11, v10, s[{S_DB}:{S_DB+3}], 0 offen sc1")
    e("s_waitcnt vmcnt(0)")
    e("v_cmp_le_u32 vcc, 16, v11")
    e("s_nop 1")
    e("s_cmp_eq_u64 vcc, 3")
    e("s_cbranch_scc1 L_polled")
    e("s_sleep 2")
    e("s_add_u32 s42, s42, 1")
    e("s_cmp_lt_u32 s42, 0x400000")
    e("s_cbranch_scc1 L_poll")
    em.raw("L_polled:")
    e("s_mov_b64 exec, -1")
    em.raw("L_nopoll:")
    e("s_barrier")
    if PROF:
        e("s_memtime s[60:61]")
        e("s_waitcnt lgkmcnt(0)")
        e("v_writelane_b32 v5, s60, 41")
    for cc in range(NB):
        for op in b_ops(cc):
            emit_op(op)
    D = 4
    total = 32 * 16
    pend = []

    def reads(G):
        cc, f = divmod(G, 16)
        ss, u = f >> 2, f & 3
        slot = cc % NS
        if f == 0:
            grp = slot >> 2
            if grp != st["base"]:
                d = (grp - st["base"]) * 65536
                for b in range(4):
                    e(f"v_add_u32 v{V_A+b}, {d & 0xffffffff}, v{V_A+b}")
                st["base"] = grp
        off = (slot & 3) * 16384 + ss * 4096
        fr = V_FR + (G % 8) * 4
        em.ds(f"T {vr(fr,2)}, v{V_A+u}, {off}", f"F{G}")
        em.ds(f"T {vr(fr+2,2)}, v{V_A+u}, {off+2048}", f"F{G}")

    def mfma(G):
        cc, f = divmod(G, 16)
        ss, u = f >> 2, f & 3
        fr = V_FR + (G % 8) * 4
        if f == 0:
            em.wait_vm(f"B{cc}")
        em.wait_lg(f"F{G}")
        d = vr(V_ACC + u * 4, 4)
        c = "0" if (cc == 0 and ss == 0) else d
        e(f"M {d}, {vr(fr,4)}, {vr(V_BF + (cc % NB)*16 + ss*4, 4)}, {c}")
        if f == 0 and cc >= 1 and cc - 1 + NB < 32:
            pend.extend(b_ops(cc - 1 + NB))

    for G in range(total + D):
        if G < total:
            cc, f = divmod(G, 16)
            if f == 0:
                em.wait_vm(f"D{cc}")
                e("s_barrier")
                if PROF:
                    e("s_memtime s[60:61]")
                    e("s_waitcnt lgkmcnt(0)")
                    em.lg = []
                    e(f"v_writelane_b32 v5, s60, {cc}")
                if cc - 2 + NS < 32:
                    pend.extend(dma_ops(cc - 2 + NS))
            reads(G)
        if G - D >= 0:
            mfma(G - D)
        if pend and (G & 1):
            emit_op(pend.pop(0))
    em.nop(9)
    for u in range(4):
        a = V_ACC + u * 4
        e(f"CV v{28+ (u%2)*2}, v{a}, v{a+1}")
        e(f"CV v{29+ (u%2)*2}, v{a+2}, v{a+3}")
        e(f"buffer_store_dwordx2 v[{28+(u%2)*2}:{29+(u%2)*2}], v{V_O}, s[{S_OUT}:{S_OUT+3}], s{S_ST} offen offset:{u*32}")
    if PROF:
        e("s_waitcnt vmcnt(0)")
        e("s_memtime s[60:61]")
        e("s_waitcnt lgkmcnt(0)")
        e("v_writelane_b32 v5, s60, 47")
        e("v_writelane_b32 v5, s62, 48")
        e("s_lshl_b32 s60, s2, 2")
        e(f"s_add_u32 s60, s60, s{S_WAVE}")
        e("s_lshl_b32 s60, s60, 8")
        e(f"s_add_u32 s60, s60, {33<<20}")
        e(f"v_lshlrev_b32 v10, 2, v{V_L}")
        e(f"s_mov_b32 s{S_OS}, s52")
        e(f"s_mov_b32 s{S_OS+1}, s53")
        e(f"s_mov_b32 s{S_OS+2}, {64<<20}")
        e(f"buffer_store_dword v5, v10, s[{S_OS}:{S_OS+3}], s60 offen")


def kd(name, vgpr, acc):
    return f""".p2align 6
.amdhsa_kernel {name}
  .amdhsa_next_free_vgpr {vgpr}
  .amdhsa_next_free_sgpr 102
  .amdhsa_accum_offset {acc}
  .amdhsa_group_segment_fixed_size 0
  .amdhsa_kernarg_size 64
  .amdhsa_user_sgpr_count 2
  .amdhsa_user_sgpr_kernarg_segment_ptr 1
  .amdhsa_system_sgpr_workgroup_id_x 1
.end_amdhsa_kernel
"""


def main():
    em = Em()
    k1(em)
    for t in range(96):
        assert (t * 4682) >> 16 == t // 14
    for t in range(144):
        assert (t * 7282) >> 16 == t // 9
    txt = HEADER + "\n".join(em.lines) + "\n"
    txt += '.section .rodata,"a"\n' + kd("standalone__mha_block_cached__near_ridge_kernel", 512, 256)
    open(OUT, "w").write(txt)
    print("wrote", OUT, len(txt), "bytes")


main()
```

```python
import math, sys, os, struct

OUT = sys.argv[1] if len(sys.argv) > 1 else "standalone__mha_block_cached__near_ridge.s"
PROF = os.environ.get("PROF", "0") == "1"
NSLOT = 9
NW0 = int(os.environ.get("NW0", "4"))
NK0 = NSLOT - NW0
ROT = int(os.environ.get("ROT", "3"))
FORK = int(os.environ.get("FORK", "0"))
PREF = int(os.environ.get("PREF", "1"))
PX = int(os.environ.get("PX", "4"))
DREAD = int(os.environ.get("DREAD", "5"))
KVNT = os.environ.get("KVNT", " nt")
K2NS = int(os.environ.get("K2NS", "7"))
K2NT = " nt" if os.environ.get("K2NT", "0") == "1" else ""

HEADER = f"""; Kernarg layout for this problem (64 bytes, ptrs only, base s[0:1]):
; @launch grid=(256,1,1) block=(256,1,1) lds=163840
.amdgcn_target "amdgcn-amd-amdhsa--gfx950"
.macro M d, a, b, c
v_mfma_f32_16x16x32_bf16 \\d, \\a, \\b, \\c
.endm
.macro T d, a, o
ds_read_b64_tr_b16 \\d, \\a offset:\\o
.endm
.macro R d, a, o
ds_read_b128 \\d, \\a offset:\\o
.endm
.macro WL n
s_waitcnt lgkmcnt(\\n)
.endm
.macro CV d, a, b
v_cvt_pk_bf16_f32 \\d, \\a, \\b
.endm
.text
"""


class Em:
    def __init__(self):
        self.lines = []
        self.vm = []
        self.lg = []
        self.n = 0

    def e(self, s):
        self.lines.append(s)
        self.n += 1

    def raw(self, s):
        self.lines.append(s)

    def vmem(self, s, tag):
        self.e(s)
        self.vm.append(tag)

    def ds(self, s, tag):
        self.e(s)
        self.lg.append(tag)

    def wait_vm(self, tag):
        idx = max([i for i, t in enumerate(self.vm) if t == tag], default=-1)
        if idx < 0:
            return
        n = min(len(self.vm) - 1 - idx, 63)
        self.e(f"s_waitcnt vmcnt({n})")
        self.vm = self.vm[len(self.vm) - n:] if n > 0 else []

    def wait_lg(self, tag):
        idx = max([i for i, t in enumerate(self.lg) if t == tag], default=-1)
        if idx < 0:
            return
        n = min(len(self.lg) - 1 - idx, 15)
        self.e(f"WL {n}")
        self.lg = self.lg[len(self.lg) - n:] if n > 0 else []

    def nop(self, states):
        while states > 0:
            k = min(states, 16)
            self.e(f"s_nop {k-1}")
            self.n += k - 1
            states -= k


def vr(b, n=1):
    return f"v{b}" if n == 1 else f"v[{b}:{b+n-1}]"


def ar(b, n=1):
    return f"a{b}" if n == 1 else f"a[{b}:{b+n-1}]"


S_X, S_K, S_V, S_W, S_O = 8, 12, 16, 20, 24
S_WAVE = 28
S_C = 29
S_XQ = 32
S_OQ = 36
S_T = 40
S_T2 = 41
V_LANE = 1
V_ADDR = 2
V_D = 10
V_XO = 14
V_ST = 15
V_SACC = 16
V_M = 40
V_L = 43
V_MC = 46
V_T = 50
V_BIG = 64
A_FR = 192


V_Q8 = 192
V_S8 = 208
V_P8 = 212
V_ONE = 220
V_SC = 224
V_M8, V_MC8 = 225, 226
V_SCW = 227
V_T2 = 228
V_QX = 244
V_AD = 248
V_A16 = 16
V_SACC2 = 32
V_EP = 228
A_O8 = 128
A_L8 = 144
SCR = 9 * 16384
S_WL, S_KL = 54, 55
S_XW = 56
S_OWN = 66


def k1(em):
    e = em.e
    global V_M, V_L, V_MC
    V_M, V_L, V_MC = 2, 4, 6
    V_WD, V_KD = 8, 9
    em.raw(".globl standalone__mha_block_cached__near_ridge_kernel\n.p2align 8\n.type standalone__mha_block_cached__near_ridge_kernel,@function\nstandalone__mha_block_cached__near_ridge_kernel:")
    e("s_cmp_ge_u32 s2, 256")
    e("s_cbranch_scc1 L_k1_exit")
    if PROF:
        e("s_memtime s[62:63]")
        e("s_memrealtime s[64:65]")
    e("s_load_dwordx8 s[44:51], s[0:1], 0")
    e("s_load_dwordx2 s[52:53], s[0:1], 56")
    if PREF:
        e("s_getpc_b64 s[76:77]")
        e("s_lshr_b32 s4, s2, 3")
        e("s_cmp_ge_u32 s4, 17")
        e("s_cbranch_scc1 L_nopref")
        e("s_lshl_b32 s4, s4, 12")
        e("v_lshlrev_b32 v2, 4, v0")
        e("v_add_u32 v2, s4, v2")
        e("global_load_dwordx4 v[4:7], v2, s[76:77]")
        em.raw("L_nopref:")
    e("s_and_b32 s3, s2, 7")
    e("s_lshr_b32 s4, s2, 3")
    MAPH = int(os.environ.get("MAPH", "4"))
    lg = {4: 2, 8: 3, 16: 4}[MAPH]
    e(f"s_and_b32 s5, s3, {16 // MAPH - 1}")
    e(f"s_lshl_b32 s5, s5, {lg}")
    e(f"s_and_b32 s6, s4, {MAPH - 1}")
    e("s_add_u32 s5, s5, s6")
    e(f"s_lshr_b32 s6, s3, {4 - lg}")
    e(f"s_lshl_b32 s6, s6, {5 - lg}")
    e(f"s_lshr_b32 s7, s4, {lg}")
    e("s_add_u32 s6, s6, s7")
    e(f"v_and_b32 v{V_LANE}, 63, v0")
    e("v_lshrrev_b32 v2, 6, v0")
    e("s_nop 0")
    e(f"v_readfirstlane_b32 s{S_WAVE}, v2")
    e(f"s_mov_b32 s{S_C}, {hex(struct.unpack('<I', struct.pack('<f', math.log2(math.e)/16.0))[0])}")
    e("s_waitcnt lgkmcnt(0)")
    e("s_mul_i32 s7, s6, 129024")
    e(f"s_add_u32 s{S_X}, s44, s7")
    e(f"s_addc_u32 s{S_X+1}, s45, 0")
    e(f"s_mov_b32 s{S_X+2}, 129024")
    e(f"s_mov_b32 s{S_X+3}, 0x20000")
    e("s_lshl_b32 s7, s6, 4")
    e("s_add_u32 s7, s7, s5")
    e("s_lshl_b32 s7, s7, 18")
    e(f"s_add_u32 s{S_K}, s46, s7")
    e(f"s_addc_u32 s{S_K+1}, s47, 0")
    e(f"s_mov_b32 s{S_K+2}, 262144")
    e(f"s_mov_b32 s{S_K+3}, 0x20000")
    e(f"s_add_u32 s{S_V}, s48, s7")
    e(f"s_addc_u32 s{S_V+1}, s49, 0")
    e(f"s_mov_b32 s{S_V+2}, 262144")
    e(f"s_mov_b32 s{S_V+3}, 0x20000")
    e("s_lshl_b32 s7, s5, 9")
    e(f"s_add_u32 s{S_W}, s50, s7")
    e(f"s_addc_u32 s{S_W+1}, s51, 0")
    e(f"s_mov_b32 s{S_W+2}, {447*8192+512}")
    e(f"s_mov_b32 s{S_W+3}, 0x20000")
    e(f"s_mov_b32 s{S_O}, s52")
    e(f"s_mov_b32 s{S_O+1}, s53")
    e(f"s_mov_b32 s{S_O+2}, {144*128*1024}")
    e(f"s_mov_b32 s{S_O+3}, 0x20000")
    e(f"s_lshl_b32 s7, s{S_WAVE}, 1")
    for qt in range(3):
        if qt < 2:
            e(f"s_add_u32 s42, s7, {qt}")
        else:
            e("s_mov_b32 s42, 8")
        e(f"s_mul_i32 s{S_XQ+qt}, s42, 14336")
        e("s_mul_i32 s43, s6, 9")
        e("s_add_u32 s43, s43, s42")
        e("s_lshl_b32 s43, s43, 7")
        e("s_lshl_b32 s42, s5, 3")
        e("s_add_u32 s43, s43, s42")
        e(f"s_lshl_b32 s{S_OQ+qt}, s43, 10")
    e("s_mul_i32 s78, s4, 3")
    e("s_mul_i32 s42, s78, 4682")
    e("s_lshr_b32 s42, s42, 16")
    e("s_mul_i32 s42, s42, 14")
    e("s_sub_u32 s78, s78, s42")
    if not (ROT & 1):
        e("s_mov_b32 s78, 0")
    for a in range(4):
        e(f"s_xor_b32 s42, s{S_WAVE}, {a}")
        e(f"s_lshl_b32 s{S_XW+a}, s42, 11")
    for k in range(4):
        e(f"s_cmp_eq_u32 s{S_WAVE}, {k}")
        e(f"s_cselect_b64 s[{S_OWN+2*k}:{S_OWN+2*k+1}], -1, 0")
    t0, t1, t2, t3 = V_T, V_T + 1, V_T + 2, V_T + 3
    e(f"v_and_b32 v{t0}, 15, v{V_LANE}")
    e(f"v_mul_u32_u24 v{t0}, 896, v{t0}")
    e(f"v_lshrrev_b32 v{t1}, 4, v{V_LANE}")
    e(f"v_lshl_add_u32 v{V_XO}, v{t1}, 4, v{t0}")
    e(f"v_lshlrev_b32 v{V_ST}, 4, v{V_LANE}")
    e(f"s_lshl_b32 s42, s{S_WAVE}, 1")
    e(f"s_lshl_b32 s{S_KL}, s{S_WAVE}, 10")
    e(f"v_lshrrev_b32 v{t0}, 5, v{V_LANE}")
    e(f"v_add_u32 v{t0}, s42, v{t0}")
    e(f"v_and_b32 v{t1}, 31, v{V_LANE}")
    e(f"v_lshlrev_b32 v{t2}, 1, v{t0}")
    e(f"v_xor_b32 v{t2}, v{t1}, v{t2}")
    e(f"v_lshlrev_b32 v{t2}, 4, v{t2}")
    e(f"v_lshl_add_u32 v{V_KD}, v{t0}, 9, v{t2}")
    e(f"s_and_b32 s42, s{S_WAVE}, 1")
    e("s_lshl_b32 s42, s42, 1")
    e(f"s_lshr_b32 s43, s{S_WAVE}, 1")
    e("s_lshl_b32 s43, s43, 3")
    e("s_add_u32 s42, s42, s43")
    e(f"s_lshl_b32 s{S_WL}, s42, 9")
    e(f"v_lshrrev_b32 v{t0}, 5, v{V_LANE}")
    e(f"v_add_u32 v{t0}, s42, v{t0}")
    e(f"v_and_b32 v{t2}, 3, v{t0}")
    e(f"v_bfe_u32 v{t3}, v{t0}, 3, 1")
    e(f"v_lshl_add_u32 v{t2}, v{t3}, 2, v{t2}")
    e(f"v_lshlrev_b32 v{t2}, 1, v{t2}")
    e(f"v_xor_b32 v{t2}, v{t1}, v{t2}")
    e(f"v_lshlrev_b32 v{t2}, 4, v{t2}")
    e(f"v_lshl_add_u32 v{V_WD}, v{t0}, 13, v{t2}")
    e(f"v_lshlrev_b32 v{V_SC}, 4, v{V_LANE}")
    e(f"v_add_u32 v{V_SC}, {SCR}, v{V_SC}")
    for a in range(4):
        e(f"v_add_u32 v{V_QX+a}, s{S_XW+a}, v{V_SC}")
    for j in range(4):
        e(f"v_mov_b32 v{V_ONE+j}, 0x3f803f80")

    NT = 2
    chunks = [("W", i) for i in range(14)] + [("K", i) for i in range(16)] + [("V", i) for i in range(16)]
    nsteps = len(chunks)
    slot_of = {}
    init = [("W", i) for i in range(NW0)] + [("K", i) for i in range(NK0)]
    for s_, c in enumerate(init):
        slot_of[c] = s_
    later = [c for c in chunks if c not in slot_of]
    dq = []

    def kc(c, dst):
        e(f"s_add_u32 s{dst}, s78, {c}")
        e(f"s_cmp_ge_u32 s{dst}, 14")
        e(f"s_cselect_b32 s79, 14, 0")
        e(f"s_sub_u32 s{dst}, s{dst}, s79")

    def emit_dma(item):
        sl, lds, goff, vo, srd, nt, tag = item
        if srd == S_W:
            ci, jr = goff
            if jr == 0:
                kc(ci, 80)
                e("s_lshl_b32 s80, s80, 18")
            e(f"s_add_u32 m0, s{sl}, {lds}")
            e(f"s_add_u32 s{S_T}, s80, {jr*8192}")
        else:
            e(f"s_add_u32 m0, s{sl}, {lds}")
            e(f"s_mov_b32 s{S_T}, {goff}")
        em.vmem(f"buffer_load_dwordx4 v{vo}, s[{srd}:{srd+3}], s{S_T} offen{nt} lds", tag)

    def issue(chunk, defer=False):
        kind, ci = chunk
        slot = slot_of[chunk]
        tag = f"{kind}{ci}"
        its = []
        if kind == "W":
            for jr in (0, 4, 16, 20):
                its.append((S_WL, slot * 16384 + jr * 512, (ci, jr), V_WD, S_W, "", tag))
        else:
            srd = S_K if kind == "K" else S_V
            for jj in range(4):
                its.append((S_KL, slot * 16384 + jj * 4096, ci * 16384 + jj * 4096, V_KD, srd, KVNT, tag))
        for it in its:
            if defer:
                dq.append(it)
            else:
                emit_dma(it)

    def xload(c):
        if c < 14:
            kc(c, 81)
            e("s_lshl_b32 s81, s81, 6")
            for qt in range(3):
                e(f"s_add_u32 s82, s81, s{S_XQ+qt}")
                em.vmem(f"buffer_load_dwordx4 {ar((qt*14+c)*4,4)}, v{V_XO}, s[{S_X}:{S_X+3}], s82 offen", f"x{c}")

    for c in range(max(NW0, PX)):
        if c < NW0:
            issue(("W", c))
        if c < PX:
            xload(c)
    issue(("K", 0))
    st = {"base": 0}

    def set_addr(kind):
        e(f"v_lshrrev_b32 v{t0}, 4, v{V_LANE}")
        e(f"v_bfe_u32 v{t1}, v{V_LANE}, 2, 2")
        e(f"v_and_b32 v{t2}, 3, v{V_LANE}")
        if kind == "W":
            e(f"v_lshl_add_u32 v{t3}, v{t0}, 3, v{t1}")
            e(f"v_lshlrev_b32 v{t3}, 9, v{t3}")
            e(f"v_and_b32 v{t0}, 1, v{t0}")
            e(f"v_lshl_add_u32 v{t0}, v{t0}, 2, v{t1}")
            e(f"v_lshl_add_u32 v{t3}, v{t0}, 5, v{t3}")
            e(f"v_lshl_add_u32 v{t3}, v{t2}, 3, v{t3}")
            nb, sh = 16, 5
        elif kind == "V":
            e(f"v_lshl_add_u32 v{t0}, v{t0}, 2, v{t1}")
            e(f"v_lshlrev_b32 v{t3}, 9, v{t0}")
            e(f"v_and_b32 v{t0}, 7, v{t0}")
            e(f"v_lshl_add_u32 v{t3}, v{t0}, 5, v{t3}")
            e(f"v_lshl_add_u32 v{t3}, v{t2}, 3, v{t3}")
            nb, sh = 16, 5
        else:
            e(f"v_and_b32 v{t1}, 15, v{V_LANE}")
            e(f"v_lshlrev_b32 v{t3}, 9, v{t1}")
            e(f"v_and_b32 v{t1}, 7, v{t1}")
            e(f"v_lshlrev_b32 v{t1}, 1, v{t1}")
            e(f"v_xor_b32 v{t1}, v{t0}, v{t1}")
            e(f"v_lshl_add_u32 v{t3}, v{t1}, 4, v{t3}")
            nb, sh = 8, 6
        e(f"s_lshl_b32 s42, s{S_WAVE}, 7")
        e(f"v_xor_b32 v{t3}, s42, v{t3}")
        for b in range(nb):
            e(f"v_xor_b32 v{V_A16+b}, {b << sh}, v{t3}")
        st["base"] = 0
        st["nb"] = nb

    def set_base(grp):
        if grp != st["base"]:
            d = (grp - st["base"]) * 65536
            for b in range(st["nb"]):
                e(f"v_add_u32 v{V_A16+b}, {d & 0xffffffff}, v{V_A16+b}")
            st["base"] = grp

    def frag_reg(G):
        return A_FR + (G % 16) * 4

    def reads(G):
        i, f = divmod(G, 16)
        kind, ci = chunks[i]
        slot = slot_of[chunks[i]]
        sb = (slot & 3) * 16384
        fr = frag_reg(G)
        tag = f"F{G}"
        if kind == "K":
            kt, ks = f >> 3, f & 7
            em.ds(f"R {ar(fr,4)}, v{V_A16+ks}, {sb + kt*8192}", tag)
        else:
            second = 2048 if kind == "W" else 8192
            em.ds(f"T {ar(fr,2)}, v{V_A16+f}, {sb}", tag)
            em.ds(f"T {ar(fr+2,2)}, v{V_A16+f}, {sb + second}", tag)

    def big(qt, idx):
        return V_BIG + (qt * 16 + idx) * 4

    def sacc(kt, qt):
        return V_SACC2 + (kt * 2 + qt) * 4

    def QF(qt, s):
        return (qt * 14 + s) * 4

    def s8reg(ci):
        return V_Q8 + (ci >> 1) * 2

    q = []
    lab = [0]

    def push(instrs, after=None):
        for k, s in enumerate(instrs):
            q.append((after if k == 0 else None, s))

    def drain(cnt):
        k = 0
        while q and k < cnt:
            rdy, s = q[0]
            if rdy is not None and em.n < rdy:
                return
            q.pop(0)
            if isinstance(s, tuple):
                if s[0] == "nop":
                    em.nop(s[1])
                elif s[0] == "st":
                    em.vmem(s[1], "st")
                elif s[0] == "ds":
                    em.ds(s[1], s[2])
                elif s[0] == "blk":
                    for x in s[1]:
                        if x.endswith(":"):
                            em.raw(x)
                        else:
                            e(x)
            else:
                e(s)
            k += 1

    def drain_all():
        while q:
            rdy, s = q[0]
            if rdy is not None and em.n < rdy:
                em.nop(rdy - em.n)
            drain(1)

    def s_items(ci, kt):
        out = []
        for qt in range(NT):
            a, m, dst = sacc(kt, qt), V_M + qt, big(qt, ci) + 2 * kt
            if ci == 0 and kt == 0:
                out.append(f"v_max_f32 v{m}, v{a}, v{a+1}")
            else:
                out.append(f"v_max3_f32 v{m}, v{a}, v{a+1}, v{m}")
            out.append(f"CV v{dst}, v{a}, v{a+1}")
            out.append(f"v_max3_f32 v{m}, v{a+2}, v{a+3}, v{m}")
            out.append(f"CV v{dst+1}, v{a+2}, v{a+3}")
        k = 2 * (ci & 1) + kt
        lab[0] += 1
        L = f"Ls8_{lab[0]}"
        a, m, dst = V_S8, V_M8, s8reg(ci)
        blk = [f"s_mov_b64 vcc, s[{S_OWN+2*k}:{S_OWN+2*k+1}]", f"s_cbranch_vccz {L}",
               f"v_max3_f32 v{m}, v{a}, v{a+1}, v{m}", f"CV v{dst}, v{a}, v{a+1}",
               f"v_max3_f32 v{m}, v{a+2}, v{a+3}, v{m}", f"CV v{dst+1}, v{a+2}, v{a+3}", f"{L}:"]
        out.append(("blk", blk))
        return out

    def qconv_items(s):
        out = []
        tl = [(V_T + qt * 4, big(qt, 2 * s), big(qt, 2 * s + 1), qt) for qt in range(NT)]
        if s < 2:
            tl.append((V_T + 8, V_Q8 + (2 * s) * 4, V_Q8 + (2 * s + 1) * 4, 8))
        for t, p0, p1, qt in tl:
            out += [f"CV v{t}, v{p0}, v{p0+1}", f"CV v{t+1}, v{p0+2}, v{p0+3}",
                    f"CV v{t+2}, v{p1}, v{p1+1}", f"CV v{t+3}, v{p1+2}, v{p1+3}"]
        out.append(("nop", 2))
        for t, *_ in tl:
            out += [f"v_permlane32_swap_b32 v{t}, v{t+2}", f"v_permlane32_swap_b32 v{t+1}, v{t+3}"]
        out.append(("nop", 2))
        for t, *_ in tl:
            out += [f"v_permlane16_swap_b32 v{t}, v{t+2}", f"v_permlane16_swap_b32 v{t+1}, v{t+3}"]
        out.append(("nop", 1))
        for t, p0, p1, qt in tl:
            if qt == 8:
                out.append(("ds", f"ds_write_b128 v{V_QX}, v[{t}:{t+3}] offset:{s*1024}", "q8w"))
            else:
                for j in range(4):
                    out.append(f"v_accvgpr_write_b32 a{QF(qt, s)+j}, v{t+j}")
        return out

    def xreduce(op, regs):
        out = []
        for sw in ("32", "16"):
            for k, r in enumerate(regs):
                out.append(f"v_mov_b32 v{V_T+k}, v{r}")
            out.append(("nop", 2))
            for k, r in enumerate(regs):
                out.append(f"v_permlane{sw}_swap_b32 v{V_T+k}, v{r}")
            out.append(("nop", 1))
            for k, r in enumerate(regs):
                out.append(f"v_{op}_f32 v{r}, v{r}, v{V_T+k}")
        return out

    def p_group(regs):
        n = len(regs)
        T = [(V_T2 + 2 * k, V_T2 + 2 * k + 1) for k in range(n)]
        o = []
        for (R, mc, l), (ta, tb) in zip(regs, T):
            o += [f"v_lshlrev_b32 v{ta}, 16, v{R}", f"v_and_b32 v{tb}, 0xffff0000, v{R}"]
        for (R, mc, l), (ta, tb) in zip(regs, T):
            o += [f"v_fma_f32 v{ta}, v{ta}, s{S_C}, -v{mc}", f"v_fma_f32 v{tb}, v{tb}, s{S_C}, -v{mc}"]
        for (R, mc, l), (ta, tb) in zip(regs, T):
            o += [f"v_exp_f32 v{ta}, v{ta}", f"v_exp_f32 v{tb}, v{tb}"]
        for which in (0, 1):
            for (R, mc, l), tt in zip(regs, T):
                if l is not None:
                    o.append(f"v_add_f32 v{l}, v{l}, v{tt[which]}")
        for (R, mc, l), (ta, tb) in zip(regs, T):
            o.append(f"CV v{R}, v{ta}, v{tb}")
        return o

    def p_items(ci):
        regs = [(big(qt, ci) + j, V_MC + qt, V_L + qt) for j in range(4) for qt in range(NT)]
        return p_group(regs)

    epi_k = [0]

    def epi_block(areg, lreg, soff, sp):
        out = []
        tb = V_EP + (epi_k[0] % 2) * 12
        epi_k[0] += 1
        for j in range(8):
            out.append(f"v_accvgpr_read_b32 v{tb+j}, a{areg+j}")
        for j in range(8):
            out.append(f"v_mul_f32 v{tb+j}, v{tb+j}, v{lreg}")
        for j in range(4):
            out.append(f"CV v{tb+8+j}, v{tb+2*j}, v{tb+2*j+1}")
        out.append(f"s_add_u32 s{S_T2}, s{soff}, s{S_XW + (sp>>1)}")
        out.append(("st", f"buffer_store_dwordx4 v[{tb+8}:{tb+11}], v{V_ST}, s[{S_O}:{S_O+3}], s{S_T2} offen offset:{(sp&1)*1024} sc1"))
        return out

    def epi_items(s):
        out = []
        for qt in range(NT):
            out += epi_block((qt * 16 + 2 * s) * 4, V_L + qt, S_OQ + qt, s)
        return out

    def transition_q8():
        drain_all()
        e(f"v_mov_b32 v{V_M8}, 0xff800000")
        em.wait_lg("q8w")
        e("s_barrier")
        for s in range(8):
            em.ds(f"R {ar(QF(2, s),4)}, v{V_QX + (s>>1)}, {(s&1)*1024}", "q8r")
        em.nop(2)

    def transition_sm():
        drain_all()
        push(xreduce("max", [V_M, V_M + 1, V_M8]))
        drain_all()
        e(f"v_and_b32 v{t0}, 15, v{V_LANE}")
        e(f"v_lshlrev_b32 v{t0}, 2, v{t0}")
        e(f"v_add_u32 v{t0}, {SCR}, v{t0}")
        e(f"s_lshl_b32 s42, s{S_WAVE}, 6")
        e(f"v_add_u32 v{t1}, s42, v{t0}")
        em.ds(f"ds_write_b32 v{t1}, v{V_M8}", "m8w")
        for qt in range(NT):
            e(f"v_mul_f32 v{V_MC+qt}, s{S_C}, v{V_M+qt}")
            e(f"v_mov_b32 v{V_L+qt}, 0")
        e(f"s_lshr_b32 s42, s{S_WAVE}, 1")
        e("s_lshl_b32 s42, s42, 10")
        e(f"s_and_b32 s43, s{S_WAVE}, 1")
        e("s_lshl_b32 s43, s43, 3")
        e("s_add_u32 s42, s42, s43")
        e(f"v_add_u32 v{V_SCW}, s42, v{V_SC}")
        em.wait_lg("m8w")
        e("s_barrier")
        em.ds(f"ds_read2_b32 v[{t2}:{t3}], v{t0} offset0:0 offset1:16", "m8r")
        em.ds(f"ds_read2_b32 v[{t3+1}:{t3+2}], v{t0} offset0:32 offset1:48", "m8r")
        for s in p_items(0):
            e(s)
        em.wait_lg("m8r")
        e("s_barrier")
        e(f"v_max3_f32 v{V_M8}, v{t2}, v{t3}, v{t3+1}")
        e(f"v_max_f32 v{V_M8}, v{V_M8}, v{t3+2}")
        e(f"v_mul_f32 v{V_MC8}, s{S_C}, v{V_M8}")
        for h in range(0, 8, 4):
            regs = [(V_Q8 + 2 * j + k, V_MC8, None) for j in range(h, h + 4) for k in range(2)]
            for s in p_group(regs):
                e(s)
        for j in range(8):
            em.ds(f"ds_write_b64 v{V_SCW}, v[{V_Q8+2*j}:{V_Q8+2*j+1}] offset:{j*2048}", "p8w")
        em.wait_lg("p8w")
        e("s_barrier")
        em.ds(f"R {vr(V_P8,4)}, v{V_SC}, 0", "P8_0")
        em.nop(2)

    def mfmas(G):
        i, f = divmod(G, 16)
        kind, ci = chunks[i]
        fr = frag_reg(G)
        if kind == "V" and ci == 0 and f == 0:
            transition_sm()
        if kind == "W" and f == 0:
            em.wait_vm(f"x{ci}")
        if kind == "V" and f == 0 and ci > 0:
            drain_all()
            em.nop(2)
        em.wait_lg(f"F{G}")
        per = {"W": 3, "K": 2, "V": 3}[kind]
        for qt in range(NT):
            if kind == "W":
                d = vr(big(qt, f), 4)
                c = "0" if ci == 0 else d
                e(f"M {d}, {ar(fr,4)}, {ar((qt*14+ci)*4,4)}, {c}")
            elif kind == "K":
                kt, ks = f >> 3, f & 7
                if ks == 0:
                    assert not any(isinstance(x[1], str) and f"v{sacc(kt,qt)}," in x[1] for x in q), "pending S items"
                d = vr(sacc(kt, qt), 4)
                c = "0" if ks == 0 else d
                e(f"M {d}, {ar(fr,4)}, {ar(QF(qt,ks),4)}, {c}")
            else:
                d = ar((qt * 16 + f) * 4, 4)
                c = "0" if ci == 0 else d
                e(f"M {d}, {ar(fr,4)}, {vr(big(qt,ci),4)}, {c}")
            drain(per)
        if kind == "W" and f < 4:
            d = vr(V_Q8 + f * 4, 4)
            c = "0" if ci == 0 else d
            e(f"M {d}, {ar(fr,4)}, {ar((2*14+ci)*4,4)}, {c}")
            drain(per)
        elif kind == "K":
            kt, ks = f >> 3, f & 7
            if ks == 0:
                while any(isinstance(x[1], tuple) and x[1][0] == "blk" for x in q):
                    rdy, _ = q[0]
                    if rdy is not None and em.n < rdy:
                        em.nop(rdy - em.n)
                    drain(1)
            d = vr(V_S8, 4)
            c = "0" if ks == 0 else d
            if os.environ.get("ALLM", "1") == "1":
                e(f"M {d}, {ar(fr,4)}, {ar(QF(2,ks),4)}, {c}")
                drain(per)
            elif not FORK:
                k = 2 * (ci & 1) + kt
                lab[0] += 1
                L = f"Lk8_{lab[0]}"
                e(f"s_mov_b64 vcc, s[{S_OWN+2*k}:{S_OWN+2*k+1}]")
                e(f"s_cbranch_vccz {L}")
                e(f"M {d}, {ar(fr,4)}, {ar(QF(2,ks),4)}, {c}")
                em.raw(f"{L}:")
            elif st.get("extra"):
                e(f"M {d}, {ar(fr,4)}, {ar(QF(2,ks),4)}, {c}")
                em.n -= 1
        elif kind == "V":
            p8 = V_P8 + (ci & 1) * 4
            if f == 0 and ci + 1 < 16:
                em.ds(f"R {vr(V_P8 + ((ci+1)&1)*4, 4)}, v{V_SC}, {(ci+1)*1024}", f"P8_{ci+1}")
            if f < 4:
                em.wait_lg(f"P8_{ci}")
                d = ar(A_O8 + f * 4, 4)
                c = "0" if ci == 0 else d
                e(f"M {d}, {ar(fr,4)}, {vr(p8,4)}, {c}")
                drain(per)
                if f == 3:
                    d = ar(A_L8, 4)
                    c = "0" if ci == 0 else d
                    e(f"M {d}, {vr(V_ONE,4)}, {vr(p8,4)}, {c}")
                    drain(per)
        if kind == "W" and ci == 13 and (f & 1):
            push(qconv_items(f >> 1), after=em.n + 9)
        if kind == "K" and (f & 7) == 7:
            push(s_items(ci, f >> 3), after=em.n + 13)
        if kind == "V":
            if f == 0 and ci + 1 < 16:
                push(p_items(ci + 1))
            if ci == 15:
                if f == 0:
                    push(xreduce("add", [V_L, V_L + 1]))
                    push([f"v_rcp_f32 v{V_L+qt}, v{V_L+qt}" for qt in range(NT)])
                    push([("nop", 1)])
                if f == 5:
                    push([f"v_accvgpr_read_b32 v{V_M8}, a{A_L8}", f"v_rcp_f32 v{V_M8}, v{V_M8}", ("nop", 1)], after=em.n + 9)
                    for k in range(2):
                        push(epi_block(A_O8 + k * 8, V_M8, S_OQ + 2, k))
                if f & 1:
                    push(epi_items(f >> 1), after=em.n + 9)

    total = nsteps * 16
    st["li"] = 0

    def body(G):
        if G < total:
            i, f = divmod(G, 16)
            if f == 0:
                kind, ci = chunks[i]
                em.wait_vm(f"{kind}{ci}")
                e("s_barrier")
                if PROF:
                    e("s_memtime s[60:61]")
                    e("s_waitcnt lgkmcnt(0)")
                    em.lg = []
                    e(f"v_writelane_b32 v49, s60, {i}")
                while dq:
                    emit_dma(dq.pop(0))
                if i >= 2 and st["li"] < len(later):
                    c = later[st["li"]]
                    st["li"] += 1
                    slot_of[c] = slot_of[chunks[i - 2]]
                    issue(c, True)
                xload(i + PX)
                if i + 1 < NK0:
                    issue(("K", i + 1), True)
                if i == 0 or chunks[i - 1][0] != kind:
                    drain_all()
                    set_addr(kind)
                set_base(slot_of[chunks[i]] >> 2)
            reads(G)
        m = G - DREAD
        if m >= 0:
            mfmas(m)
        FS = int(os.environ.get("FS", "35"))
        if PROF and FS * 16 <= G < FS * 16 + 24:
            e("s_memtime s[60:61]")
            e("s_waitcnt lgkmcnt(0)")
            em.lg = []
            e(f"v_writelane_b32 v48, s60, {2*(G - FS*16)}")
        if dq:
            emit_dma(dq.pop(0))
        if PROF and FS * 16 <= G < FS * 16 + 24:
            e("s_memtime s[60:61]")
            e("s_waitcnt lgkmcnt(0)")
            em.lg = []
            e(f"v_writelane_b32 v48, s60, {2*(G - FS*16)+1}")

    import copy
    G = 0
    while G < total + DREAD:
        m = G - DREAD
        if not FORK and m == 14 * 16:
            transition_q8()
            em.wait_lg("q8r")
        if FORK and m >= 0 and chunks[m // 16][0] == "K" and (m & 7) == 0:
            ci, kt = chunks[m // 16][1], (m >> 3) & 1
            k = 2 * (ci & 1) + kt
            if ci == 0 and kt == 0:
                transition_q8()
                em.wait_lg("q8r")
            while any(isinstance(x[1], tuple) and x[1][0] == "blk" for x in q):
                rdy, _ = q[0]
                if rdy is not None and em.n < rdy:
                    em.nop(rdy - em.n)
                drain(1)
            lab[0] += 1
            LP, LJ = f"Lkp_{lab[0]}", f"Lkj_{lab[0]}"
            e(f"s_mov_b64 vcc, s[{S_OWN+2*k}:{S_OWN+2*k+1}]")
            e(f"s_cbranch_vccz {LP}")
            snap = (list(em.vm), list(em.lg), em.n, list(q), list(dq), dict(st), dict(slot_of), lab[0], list(epi_k))
            st["extra"] = True
            for g2 in range(G, G + 8):
                body(g2)
            e(f"s_branch {LJ}")
            em.raw(f"{LP}:")
            nA = em.n
            em.vm, em.lg, em.n = list(snap[0]), list(snap[1]), snap[2]
            q[:] = snap[3]
            dq[:] = snap[4]
            st.clear(); st.update(snap[5])
            slot_of.clear(); slot_of.update(snap[6])
            lab[0] = snap[7] + 1000
            st["extra"] = False
            for g2 in range(G, G + 8):
                body(g2)
            em.raw(f"{LJ}:")
            G += 8
        else:
            body(G)
            G += 1
    drain_all()
    if PROF:
        e("s_memtime s[60:61]")
        e("s_waitcnt lgkmcnt(0)")
        e("v_writelane_b32 v49, s60, 46")
        e("s_waitcnt vmcnt(0)")
        e("s_memtime s[60:61]")
        e("s_waitcnt lgkmcnt(0)")
        e("v_writelane_b32 v49, s60, 47")
        e("v_writelane_b32 v49, s62, 48")
        e("s_memrealtime s[60:61]")
        e("s_waitcnt lgkmcnt(0)")
        e("v_writelane_b32 v49, s60, 49")
        e("v_writelane_b32 v49, s64, 50")
        e("s_lshl_b32 s60, s2, 2")
        e(f"s_add_u32 s60, s60, s{S_WAVE}")
        e("s_lshl_b32 s60, s60, 8")
        e(f"s_add_u32 s60, s60, {32<<20}")
        e(f"v_lshlrev_b32 v50, 2, v{V_LANE}")
        e(f"s_mov_b32 s{S_O+2}, {64<<20}")
        e(f"buffer_store_dword v49, v50, s[{S_O}:{S_O+3}], s60 offen")
        e(f"s_add_u32 s60, s60, {2<<20}")
        e(f"buffer_store_dword v48, v50, s[{S_O}:{S_O+3}], s60 offen")
    tail(em)
    em.raw("L_k1_exit:")
    e("s_endpgm")


def tail(em):
    e = em.e
    NS = 9
    S_WO, S_OS, S_OUT, S_DB = 8, 12, 16, 20
    S_WG, S_WLD, S_TT, S_ST = 30, 31, 32, 33
    V_L, V_DMA, V_B, V_O, V_A = 1, 2, 3, 4, 6
    V_ACC = 12
    V_FR = 32
    V_BF = 64
    e("s_load_dwordx4 s[44:47], s[0:1], 32")
    e("s_load_dwordx2 s[48:49], s[0:1], 48")
    e("s_waitcnt vmcnt(0) lgkmcnt(0)")
    em.vm = []
    em.lg = []
    e("s_barrier")
    if PROF:
        e("s_memtime s[60:61]")
        e("s_waitcnt lgkmcnt(0)")
        e("v_writelane_b32 v5, s60, 40")
    e(f"s_mov_b32 s{S_DB}, s48")
    e(f"s_mov_b32 s{S_DB+1}, s49")
    e(f"s_mov_b32 s{S_DB+2}, 256")
    e(f"s_mov_b32 s{S_DB+3}, 0x20000")
    e(f"s_cmp_lg_u32 s{S_WAVE}, 0")
    e("s_cbranch_scc1 L_nosig")
    e("s_lshl_b32 s42, s6, 2")
    e("v_mov_b32 v10, s42")
    e("v_mov_b32 v11, 1")
    e("s_mov_b64 exec, 1")
    e(f"buffer_atomic_add v11, v10, s[{S_DB}:{S_DB+3}], 0 offen sc1")
    e("s_mov_b64 exec, -1")
    em.raw("L_nosig:")
    e("s_and_b32 s3, s2, 7")
    e("s_lshr_b32 s4, s2, 3")
    e("s_lshl_b32 s3, s3, 5")
    e("s_add_u32 s3, s3, s4")
    e("s_cmp_ge_u32 s3, 252")
    e("s_cbranch_scc1 L_k1_exit")
    e("s_mul_i32 s4, s3, 9363")
    e("s_lshr_b32 s4, s4, 16")
    e("s_mul_i32 s5, s4, 7")
    e("s_sub_u32 s5, s3, s5")
    e("s_lshl_b32 s6, s5, 7")
    e(f"s_add_u32 s{S_WO}, s44, s6")
    e(f"s_addc_u32 s{S_WO+1}, s45, 0")
    e(f"s_sub_u32 s{S_WO+2}, {4096*896}, s6")
    e(f"s_mov_b32 s{S_WO+3}, 0x20000")
    e("s_lshl_b32 s7, s4, 2")
    e(f"s_add_u32 s7, s7, s{S_WAVE}")
    e("s_lshl_b32 s25, s7, 17")
    e(f"s_add_u32 s{S_OS}, s52, s25")
    e(f"s_addc_u32 s{S_OS+1}, s53, 0")
    e(f"s_mov_b32 s{S_OS+2}, 131072")
    e(f"s_mov_b32 s{S_OS+3}, 0x20000")
    e(f"s_mov_b32 s{S_OUT}, s46")
    e(f"s_mov_b32 s{S_OUT+1}, s47")
    e(f"s_mov_b32 s{S_OUT+2}, {2304*896}")
    e(f"s_mov_b32 s{S_OUT+3}, 0x20000")
    e(f"s_mul_i32 s{S_ST}, s7, {16*896}")
    e(f"s_add_u32 s{S_ST}, s{S_ST}, s6")
    e(f"s_mul_i32 s{S_WG}, s{S_WAVE}, {32*896}")
    e(f"s_lshl_b32 s{S_WLD}, s{S_WAVE}, 12")
    e(f"v_lshrrev_b32 v10, 3, v{V_L}")
    e("v_mul_u32_u24 v10, 896, v10")
    e(f"v_bfe_u32 v11, v{V_L}, 1, 2")
    e(f"v_lshrrev_b32 v12, 4, v{V_L}")
    e("v_xor_b32 v11, v11, v12")
    e("v_lshl_add_u32 v10, v11, 5, v10")
    e(f"v_and_b32 v11, 1, v{V_L}")
    e(f"v_lshl_add_u32 v{V_DMA}, v11, 4, v10")
    e(f"v_lshlrev_b32 v{V_B}, 4, v{V_L}")
    e(f"v_and_b32 v10, 15, v{V_L}")
    e("v_mul_u32_u24 v10, 896, v10")
    e(f"v_lshl_add_u32 v{V_O}, v12, 3, v10")
    e(f"v_bfe_u32 v10, v{V_L}, 2, 2")
    e("v_lshl_add_u32 v10, v12, 2, v10")
    e("v_bfe_u32 v11, v10, 1, 2")
    e("v_lshlrev_b32 v10, 7, v10")
    e("v_lshl_add_u32 v10, v11, 5, v10")
    e(f"v_and_b32 v11, 3, v{V_L}")
    e("v_lshl_add_u32 v10, v11, 3, v10")
    for u in range(4):
        e(f"v_xor_b32 v{V_A+u}, {u<<5}, v10")
    st = {"base": 0}
    NB = 6
    if ROT & 2:
        e("s_and_b32 s78, s3, 31")
    else:
        e("s_mov_b32 s78, 0")

    def dma_ops(cc):
        slot = cc % NS
        pre = [f"s_add_u32 s80, s78, {cc}", "s_and_b32 s80, s80, 31", f"s_mul_i32 s80, s80, {128*896}", f"s_add_u32 s80, s80, s{S_WG}"]
        return [(pre if jj == 0 else []) + [f"s_add_u32 m0, s{S_WLD}, {slot*16384 + jj*1024}",
                 f"s_add_u32 s{S_TT}, s80, {jj*8*896}",
                 (f"buffer_load_dwordx4 v{V_DMA}, s[{S_WO}:{S_WO+3}], s{S_TT} offen lds", f"D{cc}")] for jj in range(4)]

    def b_ops(cc):
        rs = cc % NB
        pre = [f"s_add_u32 s81, s78, {cc}", "s_and_b32 s81, s81, 31", "s_lshl_b32 s81, s81, 12"]
        return [(pre if jj == 0 else []) +
                [(f"buffer_load_dwordx4 {vr(V_BF + rs*16 + jj*4, 4)}, v{V_B}, s[{S_OS}:{S_OS+3}], s81 offen offset:{jj*1024} sc1", f"B{cc}")] for jj in range(4)]

    def emit_op(op):
        for x in op:
            if isinstance(x, tuple):
                em.vmem(x[0], x[1])
            else:
                e(x)

    for cc in range(NS - 2):
        for op in dma_ops(cc):
            emit_op(op)
    e(f"s_cmp_lg_u32 s{S_WAVE}, 0")
    e("s_cbranch_scc1 L_nopoll")
    e("s_lshl_b32 s42, s4, 2")
    e("s_mul_i32 s43, s42, 7282")
    e("s_lshr_b32 s43, s43, 16")
    e("s_add_u32 s42, s42, 3")
    e("s_mul_i32 s42, s42, 7282")
    e("s_lshr_b32 s42, s42, 16")
    e("s_lshl_b32 s42, s42, 2")
    e("s_lshl_b32 s43, s43, 2")
    e("v_mov_b32 v10, s43")
    e("v_writelane_b32 v10, s42, 1")
    e("s_mov_b32 s42, 0")
    e("s_mov_b64 exec, 3")
    em.raw("L_poll:")
    e(f"buffer_load_dword v11, v10, s[{S_DB}:{S_DB+3}], 0 offen sc1")
    e("s_waitcnt vmcnt(0)")
    e("v_cmp_le_u32 vcc, 16, v11")
    e("s_nop 1")
    e("s_cmp_eq_u64 vcc, 3")
    e("s_cbranch_scc1 L_polled")
    e("s_sleep 2")
    e("s_add_u32 s42, s42, 1")
    e("s_cmp_lt_u32 s42, 0x400000")
    e("s_cbranch_scc1 L_poll")
    em.raw("L_polled:")
    e("s_mov_b64 exec, -1")
    em.raw("L_nopoll:")
    e("s_barrier")
    if PROF:
        e("s_memtime s[60:61]")
        e("s_waitcnt lgkmcnt(0)")
        e("v_writelane_b32 v5, s60, 41")
    for cc in range(NB):
        for op in b_ops(cc):
            emit_op(op)
    D = 4
    total = 32 * 16
    pend = []

    def reads(G):
        cc, f = divmod(G, 16)
        ss, u = f >> 2, f & 3
        slot = cc % NS
        if f == 0:
            grp = slot >> 2
            if grp != st["base"]:
                d = (grp - st["base"]) * 65536
                for b in range(4):
                    e(f"v_add_u32 v{V_A+b}, {d & 0xffffffff}, v{V_A+b}")
                st["base"] = grp
        off = (slot & 3) * 16384 + ss * 4096
        fr = V_FR + (G % 8) * 4
        em.ds(f"T {vr(fr,2)}, v{V_A+u}, {off}", f"F{G}")
        em.ds(f"T {vr(fr+2,2)}, v{V_A+u}, {off+2048}", f"F{G}")

    def mfma(G):
        cc, f = divmod(G, 16)
        ss, u = f >> 2, f & 3
        fr = V_FR + (G % 8) * 4
        if f == 0:
            em.wait_vm(f"B{cc}")
        em.wait_lg(f"F{G}")
        d = vr(V_ACC + u * 4, 4)
        c = "0" if (cc == 0 and ss == 0) else d
        e(f"M {d}, {vr(fr,4)}, {vr(V_BF + (cc % NB)*16 + ss*4, 4)}, {c}")
        if f == 0 and cc >= 1 and cc - 1 + NB < 32:
            pend.extend(b_ops(cc - 1 + NB))

    for G in range(total + D):
        if G < total:
            cc, f = divmod(G, 16)
            if f == 0:
                em.wait_vm(f"D{cc}")
                e("s_barrier")
                if PROF:
                    e("s_memtime s[60:61]")
                    e("s_waitcnt lgkmcnt(0)")
                    em.lg = []
                    e(f"v_writelane_b32 v5, s60, {cc}")
                if cc - 2 + NS < 32:
                    pend.extend(dma_ops(cc - 2 + NS))
            reads(G)
        if G - D >= 0:
            mfma(G - D)
        if pend and (G & 1):
            emit_op(pend.pop(0))
    em.nop(9)
    for u in range(4):
        a = V_ACC + u * 4
        e(f"CV v{28+ (u%2)*2}, v{a}, v{a+1}")
        e(f"CV v{29+ (u%2)*2}, v{a+2}, v{a+3}")
        e(f"buffer_store_dwordx2 v[{28+(u%2)*2}:{29+(u%2)*2}], v{V_O}, s[{S_OUT}:{S_OUT+3}], s{S_ST} offen offset:{u*32}")
    if PROF:
        e("s_waitcnt vmcnt(0)")
        e("s_memtime s[60:61]")
        e("s_waitcnt lgkmcnt(0)")
        e("v_writelane_b32 v5, s60, 47")
        e("v_writelane_b32 v5, s62, 48")
        e("s_lshl_b32 s60, s2, 2")
        e(f"s_add_u32 s60, s60, s{S_WAVE}")
        e("s_lshl_b32 s60, s60, 8")
        e(f"s_add_u32 s60, s60, {33<<20}")
        e(f"v_lshlrev_b32 v10, 2, v{V_L}")
        e(f"s_mov_b32 s{S_OS}, s52")
        e(f"s_mov_b32 s{S_OS+1}, s53")
        e(f"s_mov_b32 s{S_OS+2}, {64<<20}")
        e(f"buffer_store_dword v5, v10, s[{S_OS}:{S_OS+3}], s60 offen")


def kd(name, vgpr, acc):
    return f""".p2align 6
.amdhsa_kernel {name}
  .amdhsa_next_free_vgpr {vgpr}
  .amdhsa_next_free_sgpr 102
  .amdhsa_accum_offset {acc}
  .amdhsa_group_segment_fixed_size 0
  .amdhsa_kernarg_size 64
  .amdhsa_user_sgpr_count 2
  .amdhsa_user_sgpr_kernarg_segment_ptr 1
  .amdhsa_system_sgpr_workgroup_id_x 1
.end_amdhsa_kernel
"""


def main():
    em = Em()
    k1(em)
    for t in range(96):
        assert (t * 4682) >> 16 == t // 14
    for t in range(144):
        assert (t * 7282) >> 16 == t // 9
    txt = HEADER + "\n".join(em.lines) + "\n"
    txt += '.section .rodata,"a"\n' + kd("standalone__mha_block_cached__near_ridge_kernel", 512, 256)
    open(OUT, "w").write(txt)
    print("wrote", OUT, len(txt), "bytes")


main()
```

```python
import math, sys, os, struct

OUT = sys.argv[1] if len(sys.argv) > 1 else "standalone__mha_block_cached__near_ridge.s"
PROF = os.environ.get("PROF", "0") == "1"
NSLOT = 9
NW0 = int(os.environ.get("NW0", "4"))
NK0 = NSLOT - NW0
ROT = int(os.environ.get("ROT", "2"))
FORK = int(os.environ.get("FORK", "0"))
PREF = int(os.environ.get("PREF", "1"))
PX = int(os.environ.get("PX", "4"))
DREAD = int(os.environ.get("DREAD", "5"))
KVNT = os.environ.get("KVNT", " nt")
K2NS = int(os.environ.get("K2NS", "7"))
K2NT = " nt" if os.environ.get("K2NT", "0") == "1" else ""

HEADER = f"""; Kernarg layout for this problem (64 bytes, ptrs only, base s[0:1]):
; @launch grid=(256,1,1) block=(256,1,1) lds=163840
.amdgcn_target "amdgcn-amd-amdhsa--gfx950"
.macro M d, a, b, c
v_mfma_f32_16x16x32_bf16 \\d, \\a, \\b, \\c
.endm
.macro T d, a, o
ds_read_b64_tr_b16 \\d, \\a offset:\\o
.endm
.macro R d, a, o
ds_read_b128 \\d, \\a offset:\\o
.endm
.macro WL n
s_waitcnt lgkmcnt(\\n)
.endm
.macro CV d, a, b
v_cvt_pk_bf16_f32 \\d, \\a, \\b
.endm
.text
"""


class Em:
    def __init__(self):
        self.lines = []
        self.vm = []
        self.lg = []
        self.n = 0

    def e(self, s):
        self.lines.append(s)
        self.n += 1

    def raw(self, s):
        self.lines.append(s)

    def vmem(self, s, tag):
        self.e(s)
        self.vm.append(tag)

    def ds(self, s, tag):
        self.e(s)
        self.lg.append(tag)

    def wait_vm(self, tag):
        idx = max([i for i, t in enumerate(self.vm) if t == tag], default=-1)
        if idx < 0:
            return
        n = min(len(self.vm) - 1 - idx, 63)
        self.e(f"s_waitcnt vmcnt({n})")
        self.vm = self.vm[len(self.vm) - n:] if n > 0 else []

    def wait_lg(self, tag):
        idx = max([i for i, t in enumerate(self.lg) if t == tag], default=-1)
        if idx < 0:
            return
        n = min(len(self.lg) - 1 - idx, 15)
        self.e(f"WL {n}")
        self.lg = self.lg[len(self.lg) - n:] if n > 0 else []

    def nop(self, states):
        while states > 0:
            k = min(states, 16)
            self.e(f"s_nop {k-1}")
            self.n += k - 1
            states -= k


def vr(b, n=1):
    return f"v{b}" if n == 1 else f"v[{b}:{b+n-1}]"


def ar(b, n=1):
    return f"a{b}" if n == 1 else f"a[{b}:{b+n-1}]"


S_X, S_K, S_V, S_W, S_O = 8, 12, 16, 20, 24
S_WAVE = 28
S_C = 29
S_XQ = 32
S_OQ = 36
S_T = 40
S_T2 = 41
V_LANE = 1
V_ADDR = 2
V_D = 10
V_XO = 14
V_ST = 15
V_SACC = 16
V_M = 40
V_L = 43
V_MC = 46
V_T = 50
V_BIG = 64
A_FR = 192


V_Q8 = 192
V_S8 = 208
V_P8 = 212
V_ONE = 220
V_SC = 224
V_M8, V_MC8 = 225, 226
V_SCW = 227
V_T2 = 228
V_QX = 244
V_AD = 248
V_A16 = 16
V_SACC2 = 32
V_EP = 228
A_O8 = 128
A_L8 = 144
SCR = 9 * 16384
S_WL, S_KL = 54, 55
S_XW = 56
S_OWN = 66


def k1(em):
    e = em.e
    global V_M, V_L, V_MC
    V_M, V_L, V_MC = 2, 4, 6
    V_WD, V_KD = 8, 9
    em.raw(".globl standalone__mha_block_cached__near_ridge_kernel\n.p2align 8\n.type standalone__mha_block_cached__near_ridge_kernel,@function\nstandalone__mha_block_cached__near_ridge_kernel:")
    e("s_cmp_ge_u32 s2, 256")
    e("s_cbranch_scc1 L_k1_exit")
    if PROF:
        e("s_memtime s[62:63]")
        e("s_memrealtime s[64:65]")
    e("s_load_dwordx8 s[44:51], s[0:1], 0")
    e("s_load_dwordx2 s[52:53], s[0:1], 56")
    if PREF:
        e("s_getpc_b64 s[76:77]")
        e("s_lshr_b32 s4, s2, 3")
        e("s_cmp_ge_u32 s4, 17")
        e("s_cbranch_scc1 L_nopref")
        e("s_lshl_b32 s4, s4, 12")
        e("v_lshlrev_b32 v2, 4, v0")
        e("v_add_u32 v2, s4, v2")
        e("global_load_dwordx4 v[4:7], v2, s[76:77]")
        em.raw("L_nopref:")
    e("s_and_b32 s3, s2, 7")
    e("s_lshr_b32 s4, s2, 3")
    MAPH = int(os.environ.get("MAPH", "4"))
    lg = {4: 2, 8: 3, 16: 4}[MAPH]
    e(f"s_and_b32 s5, s3, {16 // MAPH - 1}")
    e(f"s_lshl_b32 s5, s5, {lg}")
    e(f"s_and_b32 s6, s4, {MAPH - 1}")
    e("s_add_u32 s5, s5, s6")
    e(f"s_lshr_b32 s6, s3, {4 - lg}")
    e(f"s_lshl_b32 s6, s6, {5 - lg}")
    e(f"s_lshr_b32 s7, s4, {lg}")
    e("s_add_u32 s6, s6, s7")
    e(f"v_and_b32 v{V_LANE}, 63, v0")
    e("v_lshrrev_b32 v2, 6, v0")
    e("s_nop 0")
    e(f"v_readfirstlane_b32 s{S_WAVE}, v2")
    e(f"s_mov_b32 s{S_C}, {hex(struct.unpack('<I', struct.pack('<f', math.log2(math.e)/16.0))[0])}")
    e("s_waitcnt lgkmcnt(0)")
    e("s_mul_i32 s7, s6, 129024")
    e(f"s_add_u32 s{S_X}, s44, s7")
    e(f"s_addc_u32 s{S_X+1}, s45, 0")
    e(f"s_mov_b32 s{S_X+2}, 129024")
    e(f"s_mov_b32 s{S_X+3}, 0x20000")
    e("s_lshl_b32 s7, s6, 4")
    e("s_add_u32 s7, s7, s5")
    e("s_lshl_b32 s7, s7, 18")
    e(f"s_add_u32 s{S_K}, s46, s7")
    e(f"s_addc_u32 s{S_K+1}, s47, 0")
    e(f"s_mov_b32 s{S_K+2}, 262144")
    e(f"s_mov_b32 s{S_K+3}, 0x20000")
    e(f"s_add_u32 s{S_V}, s48, s7")
    e(f"s_addc_u32 s{S_V+1}, s49, 0")
    e(f"s_mov_b32 s{S_V+2}, 262144")
    e(f"s_mov_b32 s{S_V+3}, 0x20000")
    e("s_lshl_b32 s7, s5, 9")
    e(f"s_add_u32 s{S_W}, s50, s7")
    e(f"s_addc_u32 s{S_W+1}, s51, 0")
    e(f"s_mov_b32 s{S_W+2}, {447*8192+512}")
    e(f"s_mov_b32 s{S_W+3}, 0x20000")
    e(f"s_mov_b32 s{S_O}, s52")
    e(f"s_mov_b32 s{S_O+1}, s53")
    e(f"s_mov_b32 s{S_O+2}, {144*128*1024}")
    e(f"s_mov_b32 s{S_O+3}, 0x20000")
    e(f"s_lshl_b32 s7, s{S_WAVE}, 1")
    for qt in range(3):
        if qt < 2:
            e(f"s_add_u32 s42, s7, {qt}")
        else:
            e("s_mov_b32 s42, 8")
        e(f"s_mul_i32 s{S_XQ+qt}, s42, 14336")
        e("s_mul_i32 s43, s6, 9")
        e("s_add_u32 s43, s43, s42")
        e("s_lshl_b32 s43, s43, 7")
        e("s_lshl_b32 s42, s5, 3")
        e("s_add_u32 s43, s43, s42")
        e(f"s_lshl_b32 s{S_OQ+qt}, s43, 10")
    e("s_mul_i32 s78, s4, 3")
    e("s_mul_i32 s42, s78, 4682")
    e("s_lshr_b32 s42, s42, 16")
    e("s_mul_i32 s42, s42, 14")
    e("s_sub_u32 s78, s78, s42")
    if not (ROT & 1):
        e("s_mov_b32 s78, 0")
    for a in range(4):
        e(f"s_xor_b32 s42, s{S_WAVE}, {a}")
        e(f"s_lshl_b32 s{S_XW+a}, s42, 11")
    for k in range(4):
        e(f"s_cmp_eq_u32 s{S_WAVE}, {k}")
        e(f"s_cselect_b64 s[{S_OWN+2*k}:{S_OWN+2*k+1}], -1, 0")
    t0, t1, t2, t3 = V_T, V_T + 1, V_T + 2, V_T + 3
    e(f"v_and_b32 v{t0}, 15, v{V_LANE}")
    e(f"v_mul_u32_u24 v{t0}, 896, v{t0}")
    e(f"v_lshrrev_b32 v{t1}, 4, v{V_LANE}")
    e(f"v_lshl_add_u32 v{V_XO}, v{t1}, 4, v{t0}")
    e(f"v_lshlrev_b32 v{V_ST}, 4, v{V_LANE}")
    e(f"s_lshl_b32 s42, s{S_WAVE}, 1")
    e(f"s_lshl_b32 s{S_KL}, s{S_WAVE}, 10")
    e(f"v_lshrrev_b32 v{t0}, 5, v{V_LANE}")
    e(f"v_add_u32 v{t0}, s42, v{t0}")
    e(f"v_and_b32 v{t1}, 31, v{V_LANE}")
    e(f"v_lshlrev_b32 v{t2}, 1, v{t0}")
    e(f"v_xor_b32 v{t2}, v{t1}, v{t2}")
    e(f"v_lshlrev_b32 v{t2}, 4, v{t2}")
    e(f"v_lshl_add_u32 v{V_KD}, v{t0}, 9, v{t2}")
    e(f"s_and_b32 s42, s{S_WAVE}, 1")
    e("s_lshl_b32 s42, s42, 1")
    e(f"s_lshr_b32 s43, s{S_WAVE}, 1")
    e("s_lshl_b32 s43, s43, 3")
    e("s_add_u32 s42, s42, s43")
    e(f"s_lshl_b32 s{S_WL}, s42, 9")
    e(f"v_lshrrev_b32 v{t0}, 5, v{V_LANE}")
    e(f"v_add_u32 v{t0}, s42, v{t0}")
    e(f"v_and_b32 v{t2}, 3, v{t0}")
    e(f"v_bfe_u32 v{t3}, v{t0}, 3, 1")
    e(f"v_lshl_add_u32 v{t2}, v{t3}, 2, v{t2}")
    e(f"v_lshlrev_b32 v{t2}, 1, v{t2}")
    e(f"v_xor_b32 v{t2}, v{t1}, v{t2}")
    e(f"v_lshlrev_b32 v{t2}, 4, v{t2}")
    e(f"v_lshl_add_u32 v{V_WD}, v{t0}, 13, v{t2}")
    e(f"v_lshlrev_b32 v{V_SC}, 4, v{V_LANE}")
    e(f"v_add_u32 v{V_SC}, {SCR}, v{V_SC}")
    for a in range(4):
        e(f"v_add_u32 v{V_QX+a}, s{S_XW+a}, v{V_SC}")
    for j in range(4):
        e(f"v_mov_b32 v{V_ONE+j}, 0x3f803f80")

    NT = 2
    chunks = [("W", i) for i in range(14)] + [("K", i) for i in range(16)] + [("V", i) for i in range(16)]
    nsteps = len(chunks)
    slot_of = {}
    init = [("W", i) for i in range(NW0)] + [("K", i) for i in range(NK0)]
    for s_, c in enumerate(init):
        slot_of[c] = s_
    later = [c for c in chunks if c not in slot_of]
    dq = []

    def kc(c, dst):
        e(f"s_add_u32 s{dst}, s78, {c}")
        e(f"s_cmp_ge_u32 s{dst}, 14")
        e(f"s_cselect_b32 s79, 14, 0")
        e(f"s_sub_u32 s{dst}, s{dst}, s79")

    def emit_dma(item):
        sl, lds, goff, vo, srd, nt, tag = item
        if srd == S_W:
            ci, jr = goff
            if jr == 0:
                kc(ci, 80)
                e("s_lshl_b32 s80, s80, 18")
            e(f"s_add_u32 m0, s{sl}, {lds}")
            e(f"s_add_u32 s{S_T}, s80, {jr*8192}")
        else:
            e(f"s_add_u32 m0, s{sl}, {lds}")
            e(f"s_mov_b32 s{S_T}, {goff}")
        em.vmem(f"buffer_load_dwordx4 v{vo}, s[{srd}:{srd+3}], s{S_T} offen{nt} lds", tag)

    def issue(chunk, defer=False):
        kind, ci = chunk
        slot = slot_of[chunk]
        tag = f"{kind}{ci}"
        its = []
        if kind == "W":
            for jr in (0, 4, 16, 20):
                its.append((S_WL, slot * 16384 + jr * 512, (ci, jr), V_WD, S_W, "", tag))
        else:
            srd = S_K if kind == "K" else S_V
            for jj in range(4):
                its.append((S_KL, slot * 16384 + jj * 4096, ci * 16384 + jj * 4096, V_KD, srd, KVNT, tag))
        for it in its:
            if defer:
                dq.append(it)
            else:
                emit_dma(it)

    def xload(c):
        if c < 14:
            kc(c, 81)
            e("s_lshl_b32 s81, s81, 6")
            for qt in range(3):
                e(f"s_add_u32 s82, s81, s{S_XQ+qt}")
                em.vmem(f"buffer_load_dwordx4 {ar((qt*14+c)*4,4)}, v{V_XO}, s[{S_X}:{S_X+3}], s82 offen", f"x{c}")

    for c in range(max(NW0, PX)):
        if c < NW0:
            issue(("W", c))
        if c < PX:
            xload(c)
    issue(("K", 0))
    st = {"base": 0}

    def set_addr(kind):
        e(f"v_lshrrev_b32 v{t0}, 4, v{V_LANE}")
        e(f"v_bfe_u32 v{t1}, v{V_LANE}, 2, 2")
        e(f"v_and_b32 v{t2}, 3, v{V_LANE}")
        if kind == "W":
            e(f"v_lshl_add_u32 v{t3}, v{t0}, 3, v{t1}")
            e(f"v_lshlrev_b32 v{t3}, 9, v{t3}")
            e(f"v_and_b32 v{t0}, 1, v{t0}")
            e(f"v_lshl_add_u32 v{t0}, v{t0}, 2, v{t1}")
            e(f"v_lshl_add_u32 v{t3}, v{t0}, 5, v{t3}")
            e(f"v_lshl_add_u32 v{t3}, v{t2}, 3, v{t3}")
            nb, sh = 16, 5
        elif kind == "V":
            e(f"v_lshl_add_u32 v{t0}, v{t0}, 2, v{t1}")
            e(f"v_lshlrev_b32 v{t3}, 9, v{t0}")
            e(f"v_and_b32 v{t0}, 7, v{t0}")
            e(f"v_lshl_add_u32 v{t3}, v{t0}, 5, v{t3}")
            e(f"v_lshl_add_u32 v{t3}, v{t2}, 3, v{t3}")
            nb, sh = 16, 5
        else:
            e(f"v_and_b32 v{t1}, 15, v{V_LANE}")
            e(f"v_lshlrev_b32 v{t3}, 9, v{t1}")
            e(f"v_and_b32 v{t1}, 7, v{t1}")
            e(f"v_lshlrev_b32 v{t1}, 1, v{t1}")
            e(f"v_xor_b32 v{t1}, v{t0}, v{t1}")
            e(f"v_lshl_add_u32 v{t3}, v{t1}, 4, v{t3}")
            nb, sh = 8, 6
        e(f"s_lshl_b32 s42, s{S_WAVE}, 7")
        e(f"v_xor_b32 v{t3}, s42, v{t3}")
        for b in range(nb):
            e(f"v_xor_b32 v{V_A16+b}, {b << sh}, v{t3}")
        st["base"] = 0
        st["nb"] = nb

    def set_base(grp):
        if grp != st["base"]:
            d = (grp - st["base"]) * 65536
            for b in range(st["nb"]):
                e(f"v_add_u32 v{V_A16+b}, {d & 0xffffffff}, v{V_A16+b}")
            st["base"] = grp

    def frag_reg(G):
        return A_FR + (G % 16) * 4

    def reads(G):
        i, f = divmod(G, 16)
        kind, ci = chunks[i]
        slot = slot_of[chunks[i]]
        sb = (slot & 3) * 16384
        fr = frag_reg(G)
        tag = f"F{G}"
        if kind == "K":
            kt, ks = f >> 3, f & 7
            em.ds(f"R {ar(fr,4)}, v{V_A16+ks}, {sb + kt*8192}", tag)
        else:
            second = 2048 if kind == "W" else 8192
            em.ds(f"T {ar(fr,2)}, v{V_A16+f}, {sb}", tag)
            em.ds(f"T {ar(fr+2,2)}, v{V_A16+f}, {sb + second}", tag)

    def big(qt, idx):
        return V_BIG + (qt * 16 + idx) * 4

    def sacc(kt, qt):
        return V_SACC2 + (kt * 2 + qt) * 4

    def QF(qt, s):
        return (qt * 14 + s) * 4

    def s8reg(ci):
        return V_Q8 + (ci >> 1) * 2

    q = []
    lab = [0]

    def push(instrs, after=None):
        for k, s in enumerate(instrs):
            q.append((after if k == 0 else None, s))

    def drain(cnt):
        k = 0
        while q and k < cnt:
            rdy, s = q[0]
            if rdy is not None and em.n < rdy:
                return
            q.pop(0)
            if isinstance(s, tuple):
                if s[0] == "nop":
                    em.nop(s[1])
                elif s[0] == "st":
                    em.vmem(s[1], "st")
                elif s[0] == "ds":
                    em.ds(s[1], s[2])
                elif s[0] == "blk":
                    for x in s[1]:
                        if x.endswith(":"):
                            em.raw(x)
                        else:
                            e(x)
            else:
                e(s)
            k += 1

    def drain_all():
        while q:
            rdy, s = q[0]
            if rdy is not None and em.n < rdy:
                em.nop(rdy - em.n)
            drain(1)

    def s_items(ci, kt):
        out = []
        for qt in range(NT):
            a, m, dst = sacc(kt, qt), V_M + qt, big(qt, ci) + 2 * kt
            if ci == 0 and kt == 0:
                out.append(f"v_max_f32 v{m}, v{a}, v{a+1}")
            else:
                out.append(f"v_max3_f32 v{m}, v{a}, v{a+1}, v{m}")
            out.append(f"CV v{dst}, v{a}, v{a+1}")
            out.append(f"v_max3_f32 v{m}, v{a+2}, v{a+3}, v{m}")
            out.append(f"CV v{dst+1}, v{a+2}, v{a+3}")
        k = 2 * (ci & 1) + kt
        lab[0] += 1
        L = f"Ls8_{lab[0]}"
        a, m, dst = V_S8, V_M8, s8reg(ci)
        blk = [f"s_mov_b64 vcc, s[{S_OWN+2*k}:{S_OWN+2*k+1}]", f"s_cbranch_vccz {L}",
               f"v_max3_f32 v{m}, v{a}, v{a+1}, v{m}", f"CV v{dst}, v{a}, v{a+1}",
               f"v_max3_f32 v{m}, v{a+2}, v{a+3}, v{m}", f"CV v{dst+1}, v{a+2}, v{a+3}", f"{L}:"]
        out.append(("blk", blk))
        return out

    def qconv_items(s):
        out = []
        tl = [(V_T + qt * 4, big(qt, 2 * s), big(qt, 2 * s + 1), qt) for qt in range(NT)]
        if s < 2:
            tl.append((V_T + 8, V_Q8 + (2 * s) * 4, V_Q8 + (2 * s + 1) * 4, 8))
        for t, p0, p1, qt in tl:
            out += [f"CV v{t}, v{p0}, v{p0+1}", f"CV v{t+1}, v{p0+2}, v{p0+3}",
                    f"CV v{t+2}, v{p1}, v{p1+1}", f"CV v{t+3}, v{p1+2}, v{p1+3}"]
        out.append(("nop", 2))
        for t, *_ in tl:
            out += [f"v_permlane32_swap_b32 v{t}, v{t+2}", f"v_permlane32_swap_b32 v{t+1}, v{t+3}"]
        out.append(("nop", 2))
        for t, *_ in tl:
            out += [f"v_permlane16_swap_b32 v{t}, v{t+2}", f"v_permlane16_swap_b32 v{t+1}, v{t+3}"]
        out.append(("nop", 1))
        for t, p0, p1, qt in tl:
            if qt == 8:
                out.append(("ds", f"ds_write_b128 v{V_QX}, v[{t}:{t+3}] offset:{s*1024}", "q8w"))
            else:
                for j in range(4):
                    out.append(f"v_accvgpr_write_b32 a{QF(qt, s)+j}, v{t+j}")
        return out

    def xreduce(op, regs):
        out = []
        for sw in ("32", "16"):
            for k, r in enumerate(regs):
                out.append(f"v_mov_b32 v{V_T+k}, v{r}")
            out.append(("nop", 2))
            for k, r in enumerate(regs):
                out.append(f"v_permlane{sw}_swap_b32 v{V_T+k}, v{r}")
            out.append(("nop", 1))
            for k, r in enumerate(regs):
                out.append(f"v_{op}_f32 v{r}, v{r}, v{V_T+k}")
        return out

    def p_group(regs):
        n = len(regs)
        T = [(V_T2 + 2 * k, V_T2 + 2 * k + 1) for k in range(n)]
        o = []
        for (R, mc, l), (ta, tb) in zip(regs, T):
            o += [f"v_lshlrev_b32 v{ta}, 16, v{R}", f"v_and_b32 v{tb}, 0xffff0000, v{R}"]
        for (R, mc, l), (ta, tb) in zip(regs, T):
            o += [f"v_fma_f32 v{ta}, v{ta}, s{S_C}, -v{mc}", f"v_fma_f32 v{tb}, v{tb}, s{S_C}, -v{mc}"]
        for (R, mc, l), (ta, tb) in zip(regs, T):
            o += [f"v_exp_f32 v{ta}, v{ta}", f"v_exp_f32 v{tb}, v{tb}"]
        for which in (0, 1):
            for (R, mc, l), tt in zip(regs, T):
                if l is not None:
                    o.append(f"v_add_f32 v{l}, v{l}, v{tt[which]}")
        for (R, mc, l), (ta, tb) in zip(regs, T):
            o.append(f"CV v{R}, v{ta}, v{tb}")
        return o

    def p_items(ci):
        regs = [(big(qt, ci) + j, V_MC + qt, V_L + qt) for j in range(4) for qt in range(NT)]
        return p_group(regs)

    epi_k = [0]

    def epi_block(areg, lreg, soff, sp):
        out = []
        tb = V_EP + (epi_k[0] % 2) * 12
        epi_k[0] += 1
        for j in range(8):
            out.append(f"v_accvgpr_read_b32 v{tb+j}, a{areg+j}")
        for j in range(8):
            out.append(f"v_mul_f32 v{tb+j}, v{tb+j}, v{lreg}")
        for j in range(4):
            out.append(f"CV v{tb+8+j}, v{tb+2*j}, v{tb+2*j+1}")
        out.append(f"s_add_u32 s{S_T2}, s{soff}, s{S_XW + (sp>>1)}")
        out.append(("st", f"buffer_store_dwordx4 v[{tb+8}:{tb+11}], v{V_ST}, s[{S_O}:{S_O+3}], s{S_T2} offen offset:{(sp&1)*1024} sc1"))
        return out

    def epi_items(s):
        out = []
        for qt in range(NT):
            out += epi_block((qt * 16 + 2 * s) * 4, V_L + qt, S_OQ + qt, s)
        return out

    def transition_q8():
        drain_all()
        e(f"v_mov_b32 v{V_M8}, 0xff800000")
        em.wait_lg("q8w")
        e("s_barrier")
        for s in range(8):
            em.ds(f"R {ar(QF(2, s),4)}, v{V_QX + (s>>1)}, {(s&1)*1024}", "q8r")
        em.nop(2)

    def transition_sm():
        drain_all()
        push(xreduce("max", [V_M, V_M + 1, V_M8]))
        drain_all()
        e(f"v_and_b32 v{t0}, 15, v{V_LANE}")
        e(f"v_lshlrev_b32 v{t0}, 2, v{t0}")
        e(f"v_add_u32 v{t0}, {SCR}, v{t0}")
        e(f"s_lshl_b32 s42, s{S_WAVE}, 6")
        e(f"v_add_u32 v{t1}, s42, v{t0}")
        em.ds(f"ds_write_b32 v{t1}, v{V_M8}", "m8w")
        for qt in range(NT):
            e(f"v_mul_f32 v{V_MC+qt}, s{S_C}, v{V_M+qt}")
            e(f"v_mov_b32 v{V_L+qt}, 0")
        e(f"s_lshr_b32 s42, s{S_WAVE}, 1")
        e("s_lshl_b32 s42, s42, 10")
        e(f"s_and_b32 s43, s{S_WAVE}, 1")
        e("s_lshl_b32 s43, s43, 3")
        e("s_add_u32 s42, s42, s43")
        e(f"v_add_u32 v{V_SCW}, s42, v{V_SC}")
        em.wait_lg("m8w")
        e("s_barrier")
        em.ds(f"ds_read2_b32 v[{t2}:{t3}], v{t0} offset0:0 offset1:16", "m8r")
        em.ds(f"ds_read2_b32 v[{t3+1}:{t3+2}], v{t0} offset0:32 offset1:48", "m8r")
        for s in p_items(0):
            e(s)
        em.wait_lg("m8r")
        e("s_barrier")
        e(f"v_max3_f32 v{V_M8}, v{t2}, v{t3}, v{t3+1}")
        e(f"v_max_f32 v{V_M8}, v{V_M8}, v{t3+2}")
        e(f"v_mul_f32 v{V_MC8}, s{S_C}, v{V_M8}")
        for h in range(0, 8, 4):
            regs = [(V_Q8 + 2 * j + k, V_MC8, None) for j in range(h, h + 4) for k in range(2)]
            for s in p_group(regs):
                e(s)
        for j in range(8):
            em.ds(f"ds_write_b64 v{V_SCW}, v[{V_Q8+2*j}:{V_Q8+2*j+1}] offset:{j*2048}", "p8w")
        em.wait_lg("p8w")
        e("s_barrier")
        em.ds(f"R {vr(V_P8,4)}, v{V_SC}, 0", "P8_0")
        em.nop(2)

    def mfmas(G):
        i, f = divmod(G, 16)
        kind, ci = chunks[i]
        fr = frag_reg(G)
        if kind == "V" and ci == 0 and f == 0:
            transition_sm()
        if kind == "W" and f == 0:
            em.wait_vm(f"x{ci}")
        if kind == "V" and f == 0 and ci > 0:
            drain_all()
            em.nop(2)
        em.wait_lg(f"F{G}")
        per = {"W": 3, "K": 2, "V": 3}[kind]
        for qt in range(NT):
            if kind == "W":
                d = vr(big(qt, f), 4)
                c = "0" if ci == 0 else d
                e(f"M {d}, {ar(fr,4)}, {ar((qt*14+ci)*4,4)}, {c}")
            elif kind == "K":
                kt, ks = f >> 3, f & 7
                if ks == 0:
                    assert not any(isinstance(x[1], str) and f"v{sacc(kt,qt)}," in x[1] for x in q), "pending S items"
                d = vr(sacc(kt, qt), 4)
                c = "0" if ks == 0 else d
                e(f"M {d}, {ar(fr,4)}, {ar(QF(qt,ks),4)}, {c}")
            else:
                d = ar((qt * 16 + f) * 4, 4)
                c = "0" if ci == 0 else d
                e(f"M {d}, {ar(fr,4)}, {vr(big(qt,ci),4)}, {c}")
            drain(per)
        if kind == "W" and f < 4:
            d = vr(V_Q8 + f * 4, 4)
            c = "0" if ci == 0 else d
            e(f"M {d}, {ar(fr,4)}, {ar((2*14+ci)*4,4)}, {c}")
            drain(per)
        elif kind == "K":
            kt, ks = f >> 3, f & 7
            if ks == 0:
                while any(isinstance(x[1], tuple) and x[1][0] == "blk" for x in q):
                    rdy, _ = q[0]
                    if rdy is not None and em.n < rdy:
                        em.nop(rdy - em.n)
                    drain(1)
            d = vr(V_S8, 4)
            c = "0" if ks == 0 else d
            if os.environ.get("ALLM", "1") == "1":
                e(f"M {d}, {ar(fr,4)}, {ar(QF(2,ks),4)}, {c}")
                drain(per)
            elif not FORK:
                k = 2 * (ci & 1) + kt
                lab[0] += 1
                L = f"Lk8_{lab[0]}"
                e(f"s_mov_b64 vcc, s[{S_OWN+2*k}:{S_OWN+2*k+1}]")
                e(f"s_cbranch_vccz {L}")
                e(f"M {d}, {ar(fr,4)}, {ar(QF(2,ks),4)}, {c}")
                em.raw(f"{L}:")
            elif st.get("extra"):
                e(f"M {d}, {ar(fr,4)}, {ar(QF(2,ks),4)}, {c}")
                em.n -= 1
        elif kind == "V":
            p8 = V_P8 + (ci & 1) * 4
            if f == 0 and ci + 1 < 16:
                em.ds(f"R {vr(V_P8 + ((ci+1)&1)*4, 4)}, v{V_SC}, {(ci+1)*1024}", f"P8_{ci+1}")
            if f < 4:
                em.wait_lg(f"P8_{ci}")
                d = ar(A_O8 + f * 4, 4)
                c = "0" if ci == 0 else d
                e(f"M {d}, {ar(fr,4)}, {vr(p8,4)}, {c}")
                drain(per)
                if f == 3:
                    d = ar(A_L8, 4)
                    c = "0" if ci == 0 else d
                    e(f"M {d}, {vr(V_ONE,4)}, {vr(p8,4)}, {c}")
                    drain(per)
        if kind == "W" and ci == 13 and (f & 1):
            push(qconv_items(f >> 1), after=em.n + 9)
        if kind == "K" and (f & 7) == 7:
            push(s_items(ci, f >> 3), after=em.n + 13)
        if kind == "V":
            if f == 0 and ci + 1 < 16:
                push(p_items(ci + 1))
            if ci == 15:
                if f == 0:
                    push(xreduce("add", [V_L, V_L + 1]))
                    push([f"v_rcp_f32 v{V_L+qt}, v{V_L+qt}" for qt in range(NT)])
                    push([("nop", 1)])
                if f == 5:
                    push([f"v_accvgpr_read_b32 v{V_M8}, a{A_L8}", f"v_rcp_f32 v{V_M8}, v{V_M8}", ("nop", 1)], after=em.n + 9)
                    for k in range(2):
                        push(epi_block(A_O8 + k * 8, V_M8, S_OQ + 2, k))
                if f & 1:
                    push(epi_items(f >> 1), after=em.n + 9)

    total = nsteps * 16
    st["li"] = 0

    def body(G):
        if G < total:
            i, f = divmod(G, 16)
            if f == 0:
                kind, ci = chunks[i]
                em.wait_vm(f"{kind}{ci}")
                e("s_barrier")
                if PROF:
                    e("s_memtime s[60:61]")
                    e("s_waitcnt lgkmcnt(0)")
                    em.lg = []
                    e(f"v_writelane_b32 v49, s60, {i}")
                while dq:
                    emit_dma(dq.pop(0))
                if i >= 2 and st["li"] < len(later):
                    c = later[st["li"]]
                    st["li"] += 1
                    slot_of[c] = slot_of[chunks[i - 2]]
                    issue(c, True)
                xload(i + PX)
                if i + 1 < NK0:
                    issue(("K", i + 1), True)
                if i == 0 or chunks[i - 1][0] != kind:
                    drain_all()
                    set_addr(kind)
                set_base(slot_of[chunks[i]] >> 2)
            reads(G)
        m = G - DREAD
        if m >= 0:
            mfmas(m)
        FS = int(os.environ.get("FS", "35"))
        if PROF and FS * 16 <= G < FS * 16 + 24:
            e("s_memtime s[60:61]")
            e("s_waitcnt lgkmcnt(0)")
            em.lg = []
            e(f"v_writelane_b32 v48, s60, {2*(G - FS*16)}")
        if dq:
            emit_dma(dq.pop(0))
        if PROF and FS * 16 <= G < FS * 16 + 24:
            e("s_memtime s[60:61]")
            e("s_waitcnt lgkmcnt(0)")
            em.lg = []
            e(f"v_writelane_b32 v48, s60, {2*(G - FS*16)+1}")

    import copy
    G = 0
    while G < total + DREAD:
        m = G - DREAD
        if not FORK and m == 14 * 16:
            transition_q8()
            em.wait_lg("q8r")
        if FORK and m >= 0 and chunks[m // 16][0] == "K" and (m & 7) == 0:
            ci, kt = chunks[m // 16][1], (m >> 3) & 1
            k = 2 * (ci & 1) + kt
            if ci == 0 and kt == 0:
                transition_q8()
                em.wait_lg("q8r")
            while any(isinstance(x[1], tuple) and x[1][0] == "blk" for x in q):
                rdy, _ = q[0]
                if rdy is not None and em.n < rdy:
                    em.nop(rdy - em.n)
                drain(1)
            lab[0] += 1
            LP, LJ = f"Lkp_{lab[0]}", f"Lkj_{lab[0]}"
            e(f"s_mov_b64 vcc, s[{S_OWN+2*k}:{S_OWN+2*k+1}]")
            e(f"s_cbranch_vccz {LP}")
            snap = (list(em.vm), list(em.lg), em.n, list(q), list(dq), dict(st), dict(slot_of), lab[0], list(epi_k))
            st["extra"] = True
            for g2 in range(G, G + 8):
                body(g2)
            e(f"s_branch {LJ}")
            em.raw(f"{LP}:")
            nA = em.n
            em.vm, em.lg, em.n = list(snap[0]), list(snap[1]), snap[2]
            q[:] = snap[3]
            dq[:] = snap[4]
            st.clear(); st.update(snap[5])
            slot_of.clear(); slot_of.update(snap[6])
            lab[0] = snap[7] + 1000
            st["extra"] = False
            for g2 in range(G, G + 8):
                body(g2)
            em.raw(f"{LJ}:")
            G += 8
        else:
            body(G)
            G += 1
    drain_all()
    if PROF:
        e("s_memtime s[60:61]")
        e("s_waitcnt lgkmcnt(0)")
        e("v_writelane_b32 v49, s60, 46")
        e("s_waitcnt vmcnt(0)")
        e("s_memtime s[60:61]")
        e("s_waitcnt lgkmcnt(0)")
        e("v_writelane_b32 v49, s60, 47")
        e("v_writelane_b32 v49, s62, 48")
        e("s_memrealtime s[60:61]")
        e("s_waitcnt lgkmcnt(0)")
        e("v_writelane_b32 v49, s60, 49")
        e("v_writelane_b32 v49, s64, 50")
        e("s_lshl_b32 s60, s2, 2")
        e(f"s_add_u32 s60, s60, s{S_WAVE}")
        e("s_lshl_b32 s60, s60, 8")
        e(f"s_add_u32 s60, s60, {32<<20}")
        e(f"v_lshlrev_b32 v50, 2, v{V_LANE}")
        e(f"s_mov_b32 s{S_O+2}, {64<<20}")
        e(f"buffer_store_dword v49, v50, s[{S_O}:{S_O+3}], s60 offen")
        e(f"s_add_u32 s60, s60, {2<<20}")
        e(f"buffer_store_dword v48, v50, s[{S_O}:{S_O+3}], s60 offen")
    tail(em)
    em.raw("L_k1_exit:")
    e("s_endpgm")


def tail(em):
    e = em.e
    NS = 9
    S_WO, S_OS, S_OUT, S_DB = 8, 12, 16, 20
    S_WG, S_WLD, S_TT, S_ST = 30, 31, 32, 33
    V_L, V_DMA, V_B, V_O, V_A = 1, 2, 3, 4, 6
    V_ACC = 12
    V_FR = 32
    V_BF = 64
    e("s_load_dwordx4 s[44:47], s[0:1], 32")
    e("s_load_dwordx2 s[48:49], s[0:1], 48")
    e("s_waitcnt vmcnt(0) lgkmcnt(0)")
    em.vm = []
    em.lg = []
    e("s_barrier")
    if PROF:
        e("s_memtime s[60:61]")
        e("s_waitcnt lgkmcnt(0)")
        e("v_writelane_b32 v5, s60, 40")
    e(f"s_mov_b32 s{S_DB}, s48")
    e(f"s_mov_b32 s{S_DB+1}, s49")
    e(f"s_mov_b32 s{S_DB+2}, 256")
    e(f"s_mov_b32 s{S_DB+3}, 0x20000")
    e(f"s_cmp_lg_u32 s{S_WAVE}, 0")
    e("s_cbranch_scc1 L_nosig")
    e("s_lshl_b32 s42, s6, 2")
    e("v_mov_b32 v10, s42")
    e("s_lshl_b32 s42, 1, s5")
    e("v_mov_b32 v11, s42")
    e("s_mov_b64 exec, 1")
    e(f"buffer_atomic_or v11, v10, s[{S_DB}:{S_DB+3}], 0 offen sc1")
    e("s_mov_b64 exec, -1")
    em.raw("L_nosig:")
    e("s_and_b32 s3, s2, 7")
    e("s_lshr_b32 s4, s2, 3")
    e("s_lshl_b32 s3, s3, 5")
    e("s_add_u32 s3, s3, s4")
    e("s_cmp_ge_u32 s3, 252")
    e("s_cbranch_scc1 L_k1_exit")
    e("s_mul_i32 s4, s3, 9363")
    e("s_lshr_b32 s4, s4, 16")
    e("s_mul_i32 s5, s4, 7")
    e("s_sub_u32 s5, s3, s5")
    e("s_lshl_b32 s6, s5, 7")
    e(f"s_add_u32 s{S_WO}, s44, s6")
    e(f"s_addc_u32 s{S_WO+1}, s45, 0")
    e(f"s_sub_u32 s{S_WO+2}, {4096*896}, s6")
    e(f"s_mov_b32 s{S_WO+3}, 0x20000")
    e("s_lshl_b32 s7, s4, 2")
    e(f"s_add_u32 s7, s7, s{S_WAVE}")
    e("s_lshl_b32 s25, s7, 17")
    e(f"s_add_u32 s{S_OS}, s52, s25")
    e(f"s_addc_u32 s{S_OS+1}, s53, 0")
    e(f"s_mov_b32 s{S_OS+2}, 131072")
    e(f"s_mov_b32 s{S_OS+3}, 0x20000")
    e(f"s_mov_b32 s{S_OUT}, s46")
    e(f"s_mov_b32 s{S_OUT+1}, s47")
    e(f"s_mov_b32 s{S_OUT+2}, {2304*896}")
    e(f"s_mov_b32 s{S_OUT+3}, 0x20000")
    e(f"s_mul_i32 s{S_ST}, s7, {16*896}")
    e(f"s_add_u32 s{S_ST}, s{S_ST}, s6")
    e(f"s_mul_i32 s{S_WG}, s{S_WAVE}, {32*896}")
    e(f"s_lshl_b32 s{S_WLD}, s{S_WAVE}, 12")
    e(f"v_lshrrev_b32 v10, 3, v{V_L}")
    e("v_mul_u32_u24 v10, 896, v10")
    e(f"v_bfe_u32 v11, v{V_L}, 1, 2")
    e(f"v_lshrrev_b32 v12, 4, v{V_L}")
    e("v_xor_b32 v11, v11, v12")
    e("v_lshl_add_u32 v10, v11, 5, v10")
    e(f"v_and_b32 v11, 1, v{V_L}")
    e(f"v_lshl_add_u32 v{V_DMA}, v11, 4, v10")
    e(f"v_lshlrev_b32 v{V_B}, 4, v{V_L}")
    e(f"v_and_b32 v10, 15, v{V_L}")
    e("v_mul_u32_u24 v10, 896, v10")
    e(f"v_lshl_add_u32 v{V_O}, v12, 3, v10")
    e(f"v_bfe_u32 v10, v{V_L}, 2, 2")
    e("v_lshl_add_u32 v10, v12, 2, v10")
    e("v_bfe_u32 v11, v10, 1, 2")
    e("v_lshlrev_b32 v10, 7, v10")
    e("v_lshl_add_u32 v10, v11, 5, v10")
    e(f"v_and_b32 v11, 3, v{V_L}")
    e("v_lshl_add_u32 v10, v11, 3, v10")
    for u in range(4):
        e(f"v_xor_b32 v{V_A+u}, {u<<5}, v10")
    st = {"base": 0}
    NB = 6
    if ROT & 2:
        e("s_and_b32 s78, s3, 31")
    else:
        e("s_mov_b32 s78, 0")

    def dma_ops(cc):
        slot = cc % NS
        pre = [f"s_add_u32 s80, s78, {cc}", "s_and_b32 s80, s80, 31", f"s_mul_i32 s80, s80, {128*896}", f"s_add_u32 s80, s80, s{S_WG}"]
        return [(pre if jj == 0 else []) + [f"s_add_u32 m0, s{S_WLD}, {slot*16384 + jj*1024}",
                 f"s_add_u32 s{S_TT}, s80, {jj*8*896}",
                 (f"buffer_load_dwordx4 v{V_DMA}, s[{S_WO}:{S_WO+3}], s{S_TT} offen lds", f"D{cc}")] for jj in range(4)]

    def b_ops(cc):
        rs = cc % NB
        pre = [f"s_add_u32 s81, s78, {cc}", "s_and_b32 s81, s81, 31", "s_lshl_b32 s81, s81, 12"]
        return [(pre if jj == 0 else []) +
                [(f"buffer_load_dwordx4 {vr(V_BF + rs*16 + jj*4, 4)}, v{V_B}, s[{S_OS}:{S_OS+3}], s81 offen offset:{jj*1024} sc1", f"B{cc}")] for jj in range(4)]

    def emit_op(op):
        for x in op:
            if isinstance(x, tuple):
                em.vmem(x[0], x[1])
            else:
                e(x)

    for cc in range(NS - 2):
        for op in dma_ops(cc):
            emit_op(op)
    e("s_lshl_b32 s42, s4, 2")
    e("s_mul_i32 s43, s42, 7282")
    e("s_lshr_b32 s43, s43, 16")
    e("s_add_u32 s42, s42, 3")
    e("s_mul_i32 s42, s42, 7282")
    e("s_lshr_b32 s42, s42, 16")
    e("s_lshl_b32 s42, s42, 2")
    e("s_lshl_b32 s43, s43, 2")
    e("v_mov_b32 v30, s43")
    e("v_writelane_b32 v30, s42, 1")
    e("s_mov_b32 s85, 0")
    plab = [0]

    def need(p):
        plab[0] += 1
        n = plab[0]
        e(f"s_add_u32 s83, s78, {p}")
        e("s_and_b32 s83, s83, 31")
        e("s_lshr_b32 s83, s83, 1")
        e("s_mov_b32 s86, 0")
        em.raw(f"L_pc{n}:")
        e("s_lshr_b32 s84, s85, s83")
        e("s_and_b32 s84, s84, 1")
        e(f"s_cbranch_scc1 L_pd{n}")
        e("s_mov_b64 exec, 3")
        e(f"buffer_load_dword v31, v30, s[{S_DB}:{S_DB+3}], 0 offen sc1")
        e("s_waitcnt vmcnt(0)")
        e("s_mov_b64 exec, -1")
        e("v_readlane_b32 s84, v31, 0")
        e("v_readlane_b32 s85, v31, 1")
        e("s_and_b32 s85, s85, s84")
        e("s_sleep 1")
        e("s_add_u32 s86, s86, 1")
        e("s_cmp_lt_u32 s86, 0x400000")
        e(f"s_cbranch_scc1 L_pc{n}")
        em.raw(f"L_pd{n}:")

    e(f"s_cmp_lg_u32 s{S_WAVE}, 0")
    e("s_cbranch_scc1 L_nopoll")
    for p in range(NB):
        need(p)
    em.raw("L_nopoll:")
    e("s_barrier")
    if PROF:
        e("s_memtime s[60:61]")
        e("s_waitcnt lgkmcnt(0)")
        e("v_writelane_b32 v5, s60, 41")
    for cc in range(NB):
        for op in b_ops(cc):
            emit_op(op)
    D = 4
    total = 32 * 16
    pend = []

    def reads(G):
        cc, f = divmod(G, 16)
        ss, u = f >> 2, f & 3
        slot = cc % NS
        if f == 0:
            grp = slot >> 2
            if grp != st["base"]:
                d = (grp - st["base"]) * 65536
                for b in range(4):
                    e(f"v_add_u32 v{V_A+b}, {d & 0xffffffff}, v{V_A+b}")
                st["base"] = grp
        off = (slot & 3) * 16384 + ss * 4096
        fr = V_FR + (G % 8) * 4
        em.ds(f"T {vr(fr,2)}, v{V_A+u}, {off}", f"F{G}")
        em.ds(f"T {vr(fr+2,2)}, v{V_A+u}, {off+2048}", f"F{G}")

    def mfma(G):
        cc, f = divmod(G, 16)
        ss, u = f >> 2, f & 3
        fr = V_FR + (G % 8) * 4
        if f == 0:
            em.wait_vm(f"B{cc}")
        em.wait_lg(f"F{G}")
        d = vr(V_ACC + u * 4, 4)
        c = "0" if (cc == 0 and ss == 0) else d
        e(f"M {d}, {vr(fr,4)}, {vr(V_BF + (cc % NB)*16 + ss*4, 4)}, {c}")
        if f == 0 and cc >= 1 and cc - 1 + NB < 32:
            pend.extend(b_ops(cc - 1 + NB))

    for G in range(total + D):
        if G < total:
            cc, f = divmod(G, 16)
            if f == 0:
                if cc >= 1 and cc - 1 + NB < 32:
                    e(f"s_cmp_lg_u32 s{S_WAVE}, 0")
                    e(f"s_cbranch_scc1 L_np{cc}")
                    need(cc - 1 + NB)
                    em.raw(f"L_np{cc}:")
                em.wait_vm(f"D{cc}")
                e("s_barrier")
                if PROF:
                    e("s_memtime s[60:61]")
                    e("s_waitcnt lgkmcnt(0)")
                    em.lg = []
                    e(f"v_writelane_b32 v5, s60, {cc}")
                if cc - 2 + NS < 32:
                    pend.extend(dma_ops(cc - 2 + NS))
            reads(G)
        if G - D >= 0:
            mfma(G - D)
        if pend and (G & 1):
            emit_op(pend.pop(0))
    em.nop(9)
    for u in range(4):
        a = V_ACC + u * 4
        e(f"CV v{28+ (u%2)*2}, v{a}, v{a+1}")
        e(f"CV v{29+ (u%2)*2}, v{a+2}, v{a+3}")
        e(f"buffer_store_dwordx2 v[{28+(u%2)*2}:{29+(u%2)*2}], v{V_O}, s[{S_OUT}:{S_OUT+3}], s{S_ST} offen offset:{u*32}")
    if PROF:
        e("s_waitcnt vmcnt(0)")
        e("s_memtime s[60:61]")
        e("s_waitcnt lgkmcnt(0)")
        e("v_writelane_b32 v5, s60, 47")
        e("v_writelane_b32 v5, s62, 48")
        e("s_lshl_b32 s60, s2, 2")
        e(f"s_add_u32 s60, s60, s{S_WAVE}")
        e("s_lshl_b32 s60, s60, 8")
        e(f"s_add_u32 s60, s60, {33<<20}")
        e(f"v_lshlrev_b32 v10, 2, v{V_L}")
        e(f"s_mov_b32 s{S_OS}, s52")
        e(f"s_mov_b32 s{S_OS+1}, s53")
        e(f"s_mov_b32 s{S_OS+2}, {64<<20}")
        e(f"buffer_store_dword v5, v10, s[{S_OS}:{S_OS+3}], s60 offen")


def kd(name, vgpr, acc):
    return f""".p2align 6
.amdhsa_kernel {name}
  .amdhsa_next_free_vgpr {vgpr}
  .amdhsa_next_free_sgpr 102
  .amdhsa_accum_offset {acc}
  .amdhsa_group_segment_fixed_size 0
  .amdhsa_kernarg_size 64
  .amdhsa_user_sgpr_count 2
  .amdhsa_user_sgpr_kernarg_segment_ptr 1
  .amdhsa_system_sgpr_workgroup_id_x 1
.end_amdhsa_kernel
"""


def main():
    em = Em()
    k1(em)
    for t in range(96):
        assert (t * 4682) >> 16 == t // 14
    for t in range(144):
        assert (t * 7282) >> 16 == t // 9
    txt = HEADER + "\n".join(em.lines) + "\n"
    txt += '.section .rodata,"a"\n' + kd("standalone__mha_block_cached__near_ridge_kernel", 512, 256)
    open(OUT, "w").write(txt)
    print("wrote", OUT, len(txt), "bytes")


main()
```

```python
import math, sys, os, struct

OUT = sys.argv[1] if len(sys.argv) > 1 else "standalone__mha_block_cached__near_ridge.s"
PROF = os.environ.get("PROF", "0") == "1"
NSLOT = 9
NW0 = int(os.environ.get("NW0", "4"))
NK0 = NSLOT - NW0
ROT = int(os.environ.get("ROT", "2"))
FORK = int(os.environ.get("FORK", "0"))
PREF = int(os.environ.get("PREF", "1"))
PX = int(os.environ.get("PX", "4"))
DREAD = int(os.environ.get("DREAD", "5"))
KVNT = os.environ.get("KVNT", " nt")
K2NS = int(os.environ.get("K2NS", "7"))
K2NT = " nt" if os.environ.get("K2NT", "0") == "1" else ""

HEADER = f"""; Kernarg layout for this problem (64 bytes, ptrs only, base s[0:1]):
; @launch grid=(256,1,1) block=(256,1,1) lds=163840
.amdgcn_target "amdgcn-amd-amdhsa--gfx950"
.macro M d, a, b, c
v_mfma_f32_16x16x32_bf16 \\d, \\a, \\b, \\c
.endm
.macro T d, a, o
ds_read_b64_tr_b16 \\d, \\a offset:\\o
.endm
.macro R d, a, o
ds_read_b128 \\d, \\a offset:\\o
.endm
.macro WL n
s_waitcnt lgkmcnt(\\n)
.endm
.macro CV d, a, b
v_cvt_pk_bf16_f32 \\d, \\a, \\b
.endm
.text
"""


class Em:
    def __init__(self):
        self.lines = []
        self.vm = []
        self.lg = []
        self.n = 0

    def e(self, s):
        self.lines.append(s)
        self.n += 1

    def raw(self, s):
        self.lines.append(s)

    def vmem(self, s, tag):
        self.e(s)
        self.vm.append(tag)

    def ds(self, s, tag):
        self.e(s)
        self.lg.append(tag)

    def wait_vm(self, tag):
        idx = max([i for i, t in enumerate(self.vm) if t == tag], default=-1)
        if idx < 0:
            return
        n = min(len(self.vm) - 1 - idx, 63)
        self.e(f"s_waitcnt vmcnt({n})")
        self.vm = self.vm[len(self.vm) - n:] if n > 0 else []

    def wait_lg(self, tag):
        idx = max([i for i, t in enumerate(self.lg) if t == tag], default=-1)
        if idx < 0:
            return
        n = min(len(self.lg) - 1 - idx, 15)
        self.e(f"WL {n}")
        self.lg = self.lg[len(self.lg) - n:] if n > 0 else []

    def nop(self, states):
        while states > 0:
            k = min(states, 16)
            self.e(f"s_nop {k-1}")
            self.n += k - 1
            states -= k


def vr(b, n=1):
    return f"v{b}" if n == 1 else f"v[{b}:{b+n-1}]"


def ar(b, n=1):
    return f"a{b}" if n == 1 else f"a[{b}:{b+n-1}]"


S_X, S_K, S_V, S_W, S_O = 8, 12, 16, 20, 24
S_WAVE = 28
S_C = 29
S_XQ = 32
S_OQ = 36
S_T = 40
S_T2 = 41
V_LANE = 1
V_ADDR = 2
V_D = 10
V_XO = 14
V_ST = 15
V_SACC = 16
V_M = 40
V_L = 43
V_MC = 46
V_T = 50
V_BIG = 64
A_FR = 192


V_Q8 = 192
V_S8 = 208
V_P8 = 212
V_ONE = 220
V_SC = 224
V_M8, V_MC8 = 225, 226
V_SCW = 227
V_T2 = 228
V_QX = 244
V_AD = 248
V_A16 = 16
V_SACC2 = 32
V_EP = 228
A_O8 = 128
A_L8 = 144
SCR = 9 * 16384
S_WL, S_KL = 54, 55
S_XW = 56
S_OWN = 66


def k1(em):
    e = em.e
    global V_M, V_L, V_MC
    V_M, V_L, V_MC = 2, 4, 6
    V_WD, V_KD = 8, 9
    em.raw(".globl standalone__mha_block_cached__near_ridge_kernel\n.p2align 8\n.type standalone__mha_block_cached__near_ridge_kernel,@function\nstandalone__mha_block_cached__near_ridge_kernel:")
    e("s_cmp_ge_u32 s2, 256")
    e("s_cbranch_scc1 L_k1_exit")
    if PROF:
        e("s_memtime s[62:63]")
        e("s_memrealtime s[64:65]")
    e("s_load_dwordx8 s[44:51], s[0:1], 0")
    e("s_load_dwordx2 s[52:53], s[0:1], 56")
    if PREF:
        e("s_getpc_b64 s[76:77]")
        e("s_lshr_b32 s4, s2, 3")
        e("s_cmp_ge_u32 s4, 18")
        e("s_cbranch_scc1 L_nopref")
        e("s_lshl_b32 s4, s4, 12")
        e("v_lshlrev_b32 v2, 4, v0")
        e("v_add_u32 v2, s4, v2")
        e("global_load_dwordx4 v[4:7], v2, s[76:77]")
        em.raw("L_nopref:")
    e("s_and_b32 s3, s2, 7")
    e("s_lshr_b32 s4, s2, 3")
    MAPH = int(os.environ.get("MAPH", "4"))
    lg = {4: 2, 8: 3, 16: 4}[MAPH]
    e(f"s_and_b32 s5, s3, {16 // MAPH - 1}")
    e(f"s_lshl_b32 s5, s5, {lg}")
    e(f"s_and_b32 s6, s4, {MAPH - 1}")
    e("s_add_u32 s5, s5, s6")
    e(f"s_lshr_b32 s6, s3, {4 - lg}")
    e(f"s_lshl_b32 s6, s6, {5 - lg}")
    e(f"s_lshr_b32 s7, s4, {lg}")
    e("s_add_u32 s6, s6, s7")
    e(f"v_and_b32 v{V_LANE}, 63, v0")
    e("v_lshrrev_b32 v2, 6, v0")
    e("s_nop 0")
    e(f"v_readfirstlane_b32 s{S_WAVE}, v2")
    e(f"s_mov_b32 s{S_C}, {hex(struct.unpack('<I', struct.pack('<f', math.log2(math.e)/16.0))[0])}")
    e("s_waitcnt lgkmcnt(0)")
    e("s_mul_i32 s7, s6, 129024")
    e(f"s_add_u32 s{S_X}, s44, s7")
    e(f"s_addc_u32 s{S_X+1}, s45, 0")
    e(f"s_mov_b32 s{S_X+2}, 129024")
    e(f"s_mov_b32 s{S_X+3}, 0x20000")
    e("s_lshl_b32 s7, s6, 4")
    e("s_add_u32 s7, s7, s5")
    e("s_lshl_b32 s7, s7, 18")
    e(f"s_add_u32 s{S_K}, s46, s7")
    e(f"s_addc_u32 s{S_K+1}, s47, 0")
    e(f"s_mov_b32 s{S_K+2}, 262144")
    e(f"s_mov_b32 s{S_K+3}, 0x20000")
    e(f"s_add_u32 s{S_V}, s48, s7")
    e(f"s_addc_u32 s{S_V+1}, s49, 0")
    e(f"s_mov_b32 s{S_V+2}, 262144")
    e(f"s_mov_b32 s{S_V+3}, 0x20000")
    e("s_lshl_b32 s7, s5, 9")
    e(f"s_add_u32 s{S_W}, s50, s7")
    e(f"s_addc_u32 s{S_W+1}, s51, 0")
    e(f"s_mov_b32 s{S_W+2}, {447*8192+512}")
    e(f"s_mov_b32 s{S_W+3}, 0x20000")
    e(f"s_mov_b32 s{S_O}, s52")
    e(f"s_mov_b32 s{S_O+1}, s53")
    e(f"s_mov_b32 s{S_O+2}, {144*128*1024}")
    e(f"s_mov_b32 s{S_O+3}, 0x20000")
    e(f"s_lshl_b32 s7, s{S_WAVE}, 1")
    for qt in range(3):
        if qt < 2:
            e(f"s_add_u32 s42, s7, {qt}")
        else:
            e("s_mov_b32 s42, 8")
        e(f"s_mul_i32 s{S_XQ+qt}, s42, 14336")
        e("s_mul_i32 s43, s6, 9")
        e("s_add_u32 s43, s43, s42")
        e("s_lshl_b32 s43, s43, 7")
        e("s_lshl_b32 s42, s5, 3")
        e("s_add_u32 s43, s43, s42")
        e(f"s_lshl_b32 s{S_OQ+qt}, s43, 10")
    e("s_mul_i32 s78, s4, 3")
    e("s_mul_i32 s42, s78, 4682")
    e("s_lshr_b32 s42, s42, 16")
    e("s_mul_i32 s42, s42, 14")
    e("s_sub_u32 s78, s78, s42")
    if not (ROT & 1):
        e("s_mov_b32 s78, 0")
    for a in range(4):
        e(f"s_xor_b32 s42, s{S_WAVE}, {a}")
        e(f"s_lshl_b32 s{S_XW+a}, s42, 11")
    for k in range(4):
        e(f"s_cmp_eq_u32 s{S_WAVE}, {k}")
        e(f"s_cselect_b64 s[{S_OWN+2*k}:{S_OWN+2*k+1}], -1, 0")
    t0, t1, t2, t3 = V_T, V_T + 1, V_T + 2, V_T + 3
    e(f"v_and_b32 v{t0}, 15, v{V_LANE}")
    e(f"v_mul_u32_u24 v{t0}, 896, v{t0}")
    e(f"v_lshrrev_b32 v{t1}, 4, v{V_LANE}")
    e(f"v_lshl_add_u32 v{V_XO}, v{t1}, 4, v{t0}")
    e(f"v_lshlrev_b32 v{V_ST}, 4, v{V_LANE}")
    e(f"s_lshl_b32 s42, s{S_WAVE}, 1")
    e(f"s_lshl_b32 s{S_KL}, s{S_WAVE}, 10")
    e(f"v_lshrrev_b32 v{t0}, 5, v{V_LANE}")
    e(f"v_add_u32 v{t0}, s42, v{t0}")
    e(f"v_and_b32 v{t1}, 31, v{V_LANE}")
    e(f"v_lshlrev_b32 v{t2}, 1, v{t0}")
    e(f"v_xor_b32 v{t2}, v{t1}, v{t2}")
    e(f"v_lshlrev_b32 v{t2}, 4, v{t2}")
    e(f"v_lshl_add_u32 v{V_KD}, v{t0}, 9, v{t2}")
    e(f"s_and_b32 s42, s{S_WAVE}, 1")
    e("s_lshl_b32 s42, s42, 1")
    e(f"s_lshr_b32 s43, s{S_WAVE}, 1")
    e("s_lshl_b32 s43, s43, 3")
    e("s_add_u32 s42, s42, s43")
    e(f"s_lshl_b32 s{S_WL}, s42, 9")
    e(f"v_lshrrev_b32 v{t0}, 5, v{V_LANE}")
    e(f"v_add_u32 v{t0}, s42, v{t0}")
    e(f"v_and_b32 v{t2}, 3, v{t0}")
    e(f"v_bfe_u32 v{t3}, v{t0}, 3, 1")
    e(f"v_lshl_add_u32 v{t2}, v{t3}, 2, v{t2}")
    e(f"v_lshlrev_b32 v{t2}, 1, v{t2}")
    e(f"v_xor_b32 v{t2}, v{t1}, v{t2}")
    e(f"v_lshlrev_b32 v{t2}, 4, v{t2}")
    e(f"v_lshl_add_u32 v{V_WD}, v{t0}, 13, v{t2}")
    e(f"v_lshlrev_b32 v{V_SC}, 4, v{V_LANE}")
    e(f"v_add_u32 v{V_SC}, {SCR}, v{V_SC}")
    for a in range(4):
        e(f"v_add_u32 v{V_QX+a}, s{S_XW+a}, v{V_SC}")
    for j in range(4):
        e(f"v_mov_b32 v{V_ONE+j}, 0x3f803f80")

    NT = 2
    chunks = [("W", i) for i in range(14)] + [("K", i) for i in range(16)] + [("V", i) for i in range(16)]
    nsteps = len(chunks)
    slot_of = {}
    init = [("W", i) for i in range(NW0)] + [("K", i) for i in range(NK0)]
    for s_, c in enumerate(init):
        slot_of[c] = s_
    later = [c for c in chunks if c not in slot_of]
    dq = []

    def kc(c, dst):
        e(f"s_add_u32 s{dst}, s78, {c}")
        e(f"s_cmp_ge_u32 s{dst}, 14")
        e(f"s_cselect_b32 s79, 14, 0")
        e(f"s_sub_u32 s{dst}, s{dst}, s79")

    def emit_dma(item):
        sl, lds, goff, vo, srd, nt, tag = item
        if srd == S_W:
            ci, jr = goff
            if jr == 0:
                kc(ci, 80)
                e("s_lshl_b32 s80, s80, 18")
            e(f"s_add_u32 m0, s{sl}, {lds}")
            e(f"s_add_u32 s{S_T}, s80, {jr*8192}")
        else:
            e(f"s_add_u32 m0, s{sl}, {lds}")
            e(f"s_mov_b32 s{S_T}, {goff}")
        em.vmem(f"buffer_load_dwordx4 v{vo}, s[{srd}:{srd+3}], s{S_T} offen{nt} lds", tag)

    def issue(chunk, defer=False):
        kind, ci = chunk
        slot = slot_of[chunk]
        tag = f"{kind}{ci}"
        its = []
        if kind == "W":
            for jr in (0, 4, 16, 20):
                its.append((S_WL, slot * 16384 + jr * 512, (ci, jr), V_WD, S_W, "", tag))
        else:
            srd = S_K if kind == "K" else S_V
            for jj in range(4):
                its.append((S_KL, slot * 16384 + jj * 4096, ci * 16384 + jj * 4096, V_KD, srd, KVNT, tag))
        for it in its:
            if defer:
                dq.append(it)
            else:
                emit_dma(it)

    def xload(c):
        if c < 14:
            kc(c, 81)
            e("s_lshl_b32 s81, s81, 6")
            for qt in range(3):
                e(f"s_add_u32 s82, s81, s{S_XQ+qt}")
                em.vmem(f"buffer_load_dwordx4 {ar((qt*14+c)*4,4)}, v{V_XO}, s[{S_X}:{S_X+3}], s82 offen", f"x{c}")

    for c in range(max(NW0, PX)):
        if c < NW0:
            issue(("W", c))
        if c < PX:
            xload(c)
    KD = int(os.environ.get("KD", "0"))
    if KD == 0:
        issue(("K", 0))
    st = {"base": 0}

    def set_addr(kind):
        e(f"v_lshrrev_b32 v{t0}, 4, v{V_LANE}")
        e(f"v_bfe_u32 v{t1}, v{V_LANE}, 2, 2")
        e(f"v_and_b32 v{t2}, 3, v{V_LANE}")
        if kind == "W":
            e(f"v_lshl_add_u32 v{t3}, v{t0}, 3, v{t1}")
            e(f"v_lshlrev_b32 v{t3}, 9, v{t3}")
            e(f"v_and_b32 v{t0}, 1, v{t0}")
            e(f"v_lshl_add_u32 v{t0}, v{t0}, 2, v{t1}")
            e(f"v_lshl_add_u32 v{t3}, v{t0}, 5, v{t3}")
            e(f"v_lshl_add_u32 v{t3}, v{t2}, 3, v{t3}")
            nb, sh = 16, 5
        elif kind == "V":
            e(f"v_lshl_add_u32 v{t0}, v{t0}, 2, v{t1}")
            e(f"v_lshlrev_b32 v{t3}, 9, v{t0}")
            e(f"v_and_b32 v{t0}, 7, v{t0}")
            e(f"v_lshl_add_u32 v{t3}, v{t0}, 5, v{t3}")
            e(f"v_lshl_add_u32 v{t3}, v{t2}, 3, v{t3}")
            nb, sh = 16, 5
        else:
            e(f"v_and_b32 v{t1}, 15, v{V_LANE}")
            e(f"v_lshlrev_b32 v{t3}, 9, v{t1}")
            e(f"v_and_b32 v{t1}, 7, v{t1}")
            e(f"v_lshlrev_b32 v{t1}, 1, v{t1}")
            e(f"v_xor_b32 v{t1}, v{t0}, v{t1}")
            e(f"v_lshl_add_u32 v{t3}, v{t1}, 4, v{t3}")
            nb, sh = 8, 6
        e(f"s_lshl_b32 s42, s{S_WAVE}, 7")
        e(f"v_xor_b32 v{t3}, s42, v{t3}")
        for b in range(nb):
            e(f"v_xor_b32 v{V_A16+b}, {b << sh}, v{t3}")
        st["base"] = 0
        st["nb"] = nb

    def set_base(grp):
        if grp != st["base"]:
            d = (grp - st["base"]) * 65536
            for b in range(st["nb"]):
                e(f"v_add_u32 v{V_A16+b}, {d & 0xffffffff}, v{V_A16+b}")
            st["base"] = grp

    def frag_reg(G):
        return A_FR + (G % 16) * 4

    def reads(G):
        i, f = divmod(G, 16)
        kind, ci = chunks[i]
        slot = slot_of[chunks[i]]
        sb = (slot & 3) * 16384
        fr = frag_reg(G)
        tag = f"F{G}"
        if kind == "K":
            kt, ks = f >> 3, f & 7
            em.ds(f"R {ar(fr,4)}, v{V_A16+ks}, {sb + kt*8192}", tag)
        else:
            second = 2048 if kind == "W" else 8192
            em.ds(f"T {ar(fr,2)}, v{V_A16+f}, {sb}", tag)
            em.ds(f"T {ar(fr+2,2)}, v{V_A16+f}, {sb + second}", tag)

    def big(qt, idx):
        return V_BIG + (qt * 16 + idx) * 4

    def sacc(kt, qt):
        return V_SACC2 + (kt * 2 + qt) * 4

    def QF(qt, s):
        return (qt * 14 + s) * 4

    def s8reg(ci):
        return V_Q8 + (ci >> 1) * 2

    q = []
    lab = [0]

    def push(instrs, after=None):
        for k, s in enumerate(instrs):
            q.append((after if k == 0 else None, s))

    def drain(cnt):
        k = 0
        while q and k < cnt:
            rdy, s = q[0]
            if rdy is not None and em.n < rdy:
                return
            q.pop(0)
            if isinstance(s, tuple):
                if s[0] == "nop":
                    em.nop(s[1])
                elif s[0] == "st":
                    em.vmem(s[1], "st")
                elif s[0] == "ds":
                    em.ds(s[1], s[2])
                elif s[0] == "blk":
                    for x in s[1]:
                        if x.endswith(":"):
                            em.raw(x)
                        else:
                            e(x)
            else:
                e(s)
            k += 1

    def drain_all():
        while q:
            rdy, s = q[0]
            if rdy is not None and em.n < rdy:
                em.nop(rdy - em.n)
            drain(1)

    def s_items(ci, kt):
        out = []
        for qt in range(NT):
            a, m, dst = sacc(kt, qt), V_M + qt, big(qt, ci) + 2 * kt
            if ci == 0 and kt == 0:
                out.append(f"v_max_f32 v{m}, v{a}, v{a+1}")
            else:
                out.append(f"v_max3_f32 v{m}, v{a}, v{a+1}, v{m}")
            out.append(f"CV v{dst}, v{a}, v{a+1}")
            out.append(f"v_max3_f32 v{m}, v{a+2}, v{a+3}, v{m}")
            out.append(f"CV v{dst+1}, v{a+2}, v{a+3}")
        k = 2 * (ci & 1) + kt
        lab[0] += 1
        L = f"Ls8_{lab[0]}"
        a, m, dst = V_S8, V_M8, s8reg(ci)
        blk = [f"s_mov_b64 vcc, s[{S_OWN+2*k}:{S_OWN+2*k+1}]", f"s_cbranch_vccz {L}",
               f"v_max3_f32 v{m}, v{a}, v{a+1}, v{m}", f"CV v{dst}, v{a}, v{a+1}",
               f"v_max3_f32 v{m}, v{a+2}, v{a+3}, v{m}", f"CV v{dst+1}, v{a+2}, v{a+3}", f"{L}:"]
        out.append(("blk", blk))
        return out

    def qconv_items(s):
        out = []
        tl = [(V_T + qt * 4, big(qt, 2 * s), big(qt, 2 * s + 1), qt) for qt in range(NT)]
        if s < 2:
            tl.append((V_T + 8, V_Q8 + (2 * s) * 4, V_Q8 + (2 * s + 1) * 4, 8))
        for t, p0, p1, qt in tl:
            out += [f"CV v{t}, v{p0}, v{p0+1}", f"CV v{t+1}, v{p0+2}, v{p0+3}",
                    f"CV v{t+2}, v{p1}, v{p1+1}", f"CV v{t+3}, v{p1+2}, v{p1+3}"]
        out.append(("nop", 2))
        for t, *_ in tl:
            out += [f"v_permlane32_swap_b32 v{t}, v{t+2}", f"v_permlane32_swap_b32 v{t+1}, v{t+3}"]
        out.append(("nop", 2))
        for t, *_ in tl:
            out += [f"v_permlane16_swap_b32 v{t}, v{t+2}", f"v_permlane16_swap_b32 v{t+1}, v{t+3}"]
        out.append(("nop", 1))
        for t, p0, p1, qt in tl:
            if qt == 8:
                out.append(("ds", f"ds_write_b128 v{V_QX}, v[{t}:{t+3}] offset:{s*1024}", "q8w"))
            else:
                for j in range(4):
                    out.append(f"v_accvgpr_write_b32 a{QF(qt, s)+j}, v{t+j}")
        return out

    def xreduce(op, regs):
        out = []
        for sw in ("32", "16"):
            for k, r in enumerate(regs):
                out.append(f"v_mov_b32 v{V_T+k}, v{r}")
            out.append(("nop", 2))
            for k, r in enumerate(regs):
                out.append(f"v_permlane{sw}_swap_b32 v{V_T+k}, v{r}")
            out.append(("nop", 1))
            for k, r in enumerate(regs):
                out.append(f"v_{op}_f32 v{r}, v{r}, v{V_T+k}")
        return out

    def p_group(regs):
        n = len(regs)
        T = [(V_T2 + 2 * k, V_T2 + 2 * k + 1) for k in range(n)]
        o = []
        for (R, mc, l), (ta, tb) in zip(regs, T):
            o += [f"v_lshlrev_b32 v{ta}, 16, v{R}", f"v_and_b32 v{tb}, 0xffff0000, v{R}"]
        for (R, mc, l), (ta, tb) in zip(regs, T):
            o += [f"v_fma_f32 v{ta}, v{ta}, s{S_C}, -v{mc}", f"v_fma_f32 v{tb}, v{tb}, s{S_C}, -v{mc}"]
        for (R, mc, l), (ta, tb) in zip(regs, T):
            o += [f"v_exp_f32 v{ta}, v{ta}", f"v_exp_f32 v{tb}, v{tb}"]
        for which in (0, 1):
            for (R, mc, l), tt in zip(regs, T):
                if l is not None:
                    o.append(f"v_add_f32 v{l}, v{l}, v{tt[which]}")
        for (R, mc, l), (ta, tb) in zip(regs, T):
            o.append(f"CV v{R}, v{ta}, v{tb}")
        return o

    def p_items(ci):
        regs = [(big(qt, ci) + j, V_MC + qt, V_L + qt) for j in range(4) for qt in range(NT)]
        return p_group(regs)

    epi_k = [0]

    def epi_block(areg, lreg, soff, sp):
        out = []
        tb = V_EP + (epi_k[0] % 2) * 12
        epi_k[0] += 1
        for j in range(8):
            out.append(f"v_accvgpr_read_b32 v{tb+j}, a{areg+j}")
        for j in range(8):
            out.append(f"v_mul_f32 v{tb+j}, v{tb+j}, v{lreg}")
        for j in range(4):
            out.append(f"CV v{tb+8+j}, v{tb+2*j}, v{tb+2*j+1}")
        out.append(f"s_add_u32 s{S_T2}, s{soff}, s{S_XW + (sp>>1)}")
        out.append(("st", f"buffer_store_dwordx4 v[{tb+8}:{tb+11}], v{V_ST}, s[{S_O}:{S_O+3}], s{S_T2} offen offset:{(sp&1)*1024} sc1"))
        return out

    def epi_items(s):
        out = []
        for qt in range(NT):
            out += epi_block((qt * 16 + 2 * s) * 4, V_L + qt, S_OQ + qt, s)
        return out

    def transition_q8():
        drain_all()
        e(f"v_mov_b32 v{V_M8}, 0xff800000")
        em.wait_lg("q8w")
        e("s_barrier")
        for s in range(8):
            em.ds(f"R {ar(QF(2, s),4)}, v{V_QX + (s>>1)}, {(s&1)*1024}", "q8r")
        em.nop(2)

    def transition_sm():
        drain_all()
        push(xreduce("max", [V_M, V_M + 1, V_M8]))
        drain_all()
        e(f"v_and_b32 v{t0}, 15, v{V_LANE}")
        e(f"v_lshlrev_b32 v{t0}, 2, v{t0}")
        e(f"v_add_u32 v{t0}, {SCR}, v{t0}")
        e(f"s_lshl_b32 s42, s{S_WAVE}, 6")
        e(f"v_add_u32 v{t1}, s42, v{t0}")
        em.ds(f"ds_write_b32 v{t1}, v{V_M8}", "m8w")
        for qt in range(NT):
            e(f"v_mul_f32 v{V_MC+qt}, s{S_C}, v{V_M+qt}")
            e(f"v_mov_b32 v{V_L+qt}, 0")
        e(f"s_lshr_b32 s42, s{S_WAVE}, 1")
        e("s_lshl_b32 s42, s42, 10")
        e(f"s_and_b32 s43, s{S_WAVE}, 1")
        e("s_lshl_b32 s43, s43, 3")
        e("s_add_u32 s42, s42, s43")
        e(f"v_add_u32 v{V_SCW}, s42, v{V_SC}")
        em.wait_lg("m8w")
        e("s_barrier")
        em.ds(f"ds_read2_b32 v[{t2}:{t3}], v{t0} offset0:0 offset1:16", "m8r")
        em.ds(f"ds_read2_b32 v[{t3+1}:{t3+2}], v{t0} offset0:32 offset1:48", "m8r")
        for s in p_items(0):
            e(s)
        em.wait_lg("m8r")
        e("s_barrier")
        e(f"v_max3_f32 v{V_M8}, v{t2}, v{t3}, v{t3+1}")
        e(f"v_max_f32 v{V_M8}, v{V_M8}, v{t3+2}")
        e(f"v_mul_f32 v{V_MC8}, s{S_C}, v{V_M8}")
        for h in range(0, 8, 4):
            regs = [(V_Q8 + 2 * j + k, V_MC8, None) for j in range(h, h + 4) for k in range(2)]
            for s in p_group(regs):
                e(s)
        for j in range(8):
            em.ds(f"ds_write_b64 v{V_SCW}, v[{V_Q8+2*j}:{V_Q8+2*j+1}] offset:{j*2048}", "p8w")
        em.wait_lg("p8w")
        e("s_barrier")
        em.ds(f"R {vr(V_P8,4)}, v{V_SC}, 0", "P8_0")
        em.nop(2)

    def mfmas(G):
        i, f = divmod(G, 16)
        kind, ci = chunks[i]
        fr = frag_reg(G)
        if kind == "V" and ci == 0 and f == 0:
            transition_sm()
        if kind == "W" and f == 0:
            em.wait_vm(f"x{ci}")
        if kind == "V" and f == 0 and ci > 0:
            drain_all()
            em.nop(2)
        em.wait_lg(f"F{G}")
        per = {"W": 3, "K": 2, "V": 3}[kind]
        for qt in range(NT):
            if kind == "W":
                d = vr(big(qt, f), 4)
                c = "0" if ci == 0 else d
                e(f"M {d}, {ar(fr,4)}, {ar((qt*14+ci)*4,4)}, {c}")
            elif kind == "K":
                kt, ks = f >> 3, f & 7
                if ks == 0:
                    assert not any(isinstance(x[1], str) and f"v{sacc(kt,qt)}," in x[1] for x in q), "pending S items"
                d = vr(sacc(kt, qt), 4)
                c = "0" if ks == 0 else d
                e(f"M {d}, {ar(fr,4)}, {ar(QF(qt,ks),4)}, {c}")
            else:
                d = ar((qt * 16 + f) * 4, 4)
                c = "0" if ci == 0 else d
                e(f"M {d}, {ar(fr,4)}, {vr(big(qt,ci),4)}, {c}")
            drain(per)
        if kind == "W" and f < 4:
            d = vr(V_Q8 + f * 4, 4)
            c = "0" if ci == 0 else d
            e(f"M {d}, {ar(fr,4)}, {ar((2*14+ci)*4,4)}, {c}")
            drain(per)
        elif kind == "K":
            kt, ks = f >> 3, f & 7
            if ks == 0:
                while any(isinstance(x[1], tuple) and x[1][0] == "blk" for x in q):
                    rdy, _ = q[0]
                    if rdy is not None and em.n < rdy:
                        em.nop(rdy - em.n)
                    drain(1)
            d = vr(V_S8, 4)
            c = "0" if ks == 0 else d
            if os.environ.get("ALLM", "1") == "1":
                e(f"M {d}, {ar(fr,4)}, {ar(QF(2,ks),4)}, {c}")
                drain(per)
            elif not FORK:
                k = 2 * (ci & 1) + kt
                lab[0] += 1
                L = f"Lk8_{lab[0]}"
                e(f"s_mov_b64 vcc, s[{S_OWN+2*k}:{S_OWN+2*k+1}]")
                e(f"s_cbranch_vccz {L}")
                e(f"M {d}, {ar(fr,4)}, {ar(QF(2,ks),4)}, {c}")
                em.raw(f"{L}:")
            elif st.get("extra"):
                e(f"M {d}, {ar(fr,4)}, {ar(QF(2,ks),4)}, {c}")
                em.n -= 1
        elif kind == "V":
            p8 = V_P8 + (ci & 1) * 4
            if f == 0 and ci + 1 < 16:
                em.ds(f"R {vr(V_P8 + ((ci+1)&1)*4, 4)}, v{V_SC}, {(ci+1)*1024}", f"P8_{ci+1}")
            if f < 4:
                em.wait_lg(f"P8_{ci}")
                d = ar(A_O8 + f * 4, 4)
                c = "0" if ci == 0 else d
                e(f"M {d}, {ar(fr,4)}, {vr(p8,4)}, {c}")
                drain(per)
                if f == 3:
                    d = ar(A_L8, 4)
                    c = "0" if ci == 0 else d
                    e(f"M {d}, {vr(V_ONE,4)}, {vr(p8,4)}, {c}")
                    drain(per)
        if kind == "W" and ci == 13 and (f & 1):
            push(qconv_items(f >> 1), after=em.n + 9)
        if kind == "K" and (f & 7) == 7:
            push(s_items(ci, f >> 3), after=em.n + 13)
        if kind == "V":
            if f == 0 and ci + 1 < 16:
                push(p_items(ci + 1))
            if ci == 15:
                if f == 0:
                    push(xreduce("add", [V_L, V_L + 1]))
                    push([f"v_rcp_f32 v{V_L+qt}, v{V_L+qt}" for qt in range(NT)])
                    push([("nop", 1)])
                if f == 5:
                    push([f"v_accvgpr_read_b32 v{V_M8}, a{A_L8}", f"v_rcp_f32 v{V_M8}, v{V_M8}", ("nop", 1)], after=em.n + 9)
                    for k in range(2):
                        push(epi_block(A_O8 + k * 8, V_M8, S_OQ + 2, k))
                if f & 1:
                    push(epi_items(f >> 1), after=em.n + 9)

    total = nsteps * 16
    st["li"] = 0

    def body(G):
        if G < total:
            i, f = divmod(G, 16)
            if f == 0:
                kind, ci = chunks[i]
                em.wait_vm(f"{kind}{ci}")
                e("s_barrier")
                if PROF:
                    e("s_memtime s[60:61]")
                    e("s_waitcnt lgkmcnt(0)")
                    em.lg = []
                    e(f"v_writelane_b32 v49, s60, {i}")
                while dq:
                    emit_dma(dq.pop(0))
                if i >= 2 and st["li"] < len(later):
                    c = later[st["li"]]
                    st["li"] += 1
                    slot_of[c] = slot_of[chunks[i - 2]]
                    issue(c, True)
                xload(i + PX)
                if KD == 0:
                    if i + 1 < NK0:
                        issue(("K", i + 1), True)
                elif KD - 1 <= i < KD - 1 + NK0:
                    issue(("K", i - KD + 1), True)
                if i == 0 or chunks[i - 1][0] != kind:
                    drain_all()
                    set_addr(kind)
                set_base(slot_of[chunks[i]] >> 2)
            reads(G)
        m = G - DREAD
        if m >= 0:
            mfmas(m)
        FS = int(os.environ.get("FS", "35"))
        if PROF and FS * 16 <= G < FS * 16 + 24:
            e("s_memtime s[60:61]")
            e("s_waitcnt lgkmcnt(0)")
            em.lg = []
            e(f"v_writelane_b32 v48, s60, {2*(G - FS*16)}")
        if dq:
            emit_dma(dq.pop(0))
        if PROF and FS * 16 <= G < FS * 16 + 24:
            e("s_memtime s[60:61]")
            e("s_waitcnt lgkmcnt(0)")
            em.lg = []
            e(f"v_writelane_b32 v48, s60, {2*(G - FS*16)+1}")

    import copy
    G = 0
    while G < total + DREAD:
        m = G - DREAD
        if not FORK and m == 14 * 16:
            transition_q8()
            em.wait_lg("q8r")
        if FORK and m >= 0 and chunks[m // 16][0] == "K" and (m & 7) == 0:
            ci, kt = chunks[m // 16][1], (m >> 3) & 1
            k = 2 * (ci & 1) + kt
            if ci == 0 and kt == 0:
                transition_q8()
                em.wait_lg("q8r")
            while any(isinstance(x[1], tuple) and x[1][0] == "blk" for x in q):
                rdy, _ = q[0]
                if rdy is not None and em.n < rdy:
                    em.nop(rdy - em.n)
                drain(1)
            lab[0] += 1
            LP, LJ = f"Lkp_{lab[0]}", f"Lkj_{lab[0]}"
            e(f"s_mov_b64 vcc, s[{S_OWN+2*k}:{S_OWN+2*k+1}]")
            e(f"s_cbranch_vccz {LP}")
            snap = (list(em.vm), list(em.lg), em.n, list(q), list(dq), dict(st), dict(slot_of), lab[0], list(epi_k))
            st["extra"] = True
            for g2 in range(G, G + 8):
                body(g2)
            e(f"s_branch {LJ}")
            em.raw(f"{LP}:")
            nA = em.n
            em.vm, em.lg, em.n = list(snap[0]), list(snap[1]), snap[2]
            q[:] = snap[3]
            dq[:] = snap[4]
            st.clear(); st.update(snap[5])
            slot_of.clear(); slot_of.update(snap[6])
            lab[0] = snap[7] + 1000
            st["extra"] = False
            for g2 in range(G, G + 8):
                body(g2)
            em.raw(f"{LJ}:")
            G += 8
        else:
            body(G)
            G += 1
    drain_all()
    if PROF:
        e("s_memtime s[60:61]")
        e("s_waitcnt lgkmcnt(0)")
        e("v_writelane_b32 v49, s60, 46")
        e("s_waitcnt vmcnt(0)")
        e("s_memtime s[60:61]")
        e("s_waitcnt lgkmcnt(0)")
        e("v_writelane_b32 v49, s60, 47")
        e("v_writelane_b32 v49, s62, 48")
        e("s_memrealtime s[60:61]")
        e("s_waitcnt lgkmcnt(0)")
        e("v_writelane_b32 v49, s60, 49")
        e("v_writelane_b32 v49, s64, 50")
        e("s_lshl_b32 s60, s2, 2")
        e(f"s_add_u32 s60, s60, s{S_WAVE}")
        e("s_lshl_b32 s60, s60, 8")
        e(f"s_add_u32 s60, s60, {32<<20}")
        e(f"v_lshlrev_b32 v50, 2, v{V_LANE}")
        e(f"s_mov_b32 s{S_O+2}, {64<<20}")
        e(f"buffer_store_dword v49, v50, s[{S_O}:{S_O+3}], s60 offen")
        e(f"s_add_u32 s60, s60, {2<<20}")
        e(f"buffer_store_dword v48, v50, s[{S_O}:{S_O+3}], s60 offen")
    tail(em)
    em.raw("L_k1_exit:")
    e("s_endpgm")


def tail(em):
    e = em.e
    NS = 9
    S_WO, S_OS, S_OUT, S_DB = 8, 12, 16, 20
    S_WG, S_WLD, S_TT, S_ST = 30, 31, 32, 33
    V_L, V_DMA, V_B, V_O, V_A = 1, 2, 3, 4, 6
    V_ACC = 12
    V_FR = 32
    V_BF = 64
    e("s_load_dwordx4 s[44:47], s[0:1], 32")
    e("s_load_dwordx2 s[48:49], s[0:1], 48")
    e("s_mov_b32 s87, s6")
    e("s_mov_b32 s88, s5")
    e("s_waitcnt lgkmcnt(0)")
    em.lg = []
    e("s_barrier")
    e(f"s_mov_b32 s{S_DB}, s48")
    e(f"s_mov_b32 s{S_DB+1}, s49")
    e(f"s_mov_b32 s{S_DB+2}, 256")
    e(f"s_mov_b32 s{S_DB+3}, 0x20000")

    def signal(lbl):
        e("s_barrier")
        e(f"s_cmp_lg_u32 s{S_WAVE}, 0")
        e(f"s_cbranch_scc1 {lbl}")
        e("s_lshl_b32 s42, s87, 2")
        e("v_mov_b32 v10, s42")
        e("s_lshl_b32 s42, 1, s88")
        e("v_mov_b32 v11, s42")
        e("s_mov_b64 exec, 1")
        e(f"buffer_atomic_or v11, v10, s[{S_DB}:{S_DB+3}], 0 offen sc1")
        e("s_mov_b64 exec, -1")
        em.raw(f"{lbl}:")

    e("s_and_b32 s3, s2, 7")
    e("s_lshr_b32 s4, s2, 3")
    e("s_lshl_b32 s3, s3, 5")
    e("s_add_u32 s3, s3, s4")
    e("s_cmp_lt_u32 s3, 252")
    e("s_cbranch_scc1 L_havetile")
    e("s_waitcnt vmcnt(0)")
    signal("L_nosig0")
    e("s_branch L_k1_exit")
    em.raw("L_havetile:")
    e("s_mul_i32 s4, s3, 9363")
    e("s_lshr_b32 s4, s4, 16")
    e("s_mul_i32 s5, s4, 7")
    e("s_sub_u32 s5, s3, s5")
    e("s_lshl_b32 s6, s5, 7")
    e(f"s_add_u32 s{S_WO}, s44, s6")
    e(f"s_addc_u32 s{S_WO+1}, s45, 0")
    e(f"s_sub_u32 s{S_WO+2}, {4096*896}, s6")
    e(f"s_mov_b32 s{S_WO+3}, 0x20000")
    e("s_lshl_b32 s7, s4, 2")
    e(f"s_add_u32 s7, s7, s{S_WAVE}")
    e("s_lshl_b32 s25, s7, 17")
    e(f"s_add_u32 s{S_OS}, s52, s25")
    e(f"s_addc_u32 s{S_OS+1}, s53, 0")
    e(f"s_mov_b32 s{S_OS+2}, 131072")
    e(f"s_mov_b32 s{S_OS+3}, 0x20000")
    e(f"s_mov_b32 s{S_OUT}, s46")
    e(f"s_mov_b32 s{S_OUT+1}, s47")
    e(f"s_mov_b32 s{S_OUT+2}, {2304*896}")
    e(f"s_mov_b32 s{S_OUT+3}, 0x20000")
    e(f"s_mul_i32 s{S_ST}, s7, {16*896}")
    e(f"s_add_u32 s{S_ST}, s{S_ST}, s6")
    e(f"s_mul_i32 s{S_WG}, s{S_WAVE}, {32*896}")
    e(f"s_lshl_b32 s{S_WLD}, s{S_WAVE}, 12")
    e(f"v_lshrrev_b32 v10, 3, v{V_L}")
    e("v_mul_u32_u24 v10, 896, v10")
    e(f"v_bfe_u32 v11, v{V_L}, 1, 2")
    e(f"v_lshrrev_b32 v12, 4, v{V_L}")
    e("v_xor_b32 v11, v11, v12")
    e("v_lshl_add_u32 v10, v11, 5, v10")
    e(f"v_and_b32 v11, 1, v{V_L}")
    e(f"v_lshl_add_u32 v{V_DMA}, v11, 4, v10")
    e(f"v_lshlrev_b32 v{V_B}, 4, v{V_L}")
    e(f"v_and_b32 v10, 15, v{V_L}")
    e("v_mul_u32_u24 v10, 896, v10")
    e(f"v_lshl_add_u32 v{V_O}, v12, 3, v10")
    e(f"v_bfe_u32 v10, v{V_L}, 2, 2")
    e("v_lshl_add_u32 v10, v12, 2, v10")
    e("v_bfe_u32 v11, v10, 1, 2")
    e("v_lshlrev_b32 v10, 7, v10")
    e("v_lshl_add_u32 v10, v11, 5, v10")
    e(f"v_and_b32 v11, 3, v{V_L}")
    e("v_lshl_add_u32 v10, v11, 3, v10")
    for u in range(4):
        e(f"v_xor_b32 v{V_A+u}, {u<<5}, v10")
    st = {"base": 0}
    NB = 6
    if ROT & 2:
        e("s_and_b32 s78, s3, 31")
    else:
        e("s_mov_b32 s78, 0")

    def dma_ops(cc):
        slot = cc % NS
        pre = [f"s_add_u32 s80, s78, {cc}", "s_and_b32 s80, s80, 31", f"s_mul_i32 s80, s80, {128*896}", f"s_add_u32 s80, s80, s{S_WG}"]
        return [(pre if jj == 0 else []) + [f"s_add_u32 m0, s{S_WLD}, {slot*16384 + jj*1024}",
                 f"s_add_u32 s{S_TT}, s80, {jj*8*896}",
                 (f"buffer_load_dwordx4 v{V_DMA}, s[{S_WO}:{S_WO+3}], s{S_TT} offen lds", f"D{cc}")] for jj in range(4)]

    def b_ops(cc):
        rs = cc % NB
        pre = [f"s_add_u32 s81, s78, {cc}", "s_and_b32 s81, s81, 31", "s_lshl_b32 s81, s81, 12"]
        return [(pre if jj == 0 else []) +
                [(f"buffer_load_dwordx4 {vr(V_BF + rs*16 + jj*4, 4)}, v{V_B}, s[{S_OS}:{S_OS+3}], s81 offen offset:{jj*1024} sc1", f"B{cc}")] for jj in range(4)]

    def emit_op(op):
        for x in op:
            if isinstance(x, tuple):
                em.vmem(x[0], x[1])
            else:
                e(x)

    for cc in range(NS - 2):
        for op in dma_ops(cc):
            emit_op(op)
    em.wait_vm("st")
    signal("L_nosig1")
    if PROF:
        e("s_memtime s[60:61]")
        e("s_waitcnt lgkmcnt(0)")
        e("v_writelane_b32 v5, s60, 40")
    e("s_lshl_b32 s42, s4, 2")
    e("s_mul_i32 s43, s42, 7282")
    e("s_lshr_b32 s43, s43, 16")
    e("s_add_u32 s42, s42, 3")
    e("s_mul_i32 s42, s42, 7282")
    e("s_lshr_b32 s42, s42, 16")
    e("s_lshl_b32 s42, s42, 2")
    e("s_lshl_b32 s43, s43, 2")
    e("v_mov_b32 v30, s43")
    e("v_writelane_b32 v30, s42, 1")
    e("s_mov_b32 s85, 0")
    plab = [0]

    def need(p):
        plab[0] += 1
        n = plab[0]
        e(f"s_add_u32 s83, s78, {p}")
        e("s_and_b32 s83, s83, 31")
        e("s_lshr_b32 s83, s83, 1")
        e("s_mov_b32 s86, 0")
        em.raw(f"L_pc{n}:")
        e("s_lshr_b32 s84, s85, s83")
        e("s_and_b32 s84, s84, 1")
        e(f"s_cbranch_scc1 L_pd{n}")
        e("s_mov_b64 exec, 3")
        e(f"buffer_load_dword v31, v30, s[{S_DB}:{S_DB+3}], 0 offen sc1")
        e("s_waitcnt vmcnt(0)")
        e("s_mov_b64 exec, -1")
        e("v_readlane_b32 s84, v31, 0")
        e("v_readlane_b32 s85, v31, 1")
        e("s_and_b32 s85, s85, s84")
        e("s_sleep 1")
        e("s_add_u32 s86, s86, 1")
        e("s_cmp_lt_u32 s86, 0x400000")
        e(f"s_cbranch_scc1 L_pc{n}")
        em.raw(f"L_pd{n}:")

    e(f"s_cmp_lg_u32 s{S_WAVE}, 0")
    e("s_cbranch_scc1 L_nopoll")
    for p in range(NB):
        need(p)
    em.raw("L_nopoll:")
    e("s_barrier")
    if PROF:
        e("s_memtime s[60:61]")
        e("s_waitcnt lgkmcnt(0)")
        e("v_writelane_b32 v5, s60, 41")
    for cc in range(NB):
        for op in b_ops(cc):
            emit_op(op)
    D = 4
    total = 32 * 16
    pend = []

    def reads(G):
        cc, f = divmod(G, 16)
        ss, u = f >> 2, f & 3
        slot = cc % NS
        if f == 0:
            grp = slot >> 2
            if grp != st["base"]:
                d = (grp - st["base"]) * 65536
                for b in range(4):
                    e(f"v_add_u32 v{V_A+b}, {d & 0xffffffff}, v{V_A+b}")
                st["base"] = grp
        off = (slot & 3) * 16384 + ss * 4096
        fr = V_FR + (G % 8) * 4
        em.ds(f"T {vr(fr,2)}, v{V_A+u}, {off}", f"F{G}")
        em.ds(f"T {vr(fr+2,2)}, v{V_A+u}, {off+2048}", f"F{G}")

    def mfma(G):
        cc, f = divmod(G, 16)
        ss, u = f >> 2, f & 3
        fr = V_FR + (G % 8) * 4
        if f == 0:
            em.wait_vm(f"B{cc}")
        em.wait_lg(f"F{G}")
        d = vr(V_ACC + u * 4, 4)
        c = "0" if (cc == 0 and ss == 0) else d
        e(f"M {d}, {vr(fr,4)}, {vr(V_BF + (cc % NB)*16 + ss*4, 4)}, {c}")
        if f == 0 and cc >= 1 and cc - 1 + NB < 32:
            pend.extend(b_ops(cc - 1 + NB))

    for G in range(total + D):
        if G < total:
            cc, f = divmod(G, 16)
            if f == 0:
                if cc >= 1 and cc - 1 + NB < 32:
                    e(f"s_cmp_lg_u32 s{S_WAVE}, 0")
                    e(f"s_cbranch_scc1 L_np{cc}")
                    need(cc - 1 + NB)
                    em.raw(f"L_np{cc}:")
                em.wait_vm(f"D{cc}")
                e("s_barrier")
                if PROF:
                    e("s_memtime s[60:61]")
                    e("s_waitcnt lgkmcnt(0)")
                    em.lg = []
                    e(f"v_writelane_b32 v5, s60, {cc}")
                if cc - 2 + NS < 32:
                    pend.extend(dma_ops(cc - 2 + NS))
            reads(G)
        if G - D >= 0:
            mfma(G - D)
        if pend and (G & 1):
            emit_op(pend.pop(0))
    em.nop(9)
    for u in range(4):
        a = V_ACC + u * 4
        e(f"CV v{28+ (u%2)*2}, v{a}, v{a+1}")
        e(f"CV v{29+ (u%2)*2}, v{a+2}, v{a+3}")
        e(f"buffer_store_dwordx2 v[{28+(u%2)*2}:{29+(u%2)*2}], v{V_O}, s[{S_OUT}:{S_OUT+3}], s{S_ST} offen offset:{u*32}")
    if PROF:
        e("s_waitcnt vmcnt(0)")
        e("s_memtime s[60:61]")
        e("s_waitcnt lgkmcnt(0)")
        e("v_writelane_b32 v5, s60, 47")
        e("v_writelane_b32 v5, s62, 48")
        e("s_lshl_b32 s60, s2, 2")
        e(f"s_add_u32 s60, s60, s{S_WAVE}")
        e("s_lshl_b32 s60, s60, 8")
        e(f"s_add_u32 s60, s60, {33<<20}")
        e(f"v_lshlrev_b32 v10, 2, v{V_L}")
        e(f"s_mov_b32 s{S_OS}, s52")
        e(f"s_mov_b32 s{S_OS+1}, s53")
        e(f"s_mov_b32 s{S_OS+2}, {64<<20}")
        e(f"buffer_store_dword v5, v10, s[{S_OS}:{S_OS+3}], s60 offen")


def kd(name, vgpr, acc):
    return f""".p2align 6
.amdhsa_kernel {name}
  .amdhsa_next_free_vgpr {vgpr}
  .amdhsa_next_free_sgpr 102
  .amdhsa_accum_offset {acc}
  .amdhsa_group_segment_fixed_size 0
  .amdhsa_kernarg_size 64
  .amdhsa_user_sgpr_count 2
  .amdhsa_user_sgpr_kernarg_segment_ptr 1
  .amdhsa_system_sgpr_workgroup_id_x 1
.end_amdhsa_kernel
"""


def main():
    em = Em()
    k1(em)
    for t in range(96):
        assert (t * 4682) >> 16 == t // 14
    for t in range(144):
        assert (t * 7282) >> 16 == t // 9
    txt = HEADER + "\n".join(em.lines) + "\n"
    txt += '.section .rodata,"a"\n' + kd("standalone__mha_block_cached__near_ridge_kernel", 512, 256)
    open(OUT, "w").write(txt)
    print("wrote", OUT, len(txt), "bytes")


main()
```

```python
import math, sys, os, struct

OUT = sys.argv[1] if len(sys.argv) > 1 else "standalone__mha_block_cached__near_ridge.s"
PROF = os.environ.get("PROF", "0") == "1"
NSLOT = 9
NW0 = int(os.environ.get("NW0", "4"))
NK0 = 7 - NW0
ROT = int(os.environ.get("ROT", "2"))
FORK = int(os.environ.get("FORK", "0"))
PREF = int(os.environ.get("PREF", "1"))
PX = int(os.environ.get("PX", "4"))
DREAD = int(os.environ.get("DREAD", "5"))
KVNT = os.environ.get("KVNT", " nt")
K2NS = int(os.environ.get("K2NS", "7"))
K2NT = " nt" if os.environ.get("K2NT", "0") == "1" else ""

HEADER = f"""; Kernarg layout for this problem (64 bytes, ptrs only, base s[0:1]):
; @launch grid=(256,1,1) block=(256,1,1) lds=163840
.amdgcn_target "amdgcn-amd-amdhsa--gfx950"
.macro M d, a, b, c
v_mfma_f32_16x16x32_bf16 \\d, \\a, \\b, \\c
.endm
.macro T d, a, o
ds_read_b64_tr_b16 \\d, \\a offset:\\o
.endm
.macro R d, a, o
ds_read_b128 \\d, \\a offset:\\o
.endm
.macro WL n
s_waitcnt lgkmcnt(\\n)
.endm
.macro CV d, a, b
v_cvt_pk_bf16_f32 \\d, \\a, \\b
.endm
.text
"""


class Em:
    def __init__(self):
        self.lines = []
        self.vm = []
        self.lg = []
        self.n = 0

    def e(self, s):
        self.lines.append(s)
        self.n += 1

    def raw(self, s):
        self.lines.append(s)

    def vmem(self, s, tag):
        self.e(s)
        self.vm.append(tag)

    def ds(self, s, tag):
        self.e(s)
        self.lg.append(tag)

    def wait_vm(self, tag):
        idx = max([i for i, t in enumerate(self.vm) if t == tag], default=-1)
        if idx < 0:
            return
        n = min(len(self.vm) - 1 - idx, 63)
        self.e(f"s_waitcnt vmcnt({n})")
        self.vm = self.vm[len(self.vm) - n:] if n > 0 else []

    def wait_lg(self, tag):
        idx = max([i for i, t in enumerate(self.lg) if t == tag], default=-1)
        if idx < 0:
            return
        n = min(len(self.lg) - 1 - idx, 15)
        self.e(f"WL {n}")
        self.lg = self.lg[len(self.lg) - n:] if n > 0 else []

    def nop(self, states):
        while states > 0:
            k = min(states, 16)
            self.e(f"s_nop {k-1}")
            self.n += k - 1
            states -= k


def vr(b, n=1):
    return f"v{b}" if n == 1 else f"v[{b}:{b+n-1}]"


def ar(b, n=1):
    return f"a{b}" if n == 1 else f"a[{b}:{b+n-1}]"


S_X, S_K, S_V, S_W, S_O = 8, 12, 16, 20, 24
S_WAVE = 28
S_C = 29
S_XQ = 32
S_OQ = 36
S_T = 40
S_T2 = 41
V_LANE = 1
V_ADDR = 2
V_D = 10
V_XO = 14
V_ST = 15
V_SACC = 16
V_M = 40
V_L = 43
V_MC = 46
V_T = 50
V_BIG = 64
A_FR = 192


V_Q8 = 192
V_S8 = 208
V_P8 = 212
V_ONE = 220
V_SC = 224
V_M8, V_MC8 = 225, 226
V_SCW = 227
V_T2 = 228
V_QX = 244
V_XR = 10
V_X8 = 12
XB = 7 * 16384
A_XF = 144
V_A16 = 16
V_SACC2 = 32
V_EP = 228
A_O8 = 128
A_L8 = 144
SCR = 9 * 16384
S_WL, S_KL = 54, 55
S_XW = 56
S_OWN = 66


def k1(em):
    e = em.e
    global V_M, V_L, V_MC
    V_M, V_L, V_MC = 2, 4, 6
    V_WD, V_KD = 8, 9
    em.raw(".globl standalone__mha_block_cached__near_ridge_kernel\n.p2align 8\n.type standalone__mha_block_cached__near_ridge_kernel,@function\nstandalone__mha_block_cached__near_ridge_kernel:")
    e("s_cmp_ge_u32 s2, 256")
    e("s_cbranch_scc1 L_k1_exit")
    if PROF:
        e("s_memtime s[62:63]")
        e("s_memrealtime s[64:65]")
    e("s_load_dwordx8 s[44:51], s[0:1], 0")
    e("s_load_dwordx2 s[52:53], s[0:1], 56")
    if PREF:
        e("s_getpc_b64 s[76:77]")
        e("s_lshr_b32 s4, s2, 3")
        e("s_cmp_ge_u32 s4, 18")
        e("s_cbranch_scc1 L_nopref")
        e("s_lshl_b32 s4, s4, 12")
        e("v_lshlrev_b32 v2, 4, v0")
        e("v_add_u32 v2, s4, v2")
        e("global_load_dwordx4 v[4:7], v2, s[76:77]")
        em.raw("L_nopref:")
    e("s_and_b32 s3, s2, 7")
    e("s_lshr_b32 s4, s2, 3")
    MAPH = int(os.environ.get("MAPH", "4"))
    lg = {4: 2, 8: 3, 16: 4}[MAPH]
    e(f"s_and_b32 s5, s3, {16 // MAPH - 1}")
    e(f"s_lshl_b32 s5, s5, {lg}")
    e(f"s_and_b32 s6, s4, {MAPH - 1}")
    e("s_add_u32 s5, s5, s6")
    e(f"s_lshr_b32 s6, s3, {4 - lg}")
    e(f"s_lshl_b32 s6, s6, {5 - lg}")
    e(f"s_lshr_b32 s7, s4, {lg}")
    e("s_add_u32 s6, s6, s7")
    e(f"v_and_b32 v{V_LANE}, 63, v0")
    e("v_lshrrev_b32 v2, 6, v0")
    e("s_nop 0")
    e(f"v_readfirstlane_b32 s{S_WAVE}, v2")
    e(f"s_mov_b32 s{S_C}, {hex(struct.unpack('<I', struct.pack('<f', math.log2(math.e)/16.0))[0])}")
    e("s_waitcnt lgkmcnt(0)")
    e("s_mul_i32 s7, s6, 129024")
    e(f"s_add_u32 s{S_X}, s44, s7")
    e(f"s_addc_u32 s{S_X+1}, s45, 0")
    e(f"s_mov_b32 s{S_X+2}, 129024")
    e(f"s_mov_b32 s{S_X+3}, 0x20000")
    e("s_lshl_b32 s7, s6, 4")
    e("s_add_u32 s7, s7, s5")
    e("s_lshl_b32 s7, s7, 18")
    e(f"s_add_u32 s{S_K}, s46, s7")
    e(f"s_addc_u32 s{S_K+1}, s47, 0")
    e(f"s_mov_b32 s{S_K+2}, 262144")
    e(f"s_mov_b32 s{S_K+3}, 0x20000")
    e(f"s_add_u32 s{S_V}, s48, s7")
    e(f"s_addc_u32 s{S_V+1}, s49, 0")
    e(f"s_mov_b32 s{S_V+2}, 262144")
    e(f"s_mov_b32 s{S_V+3}, 0x20000")
    e("s_lshl_b32 s7, s5, 9")
    e(f"s_add_u32 s{S_W}, s50, s7")
    e(f"s_addc_u32 s{S_W+1}, s51, 0")
    e(f"s_mov_b32 s{S_W+2}, {447*8192+512}")
    e(f"s_mov_b32 s{S_W+3}, 0x20000")
    e(f"s_mov_b32 s{S_O}, s52")
    e(f"s_mov_b32 s{S_O+1}, s53")
    e(f"s_mov_b32 s{S_O+2}, {144*128*1024}")
    e(f"s_mov_b32 s{S_O+3}, 0x20000")
    e(f"s_lshl_b32 s7, s{S_WAVE}, 1")
    for qt in range(3):
        if qt < 2:
            e(f"s_add_u32 s42, s7, {qt}")
        else:
            e("s_mov_b32 s42, 8")
        e(f"s_mul_i32 s{S_XQ+qt}, s42, 14336")
        e("s_mul_i32 s43, s6, 9")
        e("s_add_u32 s43, s43, s42")
        e("s_lshl_b32 s43, s43, 7")
        e("s_lshl_b32 s42, s5, 3")
        e("s_add_u32 s43, s43, s42")
        e(f"s_lshl_b32 s{S_OQ+qt}, s43, 10")
    e("s_mul_i32 s78, s4, 3")
    e("s_mul_i32 s42, s78, 4682")
    e("s_lshr_b32 s42, s42, 16")
    e("s_mul_i32 s42, s42, 14")
    e("s_sub_u32 s78, s78, s42")
    if not (ROT & 1):
        e("s_mov_b32 s78, 0")
    for a in range(4):
        e(f"s_xor_b32 s42, s{S_WAVE}, {a}")
        e(f"s_lshl_b32 s{S_XW+a}, s42, 11")
    for k in range(4):
        e(f"s_cmp_eq_u32 s{S_WAVE}, {k}")
        e(f"s_cselect_b64 s[{S_OWN+2*k}:{S_OWN+2*k+1}], -1, 0")
    t0, t1, t2, t3 = V_T, V_T + 1, V_T + 2, V_T + 3
    e(f"v_lshlrev_b32 v{V_ST}, 4, v{V_LANE}")
    e(f"s_lshl_b32 s42, s{S_WAVE}, 1")
    e(f"s_lshl_b32 s{S_KL}, s{S_WAVE}, 10")
    e(f"v_lshrrev_b32 v{t0}, 5, v{V_LANE}")
    e(f"v_add_u32 v{t0}, s42, v{t0}")
    e(f"v_and_b32 v{t1}, 31, v{V_LANE}")
    e(f"v_lshlrev_b32 v{t2}, 1, v{t0}")
    e(f"v_xor_b32 v{t2}, v{t1}, v{t2}")
    e(f"v_lshlrev_b32 v{t2}, 4, v{t2}")
    e(f"v_lshl_add_u32 v{V_KD}, v{t0}, 9, v{t2}")
    e(f"s_and_b32 s42, s{S_WAVE}, 1")
    e("s_lshl_b32 s42, s42, 1")
    e(f"s_lshr_b32 s43, s{S_WAVE}, 1")
    e("s_lshl_b32 s43, s43, 3")
    e("s_add_u32 s42, s42, s43")
    e(f"s_lshl_b32 s{S_WL}, s42, 9")
    e(f"v_lshrrev_b32 v{t0}, 5, v{V_LANE}")
    e(f"v_add_u32 v{t0}, s42, v{t0}")
    e(f"v_and_b32 v{t2}, 3, v{t0}")
    e(f"v_bfe_u32 v{t3}, v{t0}, 3, 1")
    e(f"v_lshl_add_u32 v{t2}, v{t3}, 2, v{t2}")
    e(f"v_lshlrev_b32 v{t2}, 1, v{t2}")
    e(f"v_xor_b32 v{t2}, v{t1}, v{t2}")
    e(f"v_lshlrev_b32 v{t2}, 4, v{t2}")
    e(f"v_lshl_add_u32 v{V_WD}, v{t0}, 13, v{t2}")
    e(f"s_and_b32 s42, s{S_WAVE}, 1")
    e("s_lshl_b32 s42, s42, 2")
    e(f"v_lshrrev_b32 v{t0}, 4, v{V_LANE}")
    e(f"v_or_b32 v{t0}, s42, v{t0}")
    e(f"v_and_b32 v{t1}, 7, v{V_LANE}")
    e(f"v_xor_b32 v{t0}, v{t0}, v{t1}")
    e(f"v_lshrrev_b32 v{t1}, 3, v{V_LANE}")
    e(f"v_mul_u32_u24 v{t1}, 896, v{t1}")
    e(f"v_lshl_add_u32 v{V_XO}, v{t0}, 4, v{t1}")
    e(f"v_and_b32 v{t0}, 15, v{V_LANE}")
    e(f"v_lshrrev_b32 v{t1}, 4, v{V_LANE}")
    e(f"v_bfe_u32 v{t2}, v{t0}, 1, 3")
    e(f"v_xor_b32 v{t1}, v{t1}, v{t2}")
    e(f"v_lshlrev_b32 v{t1}, 4, v{t1}")
    e(f"v_lshl_add_u32 v{t1}, v{t0}, 7, v{t1}")
    e(f"v_add_u32 v{V_X8}, {XB + 8*2048}, v{t1}")
    e(f"v_xor_b32 v{V_X8+1}, 64, v{V_X8}")
    e(f"s_lshl_b32 s42, s{S_WAVE}, 12")
    e(f"s_add_u32 s42, s42, {XB}")
    e(f"v_add_u32 v{V_XR}, s42, v{t1}")
    e(f"v_xor_b32 v{V_XR+1}, 64, v{V_XR}")
    e(f"s_mul_i32 s89, s{S_WAVE}, {8*896}")
    e(f"s_lshl_b32 s90, s{S_WAVE}, 10")
    e(f"s_cmp_lt_u32 s{S_WAVE}, 2")
    e(f"s_cselect_b32 s91, s90, 60000")
    e(f"v_lshlrev_b32 v{V_SC}, 4, v{V_LANE}")
    e(f"v_add_u32 v{V_SC}, {SCR}, v{V_SC}")
    for a in range(4):
        e(f"v_add_u32 v{V_QX+a}, s{S_XW+a}, v{V_SC}")
    for j in range(4):
        e(f"v_mov_b32 v{V_ONE+j}, 0x3f803f80")

    NT = 2
    chunks = [("W", i) for i in range(14)] + [("K", i) for i in range(16)] + [("V", i) for i in range(16)]
    nsteps = len(chunks)
    slot_of = {}
    init = [("W", i) for i in range(NW0)] + [("K", i) for i in range(NK0)]
    for s_, c in enumerate(init):
        slot_of[c] = s_
    later = [c for c in chunks if c not in slot_of]
    dq = []

    def kc(c, dst):
        e(f"s_add_u32 s{dst}, s78, {c}")
        e(f"s_cmp_ge_u32 s{dst}, 14")
        e(f"s_cselect_b32 s79, 14, 0")
        e(f"s_sub_u32 s{dst}, s{dst}, s79")

    def emit_dma(item):
        if item[0] == "X":
            _, p, n = item
            base = XB + (p & 1) * 18432 + n * 4096
            e(f"s_add_u32 m0, s{91 if n == 4 else 90}, {base}")
            e(f"s_add_u32 s{S_T}, s89, {n*32*896 + p*128}")
            em.vmem(f"buffer_load_dwordx4 v{V_XO}, s[{S_X}:{S_X+3}], s{S_T} offen lds", f"X{p}")
            return
        sl, lds, goff, vo, srd, nt, tag = item
        if srd == S_W:
            ci, jr = goff
            if jr == 0:
                kc(ci, 80)
                e("s_lshl_b32 s80, s80, 18")
            e(f"s_add_u32 m0, s{sl}, {lds}")
            e(f"s_add_u32 s{S_T}, s80, {jr*8192}")
        else:
            e(f"s_add_u32 m0, s{sl}, {lds}")
            e(f"s_mov_b32 s{S_T}, {goff}")
        em.vmem(f"buffer_load_dwordx4 v{vo}, s[{srd}:{srd+3}], s{S_T} offen{nt} lds", tag)

    def issue(chunk, defer=False):
        kind, ci = chunk
        slot = slot_of[chunk]
        tag = f"{kind}{ci}"
        its = []
        if kind == "W":
            for jr in (0, 4, 16, 20):
                its.append((S_WL, slot * 16384 + jr * 512, (ci, jr), V_WD, S_W, "", tag))
        else:
            srd = S_K if kind == "K" else S_V
            for jj in range(4):
                its.append((S_KL, slot * 16384 + jj * 4096, ci * 16384 + jj * 4096, V_KD, srd, KVNT, tag))
        for it in its:
            if defer:
                dq.append(it)
            else:
                emit_dma(it)

    def xdma(p, defer=True):
        if p >= 7:
            return
        for n in range(5):
            it = ("X", p, n)
            if defer:
                dq.append(it)
            else:
                emit_dma(it)

    def XF(qt, c):
        return A_XF + ((c >> 1) & 1) * 24 + (c & 1) * 12 + qt * 4

    def xreads(p):
        off = (p & 1) * 18432
        for ks in range(2):
            c = 2 * p + ks
            em.ds(f"R {ar(XF(0,c),4)}, v{V_XR+ks}, {off}", f"xr{c}")
            em.ds(f"R {ar(XF(1,c),4)}, v{V_XR+ks}, {off+2048}", f"xr{c}")
            em.ds(f"R {ar(XF(2,c),4)}, v{V_X8+ks}, {off}", f"xr{c}")

    for c in range(NW0):
        if c < 2:
            xdma(c, False)
        issue(("W", c))
    KD = int(os.environ.get("KD", "0"))
    if KD == 0:
        issue(("K", 0))
    st = {"base": 0}

    def set_addr(kind):
        e(f"v_lshrrev_b32 v{t0}, 4, v{V_LANE}")
        e(f"v_bfe_u32 v{t1}, v{V_LANE}, 2, 2")
        e(f"v_and_b32 v{t2}, 3, v{V_LANE}")
        if kind == "W":
            e(f"v_lshl_add_u32 v{t3}, v{t0}, 3, v{t1}")
            e(f"v_lshlrev_b32 v{t3}, 9, v{t3}")
            e(f"v_and_b32 v{t0}, 1, v{t0}")
            e(f"v_lshl_add_u32 v{t0}, v{t0}, 2, v{t1}")
            e(f"v_lshl_add_u32 v{t3}, v{t0}, 5, v{t3}")
            e(f"v_lshl_add_u32 v{t3}, v{t2}, 3, v{t3}")
            nb, sh = 16, 5
        elif kind == "V":
            e(f"v_lshl_add_u32 v{t0}, v{t0}, 2, v{t1}")
            e(f"v_lshlrev_b32 v{t3}, 9, v{t0}")
            e(f"v_and_b32 v{t0}, 7, v{t0}")
            e(f"v_lshl_add_u32 v{t3}, v{t0}, 5, v{t3}")
            e(f"v_lshl_add_u32 v{t3}, v{t2}, 3, v{t3}")
            nb, sh = 16, 5
        else:
            e(f"v_and_b32 v{t1}, 15, v{V_LANE}")
            e(f"v_lshlrev_b32 v{t3}, 9, v{t1}")
            e(f"v_and_b32 v{t1}, 7, v{t1}")
            e(f"v_lshlrev_b32 v{t1}, 1, v{t1}")
            e(f"v_xor_b32 v{t1}, v{t0}, v{t1}")
            e(f"v_lshl_add_u32 v{t3}, v{t1}, 4, v{t3}")
            nb, sh = 8, 6
        e(f"s_lshl_b32 s42, s{S_WAVE}, 7")
        e(f"v_xor_b32 v{t3}, s42, v{t3}")
        for b in range(nb):
            e(f"v_xor_b32 v{V_A16+b}, {b << sh}, v{t3}")
        st["base"] = 0
        st["nb"] = nb

    def set_base(grp):
        if grp != st["base"]:
            d = (grp - st["base"]) * 65536
            for b in range(st["nb"]):
                e(f"v_add_u32 v{V_A16+b}, {d & 0xffffffff}, v{V_A16+b}")
            st["base"] = grp

    def frag_reg(G):
        return A_FR + (G % 16) * 4

    def reads(G):
        i, f = divmod(G, 16)
        kind, ci = chunks[i]
        slot = slot_of[chunks[i]]
        sb = (slot & 3) * 16384
        fr = frag_reg(G)
        tag = f"F{G}"
        if kind == "K":
            kt, ks = f >> 3, f & 7
            em.ds(f"R {ar(fr,4)}, v{V_A16+ks}, {sb + kt*8192}", tag)
        else:
            second = 2048 if kind == "W" else 8192
            em.ds(f"T {ar(fr,2)}, v{V_A16+f}, {sb}", tag)
            em.ds(f"T {ar(fr+2,2)}, v{V_A16+f}, {sb + second}", tag)

    def big(qt, idx):
        return V_BIG + (qt * 16 + idx) * 4

    def sacc(kt, qt):
        return V_SACC2 + (kt * 2 + qt) * 4

    def QF(qt, s):
        return (qt * 14 + s) * 4

    def s8reg(ci):
        return V_Q8 + (ci >> 1) * 2

    q = []
    lab = [0]

    def push(instrs, after=None):
        for k, s in enumerate(instrs):
            q.append((after if k == 0 else None, s))

    def drain(cnt):
        k = 0
        while q and k < cnt:
            rdy, s = q[0]
            if rdy is not None and em.n < rdy:
                return
            q.pop(0)
            if isinstance(s, tuple):
                if s[0] == "nop":
                    em.nop(s[1])
                elif s[0] == "st":
                    em.vmem(s[1], "st")
                elif s[0] == "ds":
                    em.ds(s[1], s[2])
                elif s[0] == "blk":
                    for x in s[1]:
                        if x.endswith(":"):
                            em.raw(x)
                        else:
                            e(x)
            else:
                e(s)
            k += 1

    def drain_all():
        while q:
            rdy, s = q[0]
            if rdy is not None and em.n < rdy:
                em.nop(rdy - em.n)
            drain(1)

    def s_items(ci, kt):
        out = []
        for qt in range(NT):
            a, m, dst = sacc(kt, qt), V_M + qt, big(qt, ci) + 2 * kt
            if ci == 0 and kt == 0:
                out.append(f"v_max_f32 v{m}, v{a}, v{a+1}")
            else:
                out.append(f"v_max3_f32 v{m}, v{a}, v{a+1}, v{m}")
            out.append(f"CV v{dst}, v{a}, v{a+1}")
            out.append(f"v_max3_f32 v{m}, v{a+2}, v{a+3}, v{m}")
            out.append(f"CV v{dst+1}, v{a+2}, v{a+3}")
        k = 2 * (ci & 1) + kt
        lab[0] += 1
        L = f"Ls8_{lab[0]}"
        a, m, dst = V_S8, V_M8, s8reg(ci)
        blk = [f"s_mov_b64 vcc, s[{S_OWN+2*k}:{S_OWN+2*k+1}]", f"s_cbranch_vccz {L}",
               f"v_max3_f32 v{m}, v{a}, v{a+1}, v{m}", f"CV v{dst}, v{a}, v{a+1}",
               f"v_max3_f32 v{m}, v{a+2}, v{a+3}, v{m}", f"CV v{dst+1}, v{a+2}, v{a+3}", f"{L}:"]
        out.append(("blk", blk))
        return out

    def qconv_items(s):
        out = []
        tl = [(V_T + qt * 4, big(qt, 2 * s), big(qt, 2 * s + 1), qt) for qt in range(NT)]
        if s < 2:
            tl.append((V_T + 8, V_Q8 + (2 * s) * 4, V_Q8 + (2 * s + 1) * 4, 8))
        for t, p0, p1, qt in tl:
            out += [f"CV v{t}, v{p0}, v{p0+1}", f"CV v{t+1}, v{p0+2}, v{p0+3}",
                    f"CV v{t+2}, v{p1}, v{p1+1}", f"CV v{t+3}, v{p1+2}, v{p1+3}"]
        out.append(("nop", 2))
        for t, *_ in tl:
            out += [f"v_permlane32_swap_b32 v{t}, v{t+2}", f"v_permlane32_swap_b32 v{t+1}, v{t+3}"]
        out.append(("nop", 2))
        for t, *_ in tl:
            out += [f"v_permlane16_swap_b32 v{t}, v{t+2}", f"v_permlane16_swap_b32 v{t+1}, v{t+3}"]
        out.append(("nop", 1))
        for t, p0, p1, qt in tl:
            if qt == 8:
                out.append(("ds", f"ds_write_b128 v{V_QX}, v[{t}:{t+3}] offset:{s*1024}", "q8w"))
            else:
                for j in range(4):
                    out.append(f"v_accvgpr_write_b32 a{QF(qt, s)+j}, v{t+j}")
        return out

    def xreduce(op, regs):
        out = []
        for sw in ("32", "16"):
            for k, r in enumerate(regs):
                out.append(f"v_mov_b32 v{V_T+k}, v{r}")
            out.append(("nop", 2))
            for k, r in enumerate(regs):
                out.append(f"v_permlane{sw}_swap_b32 v{V_T+k}, v{r}")
            out.append(("nop", 1))
            for k, r in enumerate(regs):
                out.append(f"v_{op}_f32 v{r}, v{r}, v{V_T+k}")
        return out

    def p_group(regs):
        n = len(regs)
        T = [(V_T2 + 2 * k, V_T2 + 2 * k + 1) for k in range(n)]
        o = []
        for (R, mc, l), (ta, tb) in zip(regs, T):
            o += [f"v_lshlrev_b32 v{ta}, 16, v{R}", f"v_and_b32 v{tb}, 0xffff0000, v{R}"]
        for (R, mc, l), (ta, tb) in zip(regs, T):
            o += [f"v_fma_f32 v{ta}, v{ta}, s{S_C}, -v{mc}", f"v_fma_f32 v{tb}, v{tb}, s{S_C}, -v{mc}"]
        for (R, mc, l), (ta, tb) in zip(regs, T):
            o += [f"v_exp_f32 v{ta}, v{ta}", f"v_exp_f32 v{tb}, v{tb}"]
        for which in (0, 1):
            for (R, mc, l), tt in zip(regs, T):
                if l is not None:
                    o.append(f"v_add_f32 v{l}, v{l}, v{tt[which]}")
        for (R, mc, l), (ta, tb) in zip(regs, T):
            o.append(f"CV v{R}, v{ta}, v{tb}")
        return o

    def p_items(ci):
        regs = [(big(qt, ci) + j, V_MC + qt, V_L + qt) for j in range(4) for qt in range(NT)]
        return p_group(regs)

    epi_k = [0]

    def epi_block(areg, lreg, soff, sp):
        out = []
        tb = V_EP + (epi_k[0] % 2) * 12
        epi_k[0] += 1
        for j in range(8):
            out.append(f"v_accvgpr_read_b32 v{tb+j}, a{areg+j}")
        for j in range(8):
            out.append(f"v_mul_f32 v{tb+j}, v{tb+j}, v{lreg}")
        for j in range(4):
            out.append(f"CV v{tb+8+j}, v{tb+2*j}, v{tb+2*j+1}")
        out.append(f"s_add_u32 s{S_T2}, s{soff}, s{S_XW + (sp>>1)}")
        out.append(("st", f"buffer_store_dwordx4 v[{tb+8}:{tb+11}], v{V_ST}, s[{S_O}:{S_O+3}], s{S_T2} offen offset:{(sp&1)*1024} sc1"))
        return out

    def epi_items(s):
        out = []
        for qt in range(NT):
            out += epi_block((qt * 16 + 2 * s) * 4, V_L + qt, S_OQ + qt, s)
        return out

    def transition_q8():
        drain_all()
        e(f"v_mov_b32 v{V_M8}, 0xff800000")
        em.wait_lg("q8w")
        e("s_barrier")
        for s in range(8):
            em.ds(f"R {ar(QF(2, s),4)}, v{V_QX + (s>>1)}, {(s&1)*1024}", "q8r")
        em.nop(2)

    def transition_sm():
        drain_all()
        push(xreduce("max", [V_M, V_M + 1, V_M8]))
        drain_all()
        e(f"v_and_b32 v{t0}, 15, v{V_LANE}")
        e(f"v_lshlrev_b32 v{t0}, 2, v{t0}")
        e(f"v_add_u32 v{t0}, {SCR}, v{t0}")
        e(f"s_lshl_b32 s42, s{S_WAVE}, 6")
        e(f"v_add_u32 v{t1}, s42, v{t0}")
        em.ds(f"ds_write_b32 v{t1}, v{V_M8}", "m8w")
        for qt in range(NT):
            e(f"v_mul_f32 v{V_MC+qt}, s{S_C}, v{V_M+qt}")
            e(f"v_mov_b32 v{V_L+qt}, 0")
        e(f"s_lshr_b32 s42, s{S_WAVE}, 1")
        e("s_lshl_b32 s42, s42, 10")
        e(f"s_and_b32 s43, s{S_WAVE}, 1")
        e("s_lshl_b32 s43, s43, 3")
        e("s_add_u32 s42, s42, s43")
        e(f"v_add_u32 v{V_SCW}, s42, v{V_SC}")
        em.wait_lg("m8w")
        e("s_barrier")
        em.ds(f"ds_read2_b32 v[{t2}:{t3}], v{t0} offset0:0 offset1:16", "m8r")
        em.ds(f"ds_read2_b32 v[{t3+1}:{t3+2}], v{t0} offset0:32 offset1:48", "m8r")
        for s in p_items(0):
            e(s)
        em.wait_lg("m8r")
        e("s_barrier")
        e(f"v_max3_f32 v{V_M8}, v{t2}, v{t3}, v{t3+1}")
        e(f"v_max_f32 v{V_M8}, v{V_M8}, v{t3+2}")
        e(f"v_mul_f32 v{V_MC8}, s{S_C}, v{V_M8}")
        for h in range(0, 8, 4):
            regs = [(V_Q8 + 2 * j + k, V_MC8, None) for j in range(h, h + 4) for k in range(2)]
            for s in p_group(regs):
                e(s)
        for j in range(8):
            em.ds(f"ds_write_b64 v{V_SCW}, v[{V_Q8+2*j}:{V_Q8+2*j+1}] offset:{j*2048}", "p8w")
        em.wait_lg("p8w")
        e("s_barrier")
        em.ds(f"R {vr(V_P8,4)}, v{V_SC}, 0", "P8_0")
        em.nop(2)

    def mfmas(G):
        i, f = divmod(G, 16)
        kind, ci = chunks[i]
        fr = frag_reg(G)
        if kind == "V" and ci == 0 and f == 0:
            transition_sm()
        if kind == "W" and f == 0:
            em.wait_lg(f"xr{ci}")
        if kind == "V" and f == 0 and ci > 0:
            drain_all()
            em.nop(2)
        em.wait_lg(f"F{G}")
        per = {"W": 3, "K": 2, "V": 3}[kind]
        for qt in range(NT):
            if kind == "W":
                d = vr(big(qt, f), 4)
                c = "0" if ci == 0 else d
                e(f"M {d}, {ar(fr,4)}, {ar(XF(qt,ci),4)}, {c}")
            elif kind == "K":
                kt, ks = f >> 3, f & 7
                if ks == 0:
                    assert not any(isinstance(x[1], str) and f"v{sacc(kt,qt)}," in x[1] for x in q), "pending S items"
                d = vr(sacc(kt, qt), 4)
                c = "0" if ks == 0 else d
                e(f"M {d}, {ar(fr,4)}, {ar(QF(qt,ks),4)}, {c}")
            else:
                d = ar((qt * 16 + f) * 4, 4)
                c = "0" if ci == 0 else d
                e(f"M {d}, {ar(fr,4)}, {vr(big(qt,ci),4)}, {c}")
            drain(per)
        if kind == "W" and f < 4:
            d = vr(V_Q8 + f * 4, 4)
            c = "0" if ci == 0 else d
            e(f"M {d}, {ar(fr,4)}, {ar(XF(2,ci),4)}, {c}")
            drain(per)
        elif kind == "K":
            kt, ks = f >> 3, f & 7
            if ks == 0:
                while any(isinstance(x[1], tuple) and x[1][0] == "blk" for x in q):
                    rdy, _ = q[0]
                    if rdy is not None and em.n < rdy:
                        em.nop(rdy - em.n)
                    drain(1)
            d = vr(V_S8, 4)
            c = "0" if ks == 0 else d
            if os.environ.get("ALLM", "1") == "1":
                e(f"M {d}, {ar(fr,4)}, {ar(QF(2,ks),4)}, {c}")
                drain(per)
            elif not FORK:
                k = 2 * (ci & 1) + kt
                lab[0] += 1
                L = f"Lk8_{lab[0]}"
                e(f"s_mov_b64 vcc, s[{S_OWN+2*k}:{S_OWN+2*k+1}]")
                e(f"s_cbranch_vccz {L}")
                e(f"M {d}, {ar(fr,4)}, {ar(QF(2,ks),4)}, {c}")
                em.raw(f"{L}:")
            elif st.get("extra"):
                e(f"M {d}, {ar(fr,4)}, {ar(QF(2,ks),4)}, {c}")
                em.n -= 1
        elif kind == "V":
            p8 = V_P8 + (ci & 1) * 4
            if f == 0 and ci + 1 < 16:
                em.ds(f"R {vr(V_P8 + ((ci+1)&1)*4, 4)}, v{V_SC}, {(ci+1)*1024}", f"P8_{ci+1}")
            if f < 4:
                em.wait_lg(f"P8_{ci}")
                d = ar(A_O8 + f * 4, 4)
                c = "0" if ci == 0 else d
                e(f"M {d}, {ar(fr,4)}, {vr(p8,4)}, {c}")
                drain(per)
                if f == 3:
                    d = ar(A_L8, 4)
                    c = "0" if ci == 0 else d
                    e(f"M {d}, {vr(V_ONE,4)}, {vr(p8,4)}, {c}")
                    drain(per)
        if kind == "W" and ci == 13 and (f & 1):
            push(qconv_items(f >> 1), after=em.n + 9)
        if kind == "K" and (f & 7) == 7:
            push(s_items(ci, f >> 3), after=em.n + 13)
        if kind == "V":
            if f == 0 and ci + 1 < 16:
                push(p_items(ci + 1))
            if ci == 15:
                if f == 0:
                    push(xreduce("add", [V_L, V_L + 1]))
                    push([f"v_rcp_f32 v{V_L+qt}, v{V_L+qt}" for qt in range(NT)])
                    push([("nop", 1)])
                if f == 5:
                    push([f"v_accvgpr_read_b32 v{V_M8}, a{A_L8}", f"v_rcp_f32 v{V_M8}, v{V_M8}", ("nop", 1)], after=em.n + 9)
                    for k in range(2):
                        push(epi_block(A_O8 + k * 8, V_M8, S_OQ + 2, k))
                if f & 1:
                    push(epi_items(f >> 1), after=em.n + 9)

    total = nsteps * 16
    st["li"] = 0

    def body(G):
        if G < total:
            i, f = divmod(G, 16)
            if f == 0:
                kind, ci = chunks[i]
                em.wait_vm(f"{kind}{ci}")
                if kind == "W" and (ci & 1) == 0:
                    em.wait_vm(f"X{ci >> 1}")
                e("s_barrier")
                if PROF:
                    e("s_memtime s[60:61]")
                    e("s_waitcnt lgkmcnt(0)")
                    em.lg = []
                    e(f"v_writelane_b32 v49, s60, {i}")
                while dq:
                    emit_dma(dq.pop(0))
                if kind == "W" and (ci & 1) == 0:
                    xreads(ci >> 1)
                    if ci >= 2:
                        xdma((ci >> 1) + 1)
                frees = []
                if i >= 2:
                    frees.append(slot_of[chunks[i - 2]])
                if i == 14:
                    frees += [7, 8]
                for fs_ in frees:
                    if st["li"] < len(later):
                        c = later[st["li"]]
                        st["li"] += 1
                        slot_of[c] = fs_
                        issue(c, True)
                if KD == 0:
                    if i + 1 < NK0:
                        issue(("K", i + 1), True)
                elif KD - 1 <= i < KD - 1 + NK0:
                    issue(("K", i - KD + 1), True)
                if i == 0 or chunks[i - 1][0] != kind:
                    drain_all()
                    set_addr(kind)
                set_base(slot_of[chunks[i]] >> 2)
            reads(G)
        m = G - DREAD
        if m >= 0:
            mfmas(m)
        FS = int(os.environ.get("FS", "35"))
        if PROF and FS * 16 <= G < FS * 16 + 24:
            e("s_memtime s[60:61]")
            e("s_waitcnt lgkmcnt(0)")
            em.lg = []
            e(f"v_writelane_b32 v48, s60, {2*(G - FS*16)}")
        if dq:
            emit_dma(dq.pop(0))
        if PROF and FS * 16 <= G < FS * 16 + 24:
            e("s_memtime s[60:61]")
            e("s_waitcnt lgkmcnt(0)")
            em.lg = []
            e(f"v_writelane_b32 v48, s60, {2*(G - FS*16)+1}")

    import copy
    G = 0
    while G < total + DREAD:
        m = G - DREAD
        if not FORK and m == 14 * 16:
            transition_q8()
            em.wait_lg("q8r")
        if FORK and m >= 0 and chunks[m // 16][0] == "K" and (m & 7) == 0:
            ci, kt = chunks[m // 16][1], (m >> 3) & 1
            k = 2 * (ci & 1) + kt
            if ci == 0 and kt == 0:
                transition_q8()
                em.wait_lg("q8r")
            while any(isinstance(x[1], tuple) and x[1][0] == "blk" for x in q):
                rdy, _ = q[0]
                if rdy is not None and em.n < rdy:
                    em.nop(rdy - em.n)
                drain(1)
            lab[0] += 1
            LP, LJ = f"Lkp_{lab[0]}", f"Lkj_{lab[0]}"
            e(f"s_mov_b64 vcc, s[{S_OWN+2*k}:{S_OWN+2*k+1}]")
            e(f"s_cbranch_vccz {LP}")
            snap = (list(em.vm), list(em.lg), em.n, list(q), list(dq), dict(st), dict(slot_of), lab[0], list(epi_k))
            st["extra"] = True
            for g2 in range(G, G + 8):
                body(g2)
            e(f"s_branch {LJ}")
            em.raw(f"{LP}:")
            nA = em.n
            em.vm, em.lg, em.n = list(snap[0]), list(snap[1]), snap[2]
            q[:] = snap[3]
            dq[:] = snap[4]
            st.clear(); st.update(snap[5])
            slot_of.clear(); slot_of.update(snap[6])
            lab[0] = snap[7] + 1000
            st["extra"] = False
            for g2 in range(G, G + 8):
                body(g2)
            em.raw(f"{LJ}:")
            G += 8
        else:
            body(G)
            G += 1
    drain_all()
    if PROF:
        e("s_memtime s[60:61]")
        e("s_waitcnt lgkmcnt(0)")
        e("v_writelane_b32 v49, s60, 46")
        e("s_waitcnt vmcnt(0)")
        e("s_memtime s[60:61]")
        e("s_waitcnt lgkmcnt(0)")
        e("v_writelane_b32 v49, s60, 47")
        e("v_writelane_b32 v49, s62, 48")
        e("s_memrealtime s[60:61]")
        e("s_waitcnt lgkmcnt(0)")
        e("v_writelane_b32 v49, s60, 49")
        e("v_writelane_b32 v49, s64, 50")
        e("s_lshl_b32 s60, s2, 2")
        e(f"s_add_u32 s60, s60, s{S_WAVE}")
        e("s_lshl_b32 s60, s60, 8")
        e(f"s_add_u32 s60, s60, {32<<20}")
        e(f"v_lshlrev_b32 v50, 2, v{V_LANE}")
        e(f"s_mov_b32 s{S_O+2}, {64<<20}")
        e(f"buffer_store_dword v49, v50, s[{S_O}:{S_O+3}], s60 offen")
        e(f"s_add_u32 s60, s60, {2<<20}")
        e(f"buffer_store_dword v48, v50, s[{S_O}:{S_O+3}], s60 offen")
    tail(em)
    em.raw("L_k1_exit:")
    e("s_endpgm")


def tail(em):
    e = em.e
    NS = 9
    S_WO, S_OS, S_OUT, S_DB = 8, 12, 16, 20
    S_WG, S_WLD, S_TT, S_ST = 30, 31, 32, 33
    V_L, V_DMA, V_B, V_O, V_A = 1, 2, 3, 4, 6
    V_ACC = 12
    V_FR = 32
    V_BF = 64
    e("s_load_dwordx4 s[44:47], s[0:1], 32")
    e("s_load_dwordx2 s[48:49], s[0:1], 48")
    e("s_mov_b32 s87, s6")
    e("s_mov_b32 s88, s5")
    e("s_waitcnt vmcnt(0) lgkmcnt(0)")
    em.lg = []
    em.vm = []
    e(f"s_mov_b32 s{S_DB}, s48")
    e(f"s_mov_b32 s{S_DB+1}, s49")
    e(f"s_mov_b32 s{S_DB+2}, 256")
    e(f"s_mov_b32 s{S_DB+3}, 0x20000")

    def signal(lbl):
        e("s_barrier")
        e(f"s_cmp_lg_u32 s{S_WAVE}, 0")
        e(f"s_cbranch_scc1 {lbl}")
        e("s_lshl_b32 s42, s87, 2")
        e("v_mov_b32 v10, s42")
        e("s_lshl_b32 s42, 1, s88")
        e("v_mov_b32 v11, s42")
        e("s_mov_b64 exec, 1")
        e(f"buffer_atomic_or v11, v10, s[{S_DB}:{S_DB+3}], 0 offen sc1")
        e("s_mov_b64 exec, -1")
        em.raw(f"{lbl}:")

    signal("L_nosig1")
    if PROF:
        e("s_memtime s[60:61]")
        e("s_waitcnt lgkmcnt(0)")
        e("v_writelane_b32 v5, s60, 40")
    e("s_and_b32 s3, s2, 7")
    e("s_lshr_b32 s4, s2, 3")
    e("s_lshl_b32 s3, s3, 5")
    e("s_add_u32 s3, s3, s4")
    e("s_cmp_ge_u32 s3, 252")
    e("s_cbranch_scc1 L_k1_exit")
    e("s_mul_i32 s4, s3, 9363")
    e("s_lshr_b32 s4, s4, 16")
    e("s_mul_i32 s5, s4, 7")
    e("s_sub_u32 s5, s3, s5")
    e("s_lshl_b32 s6, s5, 7")
    e(f"s_add_u32 s{S_WO}, s44, s6")
    e(f"s_addc_u32 s{S_WO+1}, s45, 0")
    e(f"s_sub_u32 s{S_WO+2}, {4096*896}, s6")
    e(f"s_mov_b32 s{S_WO+3}, 0x20000")
    e("s_lshl_b32 s7, s4, 2")
    e(f"s_add_u32 s7, s7, s{S_WAVE}")
    e("s_lshl_b32 s25, s7, 17")
    e(f"s_add_u32 s{S_OS}, s52, s25")
    e(f"s_addc_u32 s{S_OS+1}, s53, 0")
    e(f"s_mov_b32 s{S_OS+2}, 131072")
    e(f"s_mov_b32 s{S_OS+3}, 0x20000")
    e(f"s_mov_b32 s{S_OUT}, s46")
    e(f"s_mov_b32 s{S_OUT+1}, s47")
    e(f"s_mov_b32 s{S_OUT+2}, {2304*896}")
    e(f"s_mov_b32 s{S_OUT+3}, 0x20000")
    e(f"s_mul_i32 s{S_ST}, s7, {16*896}")
    e(f"s_add_u32 s{S_ST}, s{S_ST}, s6")
    e(f"s_mul_i32 s{S_WG}, s{S_WAVE}, {32*896}")
    e(f"s_lshl_b32 s{S_WLD}, s{S_WAVE}, 12")
    e(f"v_lshrrev_b32 v10, 3, v{V_L}")
    e("v_mul_u32_u24 v10, 896, v10")
    e(f"v_bfe_u32 v11, v{V_L}, 1, 2")
    e(f"v_lshrrev_b32 v12, 4, v{V_L}")
    e("v_xor_b32 v11, v11, v12")
    e("v_lshl_add_u32 v10, v11, 5, v10")
    e(f"v_and_b32 v11, 1, v{V_L}")
    e(f"v_lshl_add_u32 v{V_DMA}, v11, 4, v10")
    e(f"v_lshlrev_b32 v{V_B}, 4, v{V_L}")
    e(f"v_and_b32 v10, 15, v{V_L}")
    e("v_mul_u32_u24 v10, 896, v10")
    e(f"v_lshl_add_u32 v{V_O}, v12, 3, v10")
    e(f"v_bfe_u32 v10, v{V_L}, 2, 2")
    e("v_lshl_add_u32 v10, v12, 2, v10")
    e("v_bfe_u32 v11, v10, 1, 2")
    e("v_lshlrev_b32 v10, 7, v10")
    e("v_lshl_add_u32 v10, v11, 5, v10")
    e(f"v_and_b32 v11, 3, v{V_L}")
    e("v_lshl_add_u32 v10, v11, 3, v10")
    for u in range(4):
        e(f"v_xor_b32 v{V_A+u}, {u<<5}, v10")
    st = {"base": 0}
    NB = int(os.environ.get("NB", "6"))
    PD = int(os.environ.get("PD", "7"))
    if ROT & 2:
        e("s_and_b32 s78, s3, 31")
    else:
        e("s_mov_b32 s78, 0")

    def dma_ops(cc):
        slot = cc % NS
        pre = [f"s_add_u32 s80, s78, {cc}", "s_and_b32 s80, s80, 31", f"s_mul_i32 s80, s80, {128*896}", f"s_add_u32 s80, s80, s{S_WG}"]
        return [(pre if jj == 0 else []) + [f"s_add_u32 m0, s{S_WLD}, {slot*16384 + jj*1024}",
                 f"s_add_u32 s{S_TT}, s80, {jj*8*896}",
                 (f"buffer_load_dwordx4 v{V_DMA}, s[{S_WO}:{S_WO+3}], s{S_TT} offen lds", f"D{cc}")] for jj in range(4)]

    def b_ops(cc):
        rs = cc % NB
        pre = [f"s_add_u32 s81, s78, {cc}", "s_and_b32 s81, s81, 31", "s_lshl_b32 s81, s81, 12"]
        return [(pre if jj == 0 else []) +
                [(f"buffer_load_dwordx4 {vr(V_BF + rs*16 + jj*4, 4)}, v{V_B}, s[{S_OS}:{S_OS+3}], s81 offen offset:{jj*1024} sc1", f"B{cc}")] for jj in range(4)]

    def emit_op(op):
        for x in op:
            if isinstance(x, tuple):
                em.vmem(x[0], x[1])
            else:
                e(x)

    for cc in range(PD):
        for op in dma_ops(cc):
            emit_op(op)
    e("s_lshl_b32 s42, s4, 2")
    e("s_mul_i32 s43, s42, 7282")
    e("s_lshr_b32 s43, s43, 16")
    e("s_add_u32 s42, s42, 3")
    e("s_mul_i32 s42, s42, 7282")
    e("s_lshr_b32 s42, s42, 16")
    e("s_lshl_b32 s42, s42, 2")
    e("s_lshl_b32 s43, s43, 2")
    e("v_mov_b32 v30, s43")
    e("v_writelane_b32 v30, s42, 1")
    e("s_mov_b32 s85, 0")
    plab = [0]

    def need(p):
        plab[0] += 1
        n = plab[0]
        e(f"s_add_u32 s83, s78, {p}")
        e("s_and_b32 s83, s83, 31")
        e("s_lshr_b32 s83, s83, 1")
        e("s_mov_b32 s86, 0")
        em.raw(f"L_pc{n}:")
        e("s_lshr_b32 s84, s85, s83")
        e("s_and_b32 s84, s84, 1")
        e(f"s_cbranch_scc1 L_pd{n}")
        e("s_mov_b64 exec, 3")
        e(f"buffer_load_dword v31, v30, s[{S_DB}:{S_DB+3}], 0 offen sc1")
        e("s_waitcnt vmcnt(0)")
        e("s_mov_b64 exec, -1")
        e("v_readlane_b32 s84, v31, 0")
        e("v_readlane_b32 s85, v31, 1")
        e("s_and_b32 s85, s85, s84")
        e("s_sleep 1")
        e("s_add_u32 s86, s86, 1")
        e("s_cmp_lt_u32 s86, 0x400000")
        e(f"s_cbranch_scc1 L_pc{n}")
        em.raw(f"L_pd{n}:")

    e(f"s_cmp_lg_u32 s{S_WAVE}, 0")
    e("s_cbranch_scc1 L_nopoll")
    for p in range(NB):
        need(p)
    em.raw("L_nopoll:")
    e("s_barrier")
    if PROF:
        e("s_memtime s[60:61]")
        e("s_waitcnt lgkmcnt(0)")
        e("v_writelane_b32 v5, s60, 41")
    for cc in range(NB):
        for op in b_ops(cc):
            emit_op(op)
    D = 4
    total = 32 * 16
    pend = []

    def reads(G):
        cc, f = divmod(G, 16)
        ss, u = f >> 2, f & 3
        slot = cc % NS
        if f == 0:
            grp = slot >> 2
            if grp != st["base"]:
                d = (grp - st["base"]) * 65536
                for b in range(4):
                    e(f"v_add_u32 v{V_A+b}, {d & 0xffffffff}, v{V_A+b}")
                st["base"] = grp
        off = (slot & 3) * 16384 + ss * 4096
        fr = V_FR + (G % 8) * 4
        em.ds(f"T {vr(fr,2)}, v{V_A+u}, {off}", f"F{G}")
        em.ds(f"T {vr(fr+2,2)}, v{V_A+u}, {off+2048}", f"F{G}")

    def mfma(G):
        cc, f = divmod(G, 16)
        ss, u = f >> 2, f & 3
        fr = V_FR + (G % 8) * 4
        if f == 0:
            em.wait_vm(f"B{cc}")
        em.wait_lg(f"F{G}")
        d = vr(V_ACC + u * 4, 4)
        c = "0" if (cc == 0 and ss == 0) else d
        e(f"M {d}, {vr(fr,4)}, {vr(V_BF + (cc % NB)*16 + ss*4, 4)}, {c}")
        if f == 0 and cc >= 1 and cc - 1 + NB < 32:
            pend.extend(b_ops(cc - 1 + NB))

    for G in range(total + D):
        if G < total:
            cc, f = divmod(G, 16)
            if f == 0:
                if cc >= 1 and cc - 1 + NB < 32:
                    e(f"s_cmp_lg_u32 s{S_WAVE}, 0")
                    e(f"s_cbranch_scc1 L_np{cc}")
                    need(cc - 1 + NB)
                    em.raw(f"L_np{cc}:")
                em.wait_vm(f"D{cc}")
                e("s_barrier")
                if PROF:
                    e("s_memtime s[60:61]")
                    e("s_waitcnt lgkmcnt(0)")
                    em.lg = []
                    e(f"v_writelane_b32 v5, s60, {cc}")
                if cc + PD < 32:
                    pend.extend(dma_ops(cc + PD))
            reads(G)
        if G - D >= 0:
            mfma(G - D)
        if pend and (G & 1):
            emit_op(pend.pop(0))
    em.nop(9)
    for u in range(4):
        a = V_ACC + u * 4
        e(f"CV v{28+ (u%2)*2}, v{a}, v{a+1}")
        e(f"CV v{29+ (u%2)*2}, v{a+2}, v{a+3}")
        e(f"buffer_store_dwordx2 v[{28+(u%2)*2}:{29+(u%2)*2}], v{V_O}, s[{S_OUT}:{S_OUT+3}], s{S_ST} offen offset:{u*32}")
    if PROF:
        e("s_waitcnt vmcnt(0)")
        e("s_memtime s[60:61]")
        e("s_waitcnt lgkmcnt(0)")
        e("v_writelane_b32 v5, s60, 47")
        e("v_writelane_b32 v5, s62, 48")
        e("s_lshl_b32 s60, s2, 2")
        e(f"s_add_u32 s60, s60, s{S_WAVE}")
        e("s_lshl_b32 s60, s60, 8")
        e(f"s_add_u32 s60, s60, {33<<20}")
        e(f"v_lshlrev_b32 v10, 2, v{V_L}")
        e(f"s_mov_b32 s{S_OS}, s52")
        e(f"s_mov_b32 s{S_OS+1}, s53")
        e(f"s_mov_b32 s{S_OS+2}, {64<<20}")
        e(f"buffer_store_dword v5, v10, s[{S_OS}:{S_OS+3}], s60 offen")


def kd(name, vgpr, acc):
    return f""".p2align 6
.amdhsa_kernel {name}
  .amdhsa_next_free_vgpr {vgpr}
  .amdhsa_next_free_sgpr 102
  .amdhsa_accum_offset {acc}
  .amdhsa_group_segment_fixed_size 0
  .amdhsa_kernarg_size 64
  .amdhsa_user_sgpr_count 2
  .amdhsa_user_sgpr_kernarg_segment_ptr 1
  .amdhsa_system_sgpr_workgroup_id_x 1
.end_amdhsa_kernel
"""


def main():
    em = Em()
    k1(em)
    for t in range(96):
        assert (t * 4682) >> 16 == t // 14
    for t in range(144):
        assert (t * 7282) >> 16 == t // 9
    txt = HEADER + "\n".join(em.lines) + "\n"
    txt += '.section .rodata,"a"\n' + kd("standalone__mha_block_cached__near_ridge_kernel", 512, 256)
    open(OUT, "w").write(txt)
    print("wrote", OUT, len(txt), "bytes")


main()
```

```python
import math, sys, os, struct

OUT = sys.argv[1] if len(sys.argv) > 1 else "standalone__mha_block_cached__near_ridge.s"
PROF = os.environ.get("PROF", "0") == "1"
NSLOT = 9
NW0 = int(os.environ.get("NW0", "4"))
NK0 = 7 - NW0
ROT = int(os.environ.get("ROT", "2"))
FORK = int(os.environ.get("FORK", "0"))
PREF = int(os.environ.get("PREF", "1"))
PX = int(os.environ.get("PX", "4"))
DREAD = int(os.environ.get("DREAD", "5"))
KVNT = os.environ.get("KVNT", " nt")
K2NS = int(os.environ.get("K2NS", "7"))
K2NT = " nt" if os.environ.get("K2NT", "0") == "1" else ""

HEADER = f"""; Kernarg layout for this problem (64 bytes, ptrs only, base s[0:1]):
; @launch grid=(256,1,1) block=(256,1,1) lds=163840
.amdgcn_target "amdgcn-amd-amdhsa--gfx950"
.macro M d, a, b, c
v_mfma_f32_16x16x32_bf16 \\d, \\a, \\b, \\c
.endm
.macro T d, a, o
ds_read_b64_tr_b16 \\d, \\a offset:\\o
.endm
.macro R d, a, o
ds_read_b128 \\d, \\a offset:\\o
.endm
.macro WL n
s_waitcnt lgkmcnt(\\n)
.endm
.macro CV d, a, b
v_cvt_pk_bf16_f32 \\d, \\a, \\b
.endm
.text
"""


class Em:
    def __init__(self):
        self.lines = []
        self.vm = []
        self.lg = []
        self.n = 0

    def e(self, s):
        self.lines.append(s)
        self.n += 1

    def raw(self, s):
        self.lines.append(s)

    def vmem(self, s, tag):
        self.e(s)
        self.vm.append(tag)

    def ds(self, s, tag):
        self.e(s)
        self.lg.append(tag)

    def wait_vm(self, tag):
        idx = max([i for i, t in enumerate(self.vm) if t == tag], default=-1)
        if idx < 0:
            return
        n = min(len(self.vm) - 1 - idx, 63)
        self.e(f"s_waitcnt vmcnt({n})")
        self.vm = self.vm[len(self.vm) - n:] if n > 0 else []

    def wait_lg(self, tag):
        idx = max([i for i, t in enumerate(self.lg) if t == tag], default=-1)
        if idx < 0:
            return
        n = min(len(self.lg) - 1 - idx, 15)
        self.e(f"WL {n}")
        self.lg = self.lg[len(self.lg) - n:] if n > 0 else []

    def nop(self, states):
        while states > 0:
            k = min(states, 16)
            self.e(f"s_nop {k-1}")
            self.n += k - 1
            states -= k


def vr(b, n=1):
    return f"v{b}" if n == 1 else f"v[{b}:{b+n-1}]"


def ar(b, n=1):
    return f"a{b}" if n == 1 else f"a[{b}:{b+n-1}]"


S_X, S_K, S_V, S_W, S_O = 8, 12, 16, 20, 24
S_WAVE = 28
S_C = 29
S_XQ = 32
S_OQ = 36
S_T = 40
S_T2 = 41
V_LANE = 1
V_ADDR = 2
V_D = 10
V_XO = 14
V_ST = 15
V_SACC = 16
V_M = 40
V_L = 43
V_MC = 46
V_T = 50
V_BIG = 64
A_FR = 192


V_Q8 = 192
V_S8 = 208
V_P8 = 212
V_ONE = 220
V_SC = 224
V_M8, V_MC8 = 225, 226
V_SCW = 227
V_T2 = 228
V_QX = 244
V_XR = 10
V_X8 = 12
XB = 7 * 16384
A_XF = 144
V_A16 = 16
V_SACC2 = 32
V_EP = 228
A_O8 = 128
A_L8 = 144
SCR = 9 * 16384
S_WL, S_KL = 54, 55
S_XW = 56
S_OWN = 66


def k1(em):
    e = em.e
    global V_M, V_L, V_MC
    V_M, V_L, V_MC = 2, 4, 6
    V_WD, V_KD = 8, 9
    em.raw(".globl standalone__mha_block_cached__near_ridge_kernel\n.p2align 8\n.type standalone__mha_block_cached__near_ridge_kernel,@function\nstandalone__mha_block_cached__near_ridge_kernel:")
    e("s_cmp_ge_u32 s2, 256")
    e("s_cbranch_scc1 L_k1_exit")
    if PROF:
        e("s_memtime s[62:63]")
        e("s_memrealtime s[64:65]")
    e("s_load_dwordx8 s[44:51], s[0:1], 0")
    e("s_load_dwordx2 s[52:53], s[0:1], 56")
    if PREF:
        e("s_getpc_b64 s[76:77]")
        e("s_lshr_b32 s4, s2, 3")
        e("s_cmp_ge_u32 s4, 18")
        e("s_cbranch_scc1 L_nopref")
        e("s_lshl_b32 s4, s4, 12")
        e("v_lshlrev_b32 v2, 4, v0")
        e("v_add_u32 v2, s4, v2")
        e("global_load_dwordx4 v[4:7], v2, s[76:77]")
        em.raw("L_nopref:")
    e("s_and_b32 s3, s2, 7")
    e("s_lshr_b32 s4, s2, 3")
    MAPH = int(os.environ.get("MAPH", "4"))
    lg = {4: 2, 8: 3, 16: 4}[MAPH]
    e(f"s_and_b32 s5, s3, {16 // MAPH - 1}")
    e(f"s_lshl_b32 s5, s5, {lg}")
    e(f"s_and_b32 s6, s4, {MAPH - 1}")
    e("s_add_u32 s5, s5, s6")
    e(f"s_lshr_b32 s6, s3, {4 - lg}")
    e(f"s_lshl_b32 s6, s6, {5 - lg}")
    e(f"s_lshr_b32 s7, s4, {lg}")
    e("s_add_u32 s6, s6, s7")
    e(f"v_and_b32 v{V_LANE}, 63, v0")
    e("v_lshrrev_b32 v2, 6, v0")
    e("s_nop 0")
    e(f"v_readfirstlane_b32 s{S_WAVE}, v2")
    e(f"s_mov_b32 s{S_C}, {hex(struct.unpack('<I', struct.pack('<f', math.log2(math.e)/16.0))[0])}")
    e("s_waitcnt lgkmcnt(0)")
    e("s_mul_i32 s7, s6, 129024")
    e(f"s_add_u32 s{S_X}, s44, s7")
    e(f"s_addc_u32 s{S_X+1}, s45, 0")
    e(f"s_mov_b32 s{S_X+2}, 129024")
    e(f"s_mov_b32 s{S_X+3}, 0x20000")
    e("s_lshl_b32 s7, s6, 4")
    e("s_add_u32 s7, s7, s5")
    e("s_lshl_b32 s7, s7, 18")
    e(f"s_add_u32 s{S_K}, s46, s7")
    e(f"s_addc_u32 s{S_K+1}, s47, 0")
    e(f"s_mov_b32 s{S_K+2}, 262144")
    e(f"s_mov_b32 s{S_K+3}, 0x20000")
    e(f"s_add_u32 s{S_V}, s48, s7")
    e(f"s_addc_u32 s{S_V+1}, s49, 0")
    e(f"s_mov_b32 s{S_V+2}, 262144")
    e(f"s_mov_b32 s{S_V+3}, 0x20000")
    e("s_lshl_b32 s7, s5, 9")
    e(f"s_add_u32 s{S_W}, s50, s7")
    e(f"s_addc_u32 s{S_W+1}, s51, 0")
    e(f"s_mov_b32 s{S_W+2}, {447*8192+512}")
    e(f"s_mov_b32 s{S_W+3}, 0x20000")
    e(f"s_mov_b32 s{S_O}, s52")
    e(f"s_mov_b32 s{S_O+1}, s53")
    e(f"s_mov_b32 s{S_O+2}, {144*128*1024}")
    e(f"s_mov_b32 s{S_O+3}, 0x20000")
    e(f"s_lshl_b32 s7, s{S_WAVE}, 1")
    for qt in range(3):
        if qt < 2:
            e(f"s_add_u32 s42, s7, {qt}")
        else:
            e("s_mov_b32 s42, 8")
        e(f"s_mul_i32 s{S_XQ+qt}, s42, 14336")
        e("s_mul_i32 s43, s6, 9")
        e("s_add_u32 s43, s43, s42")
        e("s_lshl_b32 s43, s43, 7")
        e("s_lshl_b32 s42, s5, 3")
        e("s_add_u32 s43, s43, s42")
        e(f"s_lshl_b32 s{S_OQ+qt}, s43, 10")
    e("s_mul_i32 s78, s4, 3")
    e("s_mul_i32 s42, s78, 4682")
    e("s_lshr_b32 s42, s42, 16")
    e("s_mul_i32 s42, s42, 14")
    e("s_sub_u32 s78, s78, s42")
    if not (ROT & 1):
        e("s_mov_b32 s78, 0")
    for a in range(4):
        e(f"s_xor_b32 s42, s{S_WAVE}, {a}")
        e(f"s_lshl_b32 s{S_XW+a}, s42, 11")
    for k in range(4):
        e(f"s_cmp_eq_u32 s{S_WAVE}, {k}")
        e(f"s_cselect_b64 s[{S_OWN+2*k}:{S_OWN+2*k+1}], -1, 0")
    t0, t1, t2, t3 = V_T, V_T + 1, V_T + 2, V_T + 3
    e(f"v_lshlrev_b32 v{V_ST}, 4, v{V_LANE}")
    e(f"s_lshl_b32 s42, s{S_WAVE}, 1")
    e(f"s_lshl_b32 s{S_KL}, s{S_WAVE}, 10")
    e(f"v_lshrrev_b32 v{t0}, 5, v{V_LANE}")
    e(f"v_add_u32 v{t0}, s42, v{t0}")
    e(f"v_and_b32 v{t1}, 31, v{V_LANE}")
    e(f"v_lshlrev_b32 v{t2}, 1, v{t0}")
    e(f"v_xor_b32 v{t2}, v{t1}, v{t2}")
    e(f"v_lshlrev_b32 v{t2}, 4, v{t2}")
    e(f"v_lshl_add_u32 v{V_KD}, v{t0}, 9, v{t2}")
    e(f"s_and_b32 s42, s{S_WAVE}, 1")
    e("s_lshl_b32 s42, s42, 1")
    e(f"s_lshr_b32 s43, s{S_WAVE}, 1")
    e("s_lshl_b32 s43, s43, 3")
    e("s_add_u32 s42, s42, s43")
    e(f"s_lshl_b32 s{S_WL}, s42, 9")
    e(f"v_lshrrev_b32 v{t0}, 5, v{V_LANE}")
    e(f"v_add_u32 v{t0}, s42, v{t0}")
    e(f"v_and_b32 v{t2}, 3, v{t0}")
    e(f"v_bfe_u32 v{t3}, v{t0}, 3, 1")
    e(f"v_lshl_add_u32 v{t2}, v{t3}, 2, v{t2}")
    e(f"v_lshlrev_b32 v{t2}, 1, v{t2}")
    e(f"v_xor_b32 v{t2}, v{t1}, v{t2}")
    e(f"v_lshlrev_b32 v{t2}, 4, v{t2}")
    e(f"v_lshl_add_u32 v{V_WD}, v{t0}, 13, v{t2}")
    e(f"s_and_b32 s42, s{S_WAVE}, 1")
    e("s_lshl_b32 s42, s42, 2")
    e(f"v_lshrrev_b32 v{t0}, 4, v{V_LANE}")
    e(f"v_or_b32 v{t0}, s42, v{t0}")
    e(f"v_and_b32 v{t1}, 7, v{V_LANE}")
    e(f"v_xor_b32 v{t0}, v{t0}, v{t1}")
    e(f"v_lshrrev_b32 v{t1}, 3, v{V_LANE}")
    e(f"v_mul_u32_u24 v{t1}, 896, v{t1}")
    e(f"v_lshl_add_u32 v{V_XO}, v{t0}, 4, v{t1}")
    e(f"v_and_b32 v{t0}, 15, v{V_LANE}")
    e(f"v_lshrrev_b32 v{t1}, 4, v{V_LANE}")
    e(f"v_bfe_u32 v{t2}, v{t0}, 1, 3")
    e(f"v_xor_b32 v{t1}, v{t1}, v{t2}")
    e(f"v_lshlrev_b32 v{t1}, 4, v{t1}")
    e(f"v_lshl_add_u32 v{t1}, v{t0}, 7, v{t1}")
    e(f"v_add_u32 v{V_X8}, {XB + 8*2048}, v{t1}")
    e(f"v_xor_b32 v{V_X8+1}, 64, v{V_X8}")
    e(f"s_lshl_b32 s42, s{S_WAVE}, 12")
    e(f"s_add_u32 s42, s42, {XB}")
    e(f"v_add_u32 v{V_XR}, s42, v{t1}")
    e(f"v_xor_b32 v{V_XR+1}, 64, v{V_XR}")
    e(f"s_mul_i32 s89, s{S_WAVE}, {8*896}")
    e(f"s_lshl_b32 s90, s{S_WAVE}, 10")
    e(f"s_cmp_lt_u32 s{S_WAVE}, 2")
    e(f"s_cselect_b32 s91, s90, 60000")
    e(f"v_lshlrev_b32 v{V_SC}, 4, v{V_LANE}")
    e(f"v_add_u32 v{V_SC}, {SCR}, v{V_SC}")
    for a in range(4):
        e(f"v_add_u32 v{V_QX+a}, s{S_XW+a}, v{V_SC}")
    for j in range(4):
        e(f"v_mov_b32 v{V_ONE+j}, 0x3f803f80")

    NT = 2
    chunks = [("W", i) for i in range(14)] + [("K", i) for i in range(16)] + [("V", i) for i in range(16)]
    nsteps = len(chunks)
    slot_of = {}
    init = [("W", i) for i in range(NW0)] + [("K", i) for i in range(NK0)]
    for s_, c in enumerate(init):
        slot_of[c] = s_
    later = [c for c in chunks if c not in slot_of]
    dq = []

    def kc(c, dst):
        e(f"s_add_u32 s{dst}, s78, {c}")
        e(f"s_cmp_ge_u32 s{dst}, 14")
        e(f"s_cselect_b32 s79, 14, 0")
        e(f"s_sub_u32 s{dst}, s{dst}, s79")

    def emit_dma(item):
        if item[0] == "X":
            _, p, n = item
            base = XB + (p & 1) * 18432 + n * 4096
            e(f"s_add_u32 m0, s{91 if n == 4 else 90}, {base}")
            e(f"s_add_u32 s{S_T}, s89, {n*32*896 + p*128}")
            em.vmem(f"buffer_load_dwordx4 v{V_XO}, s[{S_X}:{S_X+3}], s{S_T} offen lds", f"X{p}")
            return
        sl, lds, goff, vo, srd, nt, tag = item
        if srd == S_W:
            ci, jr = goff
            if jr == 0:
                kc(ci, 80)
                e("s_lshl_b32 s80, s80, 18")
            e(f"s_add_u32 m0, s{sl}, {lds}")
            e(f"s_add_u32 s{S_T}, s80, {jr*8192}")
        else:
            e(f"s_add_u32 m0, s{sl}, {lds}")
            e(f"s_mov_b32 s{S_T}, {goff}")
        em.vmem(f"buffer_load_dwordx4 v{vo}, s[{srd}:{srd+3}], s{S_T} offen{nt} lds", tag)

    def issue(chunk, defer=False):
        kind, ci = chunk
        slot = slot_of[chunk]
        tag = f"{kind}{ci}"
        its = []
        if kind == "W":
            for jr in (0, 4, 16, 20):
                its.append((S_WL, slot * 16384 + jr * 512, (ci, jr), V_WD, S_W, "", tag))
        else:
            srd = S_K if kind == "K" else S_V
            for jj in range(4):
                its.append((S_KL, slot * 16384 + jj * 4096, ci * 16384 + jj * 4096, V_KD, srd, KVNT, tag))
        for it in its:
            if defer:
                dq.append(it)
            else:
                emit_dma(it)

    def xdma(p, defer=True):
        if p >= 7:
            return
        for n in range(5):
            it = ("X", p, n)
            if defer:
                dq.append(it)
            else:
                emit_dma(it)

    def XF(qt, c):
        return A_XF + ((c >> 1) & 1) * 24 + (c & 1) * 12 + qt * 4

    def xreads(p):
        off = (p & 1) * 18432
        for ks in range(2):
            c = 2 * p + ks
            em.ds(f"R {ar(XF(0,c),4)}, v{V_XR+ks}, {off}", f"xr{c}")
            em.ds(f"R {ar(XF(1,c),4)}, v{V_XR+ks}, {off+2048}", f"xr{c}")
            em.ds(f"R {ar(XF(2,c),4)}, v{V_X8+ks}, {off}", f"xr{c}")

    for c in range(NW0):
        if c < 2:
            xdma(c, False)
        issue(("W", c))
    KD = int(os.environ.get("KD", "0"))
    if KD == 0:
        issue(("K", 0))
    st = {"base": 0}

    def set_addr(kind):
        e(f"v_lshrrev_b32 v{t0}, 4, v{V_LANE}")
        e(f"v_bfe_u32 v{t1}, v{V_LANE}, 2, 2")
        e(f"v_and_b32 v{t2}, 3, v{V_LANE}")
        if kind == "W":
            e(f"v_lshl_add_u32 v{t3}, v{t0}, 3, v{t1}")
            e(f"v_lshlrev_b32 v{t3}, 9, v{t3}")
            e(f"v_and_b32 v{t0}, 1, v{t0}")
            e(f"v_lshl_add_u32 v{t0}, v{t0}, 2, v{t1}")
            e(f"v_lshl_add_u32 v{t3}, v{t0}, 5, v{t3}")
            e(f"v_lshl_add_u32 v{t3}, v{t2}, 3, v{t3}")
            nb, sh = 16, 5
        elif kind == "V":
            e(f"v_lshl_add_u32 v{t0}, v{t0}, 2, v{t1}")
            e(f"v_lshlrev_b32 v{t3}, 9, v{t0}")
            e(f"v_and_b32 v{t0}, 7, v{t0}")
            e(f"v_lshl_add_u32 v{t3}, v{t0}, 5, v{t3}")
            e(f"v_lshl_add_u32 v{t3}, v{t2}, 3, v{t3}")
            nb, sh = 16, 5
        else:
            e(f"v_and_b32 v{t1}, 15, v{V_LANE}")
            e(f"v_lshlrev_b32 v{t3}, 9, v{t1}")
            e(f"v_and_b32 v{t1}, 7, v{t1}")
            e(f"v_lshlrev_b32 v{t1}, 1, v{t1}")
            e(f"v_xor_b32 v{t1}, v{t0}, v{t1}")
            e(f"v_lshl_add_u32 v{t3}, v{t1}, 4, v{t3}")
            nb, sh = 8, 6
        e(f"s_lshl_b32 s42, s{S_WAVE}, 7")
        e(f"v_xor_b32 v{t3}, s42, v{t3}")
        for b in range(nb):
            e(f"v_xor_b32 v{V_A16+b}, {b << sh}, v{t3}")
        st["base"] = 0
        st["nb"] = nb

    def set_base(grp):
        if grp != st["base"]:
            d = (grp - st["base"]) * 65536
            for b in range(st["nb"]):
                e(f"v_add_u32 v{V_A16+b}, {d & 0xffffffff}, v{V_A16+b}")
            st["base"] = grp

    def frag_reg(G):
        return A_FR + (G % 16) * 4

    def reads(G):
        i, f = divmod(G, 16)
        kind, ci = chunks[i]
        slot = slot_of[chunks[i]]
        sb = (slot & 3) * 16384
        fr = frag_reg(G)
        tag = f"F{G}"
        if kind == "K":
            kt, ks = f >> 3, f & 7
            em.ds(f"R {ar(fr,4)}, v{V_A16+ks}, {sb + kt*8192}", tag)
        else:
            second = 2048 if kind == "W" else 8192
            em.ds(f"T {ar(fr,2)}, v{V_A16+f}, {sb}", tag)
            em.ds(f"T {ar(fr+2,2)}, v{V_A16+f}, {sb + second}", tag)

    def big(qt, idx):
        return V_BIG + (qt * 16 + idx) * 4

    def sacc(kt, qt):
        return V_SACC2 + (kt * 2 + qt) * 4

    def QF(qt, s):
        return (qt * 14 + s) * 4

    def s8reg(ci):
        return V_Q8 + (ci >> 1) * 2

    q = []
    lab = [0]

    def push(instrs, after=None):
        for k, s in enumerate(instrs):
            q.append((after if k == 0 else None, s))

    def drain(cnt):
        k = 0
        while q and k < cnt:
            rdy, s = q[0]
            if rdy is not None and em.n < rdy:
                return
            q.pop(0)
            if isinstance(s, tuple):
                if s[0] == "nop":
                    em.nop(s[1])
                elif s[0] == "st":
                    em.vmem(s[1], "st")
                elif s[0] == "ds":
                    em.ds(s[1], s[2])
                elif s[0] == "blk":
                    for x in s[1]:
                        if x.endswith(":"):
                            em.raw(x)
                        else:
                            e(x)
            else:
                e(s)
            k += 1

    def drain_all():
        while q:
            rdy, s = q[0]
            if rdy is not None and em.n < rdy:
                em.nop(rdy - em.n)
            drain(1)

    def s_items(ci, kt):
        out = []
        for qt in range(NT):
            a, m, dst = sacc(kt, qt), V_M + qt, big(qt, ci) + 2 * kt
            if ci == 0 and kt == 0:
                out.append(f"v_max_f32 v{m}, v{a}, v{a+1}")
            else:
                out.append(f"v_max3_f32 v{m}, v{a}, v{a+1}, v{m}")
            out.append(f"CV v{dst}, v{a}, v{a+1}")
            out.append(f"v_max3_f32 v{m}, v{a+2}, v{a+3}, v{m}")
            out.append(f"CV v{dst+1}, v{a+2}, v{a+3}")
        k = 2 * (ci & 1) + kt
        lab[0] += 1
        L = f"Ls8_{lab[0]}"
        a, m, dst = V_S8, V_M8, s8reg(ci)
        blk = [f"s_mov_b64 vcc, s[{S_OWN+2*k}:{S_OWN+2*k+1}]", f"s_cbranch_vccz {L}",
               f"v_max3_f32 v{m}, v{a}, v{a+1}, v{m}", f"CV v{dst}, v{a}, v{a+1}",
               f"v_max3_f32 v{m}, v{a+2}, v{a+3}, v{m}", f"CV v{dst+1}, v{a+2}, v{a+3}", f"{L}:"]
        out.append(("blk", blk))
        return out

    def qconv_items(s):
        out = []
        tl = [(V_T + qt * 4, big(qt, 2 * s), big(qt, 2 * s + 1), qt) for qt in range(NT)]
        if s < 2:
            tl.append((V_T + 8, V_Q8 + (2 * s) * 4, V_Q8 + (2 * s + 1) * 4, 8))
        for t, p0, p1, qt in tl:
            out += [f"CV v{t}, v{p0}, v{p0+1}", f"CV v{t+1}, v{p0+2}, v{p0+3}",
                    f"CV v{t+2}, v{p1}, v{p1+1}", f"CV v{t+3}, v{p1+2}, v{p1+3}"]
        out.append(("nop", 2))
        for t, *_ in tl:
            out += [f"v_permlane32_swap_b32 v{t}, v{t+2}", f"v_permlane32_swap_b32 v{t+1}, v{t+3}"]
        out.append(("nop", 2))
        for t, *_ in tl:
            out += [f"v_permlane16_swap_b32 v{t}, v{t+2}", f"v_permlane16_swap_b32 v{t+1}, v{t+3}"]
        out.append(("nop", 1))
        for t, p0, p1, qt in tl:
            if qt == 8:
                out.append(("ds", f"ds_write_b128 v{V_QX}, v[{t}:{t+3}] offset:{s*1024}", "q8w"))
            else:
                for j in range(4):
                    out.append(f"v_accvgpr_write_b32 a{QF(qt, s)+j}, v{t+j}")
        return out

    def xreduce(op, regs):
        out = []
        for sw in ("32", "16"):
            for k, r in enumerate(regs):
                out.append(f"v_mov_b32 v{V_T+k}, v{r}")
            out.append(("nop", 2))
            for k, r in enumerate(regs):
                out.append(f"v_permlane{sw}_swap_b32 v{V_T+k}, v{r}")
            out.append(("nop", 1))
            for k, r in enumerate(regs):
                out.append(f"v_{op}_f32 v{r}, v{r}, v{V_T+k}")
        return out

    def p_group(regs):
        n = len(regs)
        T = [(V_T2 + 2 * k, V_T2 + 2 * k + 1) for k in range(n)]
        o = []
        for (R, mc, l), (ta, tb) in zip(regs, T):
            o += [f"v_lshlrev_b32 v{ta}, 16, v{R}", f"v_and_b32 v{tb}, 0xffff0000, v{R}"]
        for (R, mc, l), (ta, tb) in zip(regs, T):
            o += [f"v_fma_f32 v{ta}, v{ta}, s{S_C}, -v{mc}", f"v_fma_f32 v{tb}, v{tb}, s{S_C}, -v{mc}"]
        for (R, mc, l), (ta, tb) in zip(regs, T):
            o += [f"v_exp_f32 v{ta}, v{ta}", f"v_exp_f32 v{tb}, v{tb}"]
        for which in (0, 1):
            for (R, mc, l), tt in zip(regs, T):
                if l is not None:
                    o.append(f"v_add_f32 v{l}, v{l}, v{tt[which]}")
        for (R, mc, l), (ta, tb) in zip(regs, T):
            o.append(f"CV v{R}, v{ta}, v{tb}")
        return o

    def p_items(ci):
        regs = [(big(qt, ci) + j, V_MC + qt, V_L + qt) for j in range(4) for qt in range(NT)]
        return p_group(regs)

    epi_k = [0]

    def epi_block(areg, lreg, soff, sp):
        out = []
        tb = V_EP + (epi_k[0] % 2) * 12
        epi_k[0] += 1
        for j in range(8):
            out.append(f"v_accvgpr_read_b32 v{tb+j}, a{areg+j}")
        for j in range(8):
            out.append(f"v_mul_f32 v{tb+j}, v{tb+j}, v{lreg}")
        for j in range(4):
            out.append(f"CV v{tb+8+j}, v{tb+2*j}, v{tb+2*j+1}")
        out.append(f"s_add_u32 s{S_T2}, s{soff}, s{S_XW + (sp>>1)}")
        out.append(("st", f"buffer_store_dwordx4 v[{tb+8}:{tb+11}], v{V_ST}, s[{S_O}:{S_O+3}], s{S_T2} offen offset:{(sp&1)*1024} sc1"))
        return out

    def epi_items(s):
        out = []
        for qt in range(NT):
            out += epi_block((qt * 16 + 2 * s) * 4, V_L + qt, S_OQ + qt, s)
        return out

    def transition_q8():
        drain_all()
        e(f"v_mov_b32 v{V_M8}, 0xff800000")
        em.wait_lg("q8w")
        e("s_barrier")
        for s in range(8):
            em.ds(f"R {ar(QF(2, s),4)}, v{V_QX + (s>>1)}, {(s&1)*1024}", "q8r")
        em.nop(2)

    def transition_sm():
        drain_all()
        push(xreduce("max", [V_M, V_M + 1, V_M8]))
        drain_all()
        e(f"v_and_b32 v{t0}, 15, v{V_LANE}")
        e(f"v_lshlrev_b32 v{t0}, 2, v{t0}")
        e(f"v_add_u32 v{t0}, {SCR}, v{t0}")
        e(f"s_lshl_b32 s42, s{S_WAVE}, 6")
        e(f"v_add_u32 v{t1}, s42, v{t0}")
        em.ds(f"ds_write_b32 v{t1}, v{V_M8}", "m8w")
        for qt in range(NT):
            e(f"v_mul_f32 v{V_MC+qt}, s{S_C}, v{V_M+qt}")
            e(f"v_mov_b32 v{V_L+qt}, 0")
        e(f"s_lshr_b32 s42, s{S_WAVE}, 1")
        e("s_lshl_b32 s42, s42, 10")
        e(f"s_and_b32 s43, s{S_WAVE}, 1")
        e("s_lshl_b32 s43, s43, 3")
        e("s_add_u32 s42, s42, s43")
        e(f"v_add_u32 v{V_SCW}, s42, v{V_SC}")
        em.wait_lg("m8w")
        e("s_barrier")
        em.ds(f"ds_read2_b32 v[{t2}:{t3}], v{t0} offset0:0 offset1:16", "m8r")
        em.ds(f"ds_read2_b32 v[{t3+1}:{t3+2}], v{t0} offset0:32 offset1:48", "m8r")
        for s in p_items(0):
            e(s)
        em.wait_lg("m8r")
        e("s_barrier")
        e(f"v_max3_f32 v{V_M8}, v{t2}, v{t3}, v{t3+1}")
        e(f"v_max_f32 v{V_M8}, v{V_M8}, v{t3+2}")
        e(f"v_mul_f32 v{V_MC8}, s{S_C}, v{V_M8}")
        for h in range(0, 8, 4):
            regs = [(V_Q8 + 2 * j + k, V_MC8, None) for j in range(h, h + 4) for k in range(2)]
            for s in p_group(regs):
                e(s)
        for j in range(8):
            em.ds(f"ds_write_b64 v{V_SCW}, v[{V_Q8+2*j}:{V_Q8+2*j+1}] offset:{j*2048}", "p8w")
        em.wait_lg("p8w")
        e("s_barrier")
        em.ds(f"R {vr(V_P8,4)}, v{V_SC}, 0", "P8_0")
        em.nop(2)

    def mfmas(G):
        i, f = divmod(G, 16)
        kind, ci = chunks[i]
        fr = frag_reg(G)
        if kind == "V" and ci == 0 and f == 0:
            transition_sm()
        if kind == "W" and f == 0:
            em.wait_lg(f"xr{ci}")
        if kind == "V" and f == 0 and ci > 0:
            drain_all()
            em.nop(2)
        em.wait_lg(f"F{G}")
        per = {"W": 3, "K": 2, "V": 3}[kind]
        for qt in range(NT):
            if kind == "W":
                d = vr(big(qt, f), 4)
                c = "0" if ci == 0 else d
                e(f"M {d}, {ar(fr,4)}, {ar(XF(qt,ci),4)}, {c}")
            elif kind == "K":
                kt, ks = f >> 3, f & 7
                if ks == 0:
                    assert not any(isinstance(x[1], str) and f"v{sacc(kt,qt)}," in x[1] for x in q), "pending S items"
                d = vr(sacc(kt, qt), 4)
                c = "0" if ks == 0 else d
                e(f"M {d}, {ar(fr,4)}, {ar(QF(qt,ks),4)}, {c}")
            else:
                d = ar((qt * 16 + f) * 4, 4)
                c = "0" if ci == 0 else d
                e(f"M {d}, {ar(fr,4)}, {vr(big(qt,ci),4)}, {c}")
            drain(per)
        if kind == "W" and f < 4:
            d = vr(V_Q8 + f * 4, 4)
            c = "0" if ci == 0 else d
            e(f"M {d}, {ar(fr,4)}, {ar(XF(2,ci),4)}, {c}")
            drain(per)
        elif kind == "K":
            kt, ks = f >> 3, f & 7
            if ks == 0:
                while any(isinstance(x[1], tuple) and x[1][0] == "blk" for x in q):
                    rdy, _ = q[0]
                    if rdy is not None and em.n < rdy:
                        em.nop(rdy - em.n)
                    drain(1)
            d = vr(V_S8, 4)
            c = "0" if ks == 0 else d
            if os.environ.get("ALLM", "1") == "1":
                e(f"M {d}, {ar(fr,4)}, {ar(QF(2,ks),4)}, {c}")
                drain(per)
            elif not FORK:
                k = 2 * (ci & 1) + kt
                lab[0] += 1
                L = f"Lk8_{lab[0]}"
                e(f"s_mov_b64 vcc, s[{S_OWN+2*k}:{S_OWN+2*k+1}]")
                e(f"s_cbranch_vccz {L}")
                e(f"M {d}, {ar(fr,4)}, {ar(QF(2,ks),4)}, {c}")
                em.raw(f"{L}:")
            elif st.get("extra"):
                e(f"M {d}, {ar(fr,4)}, {ar(QF(2,ks),4)}, {c}")
                em.n -= 1
        elif kind == "V":
            p8 = V_P8 + (ci & 1) * 4
            if f == 0 and ci + 1 < 16:
                em.ds(f"R {vr(V_P8 + ((ci+1)&1)*4, 4)}, v{V_SC}, {(ci+1)*1024}", f"P8_{ci+1}")
            if f < 4:
                em.wait_lg(f"P8_{ci}")
                d = ar(A_O8 + f * 4, 4)
                c = "0" if ci == 0 else d
                e(f"M {d}, {ar(fr,4)}, {vr(p8,4)}, {c}")
                drain(per)
                if f == 3:
                    d = ar(A_L8, 4)
                    c = "0" if ci == 0 else d
                    e(f"M {d}, {vr(V_ONE,4)}, {vr(p8,4)}, {c}")
                    drain(per)
        if kind == "W" and ci == 13 and (f & 1):
            push(qconv_items(f >> 1), after=em.n + 9)
        if kind == "K" and (f & 7) == 7:
            push(s_items(ci, f >> 3), after=em.n + 13)
        if kind == "V":
            if f == 0 and ci + 1 < 16:
                push(p_items(ci + 1))
            if ci == 15:
                if f == 0:
                    push(xreduce("add", [V_L, V_L + 1]))
                    push([f"v_rcp_f32 v{V_L+qt}, v{V_L+qt}" for qt in range(NT)])
                    push([("nop", 1)])
                if f == 5:
                    push([f"v_accvgpr_read_b32 v{V_M8}, a{A_L8}", f"v_rcp_f32 v{V_M8}, v{V_M8}", ("nop", 1)], after=em.n + 9)
                    for k in range(2):
                        push(epi_block(A_O8 + k * 8, V_M8, S_OQ + 2, k))
                if f & 1:
                    push(epi_items(f >> 1), after=em.n + 9)

    total = nsteps * 16
    st["li"] = 0

    def body(G):
        if G < total:
            i, f = divmod(G, 16)
            if f == 0:
                kind, ci = chunks[i]
                em.wait_vm(f"{kind}{ci}")
                if kind == "W" and (ci & 1) == 0:
                    em.wait_vm(f"X{ci >> 1}")
                e("s_barrier")
                if PROF:
                    e("s_memtime s[60:61]")
                    e("s_waitcnt lgkmcnt(0)")
                    em.lg = []
                    e(f"v_writelane_b32 v49, s60, {i}")
                while dq:
                    emit_dma(dq.pop(0))
                if kind == "W" and (ci & 1) == 0:
                    xreads(ci >> 1)
                    if ci >= 2:
                        xdma((ci >> 1) + 1)
                frees = []
                if i >= 2:
                    frees.append(slot_of[chunks[i - 2]])
                if i == 14:
                    frees += [7, 8]
                for fs_ in frees:
                    if st["li"] < len(later):
                        c = later[st["li"]]
                        st["li"] += 1
                        slot_of[c] = fs_
                        issue(c, True)
                if KD == 0:
                    if i + 1 < NK0:
                        issue(("K", i + 1), True)
                elif KD - 1 <= i < KD - 1 + NK0:
                    issue(("K", i - KD + 1), True)
                if i == 0 or chunks[i - 1][0] != kind:
                    drain_all()
                    set_addr(kind)
                set_base(slot_of[chunks[i]] >> 2)
            reads(G)
        m = G - DREAD
        if m >= 0:
            mfmas(m)
        FS = int(os.environ.get("FS", "35"))
        if PROF and FS * 16 <= G < FS * 16 + 24:
            e("s_memtime s[60:61]")
            e("s_waitcnt lgkmcnt(0)")
            em.lg = []
            e(f"v_writelane_b32 v48, s60, {2*(G - FS*16)}")
        if dq:
            emit_dma(dq.pop(0))
        if PROF and FS * 16 <= G < FS * 16 + 24:
            e("s_memtime s[60:61]")
            e("s_waitcnt lgkmcnt(0)")
            em.lg = []
            e(f"v_writelane_b32 v48, s60, {2*(G - FS*16)+1}")

    import copy
    G = 0
    while G < total + DREAD:
        m = G - DREAD
        if not FORK and m == 14 * 16:
            transition_q8()
            em.wait_lg("q8r")
        if FORK and m >= 0 and chunks[m // 16][0] == "K" and (m & 7) == 0:
            ci, kt = chunks[m // 16][1], (m >> 3) & 1
            k = 2 * (ci & 1) + kt
            if ci == 0 and kt == 0:
                transition_q8()
                em.wait_lg("q8r")
            while any(isinstance(x[1], tuple) and x[1][0] == "blk" for x in q):
                rdy, _ = q[0]
                if rdy is not None and em.n < rdy:
                    em.nop(rdy - em.n)
                drain(1)
            lab[0] += 1
            LP, LJ = f"Lkp_{lab[0]}", f"Lkj_{lab[0]}"
            e(f"s_mov_b64 vcc, s[{S_OWN+2*k}:{S_OWN+2*k+1}]")
            e(f"s_cbranch_vccz {LP}")
            snap = (list(em.vm), list(em.lg), em.n, list(q), list(dq), dict(st), dict(slot_of), lab[0], list(epi_k))
            st["extra"] = True
            for g2 in range(G, G + 8):
                body(g2)
            e(f"s_branch {LJ}")
            em.raw(f"{LP}:")
            nA = em.n
            em.vm, em.lg, em.n = list(snap[0]), list(snap[1]), snap[2]
            q[:] = snap[3]
            dq[:] = snap[4]
            st.clear(); st.update(snap[5])
            slot_of.clear(); slot_of.update(snap[6])
            lab[0] = snap[7] + 1000
            st["extra"] = False
            for g2 in range(G, G + 8):
                body(g2)
            em.raw(f"{LJ}:")
            G += 8
        else:
            body(G)
            G += 1
    drain_all()
    if PROF:
        e("s_memtime s[60:61]")
        e("s_waitcnt lgkmcnt(0)")
        e("v_writelane_b32 v49, s60, 46")
        e("s_waitcnt vmcnt(0)")
        e("s_memtime s[60:61]")
        e("s_waitcnt lgkmcnt(0)")
        e("v_writelane_b32 v49, s60, 47")
        e("v_writelane_b32 v49, s62, 48")
        e("s_memrealtime s[60:61]")
        e("s_waitcnt lgkmcnt(0)")
        e("v_writelane_b32 v49, s60, 49")
        e("v_writelane_b32 v49, s64, 50")
        e("s_lshl_b32 s60, s2, 2")
        e(f"s_add_u32 s60, s60, s{S_WAVE}")
        e("s_lshl_b32 s60, s60, 8")
        e(f"s_add_u32 s60, s60, {32<<20}")
        e(f"v_lshlrev_b32 v50, 2, v{V_LANE}")
        e(f"s_mov_b32 s{S_O+2}, {64<<20}")
        e(f"buffer_store_dword v49, v50, s[{S_O}:{S_O+3}], s60 offen")
        e(f"s_add_u32 s60, s60, {2<<20}")
        e(f"buffer_store_dword v48, v50, s[{S_O}:{S_O+3}], s60 offen")
    tail(em)
    em.raw("L_k1_exit:")
    e("s_endpgm")


def tail(em):
    e = em.e
    NS = 9
    S_WO, S_OS, S_OUT, S_DB = 8, 12, 16, 20
    S_WG, S_WLD, S_TT, S_ST = 30, 31, 32, 33
    V_L, V_DMA, V_B, V_O, V_A = 1, 2, 3, 4, 6
    V_ACC = 12
    V_FR = 32
    V_BF = 64
    e("s_load_dwordx4 s[44:47], s[0:1], 32")
    e("s_load_dwordx2 s[48:49], s[0:1], 48")
    e("s_mov_b32 s87, s6")
    e("s_mov_b32 s88, s5")
    e("s_waitcnt vmcnt(0) lgkmcnt(0)")
    em.lg = []
    em.vm = []
    e(f"s_mov_b32 s{S_DB}, s48")
    e(f"s_mov_b32 s{S_DB+1}, s49")
    e(f"s_mov_b32 s{S_DB+2}, 256")
    e(f"s_mov_b32 s{S_DB+3}, 0x20000")

    def signal(lbl):
        e("s_barrier")
        e(f"s_cmp_lg_u32 s{S_WAVE}, 0")
        e(f"s_cbranch_scc1 {lbl}")
        e("s_lshl_b32 s42, s87, 2")
        e("v_mov_b32 v10, s42")
        e("s_lshl_b32 s42, 1, s88")
        e("v_mov_b32 v11, s42")
        e("s_mov_b64 exec, 1")
        e(f"buffer_atomic_or v11, v10, s[{S_DB}:{S_DB+3}], 0 offen sc1")
        e("s_mov_b64 exec, -1")
        em.raw(f"{lbl}:")

    signal("L_nosig1")
    if PROF:
        e("s_memtime s[60:61]")
        e("s_waitcnt lgkmcnt(0)")
        e("v_writelane_b32 v5, s60, 40")
    e("s_and_b32 s3, s2, 7")
    e("s_lshr_b32 s4, s2, 3")
    e("s_lshl_b32 s3, s3, 5")
    e("s_add_u32 s3, s3, s4")
    e("s_cmp_ge_u32 s3, 252")
    e("s_cbranch_scc1 L_k1_exit")
    e("s_mul_i32 s4, s3, 9363")
    e("s_lshr_b32 s4, s4, 16")
    e("s_mul_i32 s5, s4, 7")
    e("s_sub_u32 s5, s3, s5")
    e("s_lshl_b32 s6, s5, 7")
    e(f"s_add_u32 s{S_WO}, s44, s6")
    e(f"s_addc_u32 s{S_WO+1}, s45, 0")
    e(f"s_sub_u32 s{S_WO+2}, {4096*896}, s6")
    e(f"s_mov_b32 s{S_WO+3}, 0x20000")
    e("s_lshl_b32 s7, s4, 2")
    e(f"s_add_u32 s7, s7, s{S_WAVE}")
    e("s_lshl_b32 s25, s7, 17")
    e(f"s_add_u32 s{S_OS}, s52, s25")
    e(f"s_addc_u32 s{S_OS+1}, s53, 0")
    e(f"s_mov_b32 s{S_OS+2}, 131072")
    e(f"s_mov_b32 s{S_OS+3}, 0x20000")
    e(f"s_mov_b32 s{S_OUT}, s46")
    e(f"s_mov_b32 s{S_OUT+1}, s47")
    e(f"s_mov_b32 s{S_OUT+2}, {2304*896}")
    e(f"s_mov_b32 s{S_OUT+3}, 0x20000")
    e(f"s_mul_i32 s{S_ST}, s7, {16*896}")
    e(f"s_add_u32 s{S_ST}, s{S_ST}, s6")
    e(f"s_mul_i32 s{S_WG}, s{S_WAVE}, {32*896}")
    e(f"s_lshl_b32 s{S_WLD}, s{S_WAVE}, 12")
    e(f"v_lshrrev_b32 v10, 3, v{V_L}")
    e("v_mul_u32_u24 v10, 896, v10")
    e(f"v_bfe_u32 v11, v{V_L}, 1, 2")
    e(f"v_lshrrev_b32 v12, 4, v{V_L}")
    e("v_xor_b32 v11, v11, v12")
    e("v_lshl_add_u32 v10, v11, 5, v10")
    e(f"v_and_b32 v11, 1, v{V_L}")
    e(f"v_lshl_add_u32 v{V_DMA}, v11, 4, v10")
    e(f"v_lshlrev_b32 v{V_B}, 4, v{V_L}")
    e(f"v_and_b32 v10, 15, v{V_L}")
    e("v_mul_u32_u24 v10, 896, v10")
    e(f"v_lshl_add_u32 v{V_O}, v12, 3, v10")
    e(f"v_bfe_u32 v10, v{V_L}, 2, 2")
    e("v_lshl_add_u32 v10, v12, 2, v10")
    e("v_bfe_u32 v11, v10, 1, 2")
    e("v_lshlrev_b32 v10, 7, v10")
    e("v_lshl_add_u32 v10, v11, 5, v10")
    e(f"v_and_b32 v11, 3, v{V_L}")
    e("v_lshl_add_u32 v10, v11, 3, v10")
    for u in range(4):
        e(f"v_xor_b32 v{V_A+u}, {u<<5}, v10")
    st = {"base": 0}
    NB = int(os.environ.get("NB", "6"))
    PD = int(os.environ.get("PD", "7"))
    if ROT & 2:
        e("s_and_b32 s78, s3, 31")
    else:
        e("s_mov_b32 s78, 0")

    def dma_ops(cc):
        slot = cc % NS
        pre = [f"s_add_u32 s80, s78, {cc}", "s_and_b32 s80, s80, 31", f"s_mul_i32 s80, s80, {128*896}", f"s_add_u32 s80, s80, s{S_WG}"]
        return [(pre if jj == 0 else []) + [f"s_add_u32 m0, s{S_WLD}, {slot*16384 + jj*1024}",
                 f"s_add_u32 s{S_TT}, s80, {jj*8*896}",
                 (f"buffer_load_dwordx4 v{V_DMA}, s[{S_WO}:{S_WO+3}], s{S_TT} offen lds", f"D{cc}")] for jj in range(4)]

    def b_ops(cc):
        rs = cc % NB
        pre = [f"s_add_u32 s81, s78, {cc}", "s_and_b32 s81, s81, 31", "s_lshl_b32 s81, s81, 12"]
        return [(pre if jj == 0 else []) +
                [(f"buffer_load_dwordx4 {vr(V_BF + rs*16 + jj*4, 4)}, v{V_B}, s[{S_OS}:{S_OS+3}], s81 offen offset:{jj*1024} sc1", f"B{cc}")] for jj in range(4)]

    def emit_op(op):
        for x in op:
            if isinstance(x, tuple):
                em.vmem(x[0], x[1])
            else:
                e(x)

    I0 = int(os.environ.get("I0", "2"))
    for cc in range(I0):
        for op in dma_ops(cc):
            emit_op(op)
    nxt = {"d": I0, "b": I0}
    e("s_lshl_b32 s42, s4, 2")
    e("s_mul_i32 s43, s42, 7282")
    e("s_lshr_b32 s43, s43, 16")
    e("s_add_u32 s42, s42, 3")
    e("s_mul_i32 s42, s42, 7282")
    e("s_lshr_b32 s42, s42, 16")
    e("s_lshl_b32 s42, s42, 2")
    e("s_lshl_b32 s43, s43, 2")
    e("v_mov_b32 v30, s43")
    e("v_writelane_b32 v30, s42, 1")
    e("s_mov_b32 s85, 0")
    plab = [0]

    def need(p):
        plab[0] += 1
        n = plab[0]
        e(f"s_add_u32 s83, s78, {p}")
        e("s_and_b32 s83, s83, 31")
        e("s_lshr_b32 s83, s83, 1")
        e("s_mov_b32 s86, 0")
        em.raw(f"L_pc{n}:")
        e("s_lshr_b32 s84, s85, s83")
        e("s_and_b32 s84, s84, 1")
        e(f"s_cbranch_scc1 L_pd{n}")
        e("s_mov_b64 exec, 3")
        e(f"buffer_load_dword v31, v30, s[{S_DB}:{S_DB+3}], 0 offen sc1")
        e("s_waitcnt vmcnt(0)")
        e("s_mov_b64 exec, -1")
        e("v_readlane_b32 s84, v31, 0")
        e("v_readlane_b32 s85, v31, 1")
        e("s_and_b32 s85, s85, s84")
        e(f"s_sleep {os.environ.get('SLP', '1')}")
        e("s_add_u32 s86, s86, 1")
        e("s_cmp_lt_u32 s86, 0x400000")
        e(f"s_cbranch_scc1 L_pc{n}")
        em.raw(f"L_pd{n}:")

    e(f"s_cmp_lg_u32 s{S_WAVE}, 0")
    e("s_cbranch_scc1 L_nopoll")
    for p in range(I0):
        need(p)
    em.raw("L_nopoll:")
    e("s_barrier")
    if PROF:
        e("s_memtime s[60:61]")
        e("s_waitcnt lgkmcnt(0)")
        e("v_writelane_b32 v5, s60, 41")
    for cc in range(I0):
        for op in b_ops(cc):
            emit_op(op)
    D = 4
    total = 32 * 16
    pend = []

    def reads(G):
        cc, f = divmod(G, 16)
        ss, u = f >> 2, f & 3
        slot = cc % NS
        if f == 0:
            grp = slot >> 2
            if grp != st["base"]:
                d = (grp - st["base"]) * 65536
                for b in range(4):
                    e(f"v_add_u32 v{V_A+b}, {d & 0xffffffff}, v{V_A+b}")
                st["base"] = grp
        off = (slot & 3) * 16384 + ss * 4096
        fr = V_FR + (G % 8) * 4
        em.ds(f"T {vr(fr,2)}, v{V_A+u}, {off}", f"F{G}")
        em.ds(f"T {vr(fr+2,2)}, v{V_A+u}, {off+2048}", f"F{G}")

    def mfma(G):
        cc, f = divmod(G, 16)
        ss, u = f >> 2, f & 3
        fr = V_FR + (G % 8) * 4
        if f == 0:
            em.wait_vm(f"B{cc}")
        em.wait_lg(f"F{G}")
        d = vr(V_ACC + u * 4, 4)
        c = "0" if (cc == 0 and ss == 0) else d
        e(f"M {d}, {vr(fr,4)}, {vr(V_BF + (cc % NB)*16 + ss*4, 4)}, {c}")
        if f == 0:
            for p in st.pop("bq", []):
                pend.extend(b_ops(p))

    for G in range(total + D):
        if G < total:
            cc, f = divmod(G, 16)
            if f == 0:
                bq = []
                while len(bq) < 2 and nxt["b"] < 32 and nxt["b"] - NB <= cc - 1:
                    bq.append(nxt["b"])
                    nxt["b"] += 1
                if bq:
                    e(f"s_cmp_lg_u32 s{S_WAVE}, 0")
                    e(f"s_cbranch_scc1 L_np{cc}")
                    for p in bq:
                        need(p)
                    em.raw(f"L_np{cc}:")
                st["bq"] = bq
                em.wait_vm(f"D{cc}")
                e("s_barrier")
                if PROF:
                    e("s_memtime s[60:61]")
                    e("s_waitcnt lgkmcnt(0)")
                    em.lg = []
                    e(f"v_writelane_b32 v5, s60, {cc}")
                k_ = 0
                while k_ < 2 and nxt["d"] < 32 and nxt["d"] <= cc + PD:
                    pend.extend(dma_ops(nxt["d"]))
                    nxt["d"] += 1
                    k_ += 1
            reads(G)
        if G - D >= 0:
            mfma(G - D)
        if pend and ((G & 1) or len(pend) > 8):
            emit_op(pend.pop(0))
    em.nop(9)
    for u in range(4):
        a = V_ACC + u * 4
        e(f"CV v{28+ (u%2)*2}, v{a}, v{a+1}")
        e(f"CV v{29+ (u%2)*2}, v{a+2}, v{a+3}")
        e(f"buffer_store_dwordx2 v[{28+(u%2)*2}:{29+(u%2)*2}], v{V_O}, s[{S_OUT}:{S_OUT+3}], s{S_ST} offen offset:{u*32}")
    if PROF:
        e("s_waitcnt vmcnt(0)")
        e("s_memtime s[60:61]")
        e("s_waitcnt lgkmcnt(0)")
        e("v_writelane_b32 v5, s60, 47")
        e("v_writelane_b32 v5, s62, 48")
        e("s_lshl_b32 s60, s2, 2")
        e(f"s_add_u32 s60, s60, s{S_WAVE}")
        e("s_lshl_b32 s60, s60, 8")
        e(f"s_add_u32 s60, s60, {33<<20}")
        e(f"v_lshlrev_b32 v10, 2, v{V_L}")
        e(f"s_mov_b32 s{S_OS}, s52")
        e(f"s_mov_b32 s{S_OS+1}, s53")
        e(f"s_mov_b32 s{S_OS+2}, {64<<20}")
        e(f"buffer_store_dword v5, v10, s[{S_OS}:{S_OS+3}], s60 offen")


def kd(name, vgpr, acc):
    return f""".p2align 6
.amdhsa_kernel {name}
  .amdhsa_next_free_vgpr {vgpr}
  .amdhsa_next_free_sgpr 102
  .amdhsa_accum_offset {acc}
  .amdhsa_group_segment_fixed_size 0
  .amdhsa_kernarg_size 64
  .amdhsa_user_sgpr_count 2
  .amdhsa_user_sgpr_kernarg_segment_ptr 1
  .amdhsa_system_sgpr_workgroup_id_x 1
.end_amdhsa_kernel
"""


def main():
    em = Em()
    k1(em)
    for t in range(96):
        assert (t * 4682) >> 16 == t // 14
    for t in range(144):
        assert (t * 7282) >> 16 == t // 9
    txt = HEADER + "\n".join(em.lines) + "\n"
    txt += '.section .rodata,"a"\n' + kd("standalone__mha_block_cached__near_ridge_kernel", 512, 256)
    open(OUT, "w").write(txt)
    print("wrote", OUT, len(txt), "bytes")


main()
```

```python
import math, sys, os, struct

OUT = sys.argv[1] if len(sys.argv) > 1 else "standalone__mha_block_cached__near_ridge.s"
PROF = os.environ.get("PROF", "0") == "1"
NSLOT = 9
NW0 = int(os.environ.get("NW0", "4"))
NK0 = 7 - NW0
ROT = int(os.environ.get("ROT", "2"))
FORK = int(os.environ.get("FORK", "0"))
PREF = int(os.environ.get("PREF", "1"))
PX = int(os.environ.get("PX", "4"))
DREAD = int(os.environ.get("DREAD", "5"))
KVNT = os.environ.get("KVNT", " nt")
K2NS = int(os.environ.get("K2NS", "7"))
K2NT = " nt" if os.environ.get("K2NT", "0") == "1" else ""

HEADER = f"""; Kernarg layout for this problem (64 bytes, ptrs only, base s[0:1]):
; @launch grid=(256,1,1) block=(256,1,1) lds=163840
.amdgcn_target "amdgcn-amd-amdhsa--gfx950"
.macro M d, a, b, c
v_mfma_f32_16x16x32_bf16 \\d, \\a, \\b, \\c
.endm
.macro T d, a, o
ds_read_b64_tr_b16 \\d, \\a offset:\\o
.endm
.macro R d, a, o
ds_read_b128 \\d, \\a offset:\\o
.endm
.macro WL n
s_waitcnt lgkmcnt(\\n)
.endm
.macro CV d, a, b
v_cvt_pk_bf16_f32 \\d, \\a, \\b
.endm
.text
"""


class Em:
    def __init__(self):
        self.lines = []
        self.vm = []
        self.lg = []
        self.n = 0

    def e(self, s):
        self.lines.append(s)
        self.n += 1

    def raw(self, s):
        self.lines.append(s)

    def vmem(self, s, tag):
        self.e(s)
        self.vm.append(tag)

    def ds(self, s, tag):
        self.e(s)
        self.lg.append(tag)

    def wait_vm(self, tag):
        idx = max([i for i, t in enumerate(self.vm) if t == tag], default=-1)
        if idx < 0:
            return
        n = min(len(self.vm) - 1 - idx, 63)
        self.e(f"s_waitcnt vmcnt({n})")
        self.vm = self.vm[len(self.vm) - n:] if n > 0 else []

    def wait_lg(self, tag):
        idx = max([i for i, t in enumerate(self.lg) if t == tag], default=-1)
        if idx < 0:
            return
        n = min(len(self.lg) - 1 - idx, 15)
        self.e(f"WL {n}")
        self.lg = self.lg[len(self.lg) - n:] if n > 0 else []

    def nop(self, states):
        while states > 0:
            k = min(states, 16)
            self.e(f"s_nop {k-1}")
            self.n += k - 1
            states -= k


def vr(b, n=1):
    return f"v{b}" if n == 1 else f"v[{b}:{b+n-1}]"


def ar(b, n=1):
    return f"a{b}" if n == 1 else f"a[{b}:{b+n-1}]"


S_X, S_K, S_V, S_W, S_O = 8, 12, 16, 20, 24
S_WAVE = 28
S_C = 29
S_XQ = 32
S_OQ = 36
S_T = 40
S_T2 = 41
V_LANE = 1
V_ADDR = 2
V_D = 10
V_XO = 14
V_ST = 15
V_SACC = 16
V_M = 40
V_L = 43
V_MC = 46
V_T = 50
V_BIG = 64
A_FR = 192


V_Q8 = 192
V_S8 = 208
V_P8 = 212
V_ONE = 220
V_SC = 224
V_M8, V_MC8 = 225, 226
V_SCW = 227
V_T2 = 228
V_QX = 244
V_XR = 10
V_X8 = 12
XB = 7 * 16384
A_XF = 144
V_A16 = 16
V_SACC2 = 32
V_EP = 228
A_O8 = 128
A_L8 = 144
SCR = 9 * 16384
S_WL, S_KL = 54, 55
S_XW = 56
S_OWN = 66


def k1(em):
    e = em.e
    global V_M, V_L, V_MC
    V_M, V_L, V_MC = 2, 4, 6
    V_WD, V_KD = 8, 9
    em.raw(".globl standalone__mha_block_cached__near_ridge_kernel\n.p2align 8\n.type standalone__mha_block_cached__near_ridge_kernel,@function\nstandalone__mha_block_cached__near_ridge_kernel:")
    e("s_cmp_ge_u32 s2, 256")
    e("s_cbranch_scc1 L_k1_exit")
    if PROF:
        e("s_memtime s[62:63]")
        e("s_memrealtime s[64:65]")
    e("s_load_dwordx8 s[44:51], s[0:1], 0")
    e("s_load_dwordx2 s[52:53], s[0:1], 56")
    if PREF:
        e("s_getpc_b64 s[76:77]")
        e("s_lshr_b32 s4, s2, 3")
        e("s_cmp_ge_u32 s4, 18")
        e("s_cbranch_scc1 L_nopref")
        e("s_lshl_b32 s4, s4, 12")
        e("v_lshlrev_b32 v2, 4, v0")
        e("v_add_u32 v2, s4, v2")
        e("global_load_dwordx4 v[4:7], v2, s[76:77]")
        em.raw("L_nopref:")
    e("s_and_b32 s3, s2, 7")
    e("s_lshr_b32 s4, s2, 3")
    MAPH = int(os.environ.get("MAPH", "4"))
    lg = {4: 2, 8: 3, 16: 4}[MAPH]
    e(f"s_and_b32 s5, s3, {16 // MAPH - 1}")
    e(f"s_lshl_b32 s5, s5, {lg}")
    e(f"s_and_b32 s6, s4, {MAPH - 1}")
    e("s_add_u32 s5, s5, s6")
    e(f"s_lshr_b32 s6, s3, {4 - lg}")
    e(f"s_lshl_b32 s6, s6, {5 - lg}")
    e(f"s_lshr_b32 s7, s4, {lg}")
    e("s_add_u32 s6, s6, s7")
    e(f"v_and_b32 v{V_LANE}, 63, v0")
    e("v_lshrrev_b32 v2, 6, v0")
    e("s_nop 0")
    e(f"v_readfirstlane_b32 s{S_WAVE}, v2")
    e(f"s_mov_b32 s{S_C}, {hex(struct.unpack('<I', struct.pack('<f', math.log2(math.e)/16.0))[0])}")
    e("s_waitcnt lgkmcnt(0)")
    e("s_mul_i32 s7, s6, 129024")
    e(f"s_add_u32 s{S_X}, s44, s7")
    e(f"s_addc_u32 s{S_X+1}, s45, 0")
    e(f"s_mov_b32 s{S_X+2}, 129024")
    e(f"s_mov_b32 s{S_X+3}, 0x20000")
    e("s_lshl_b32 s7, s6, 4")
    e("s_add_u32 s7, s7, s5")
    e("s_lshl_b32 s7, s7, 18")
    e(f"s_add_u32 s{S_K}, s46, s7")
    e(f"s_addc_u32 s{S_K+1}, s47, 0")
    e(f"s_mov_b32 s{S_K+2}, 262144")
    e(f"s_mov_b32 s{S_K+3}, 0x20000")
    e(f"s_add_u32 s{S_V}, s48, s7")
    e(f"s_addc_u32 s{S_V+1}, s49, 0")
    e(f"s_mov_b32 s{S_V+2}, 262144")
    e(f"s_mov_b32 s{S_V+3}, 0x20000")
    e("s_lshl_b32 s7, s5, 9")
    e(f"s_add_u32 s{S_W}, s50, s7")
    e(f"s_addc_u32 s{S_W+1}, s51, 0")
    e(f"s_mov_b32 s{S_W+2}, {447*8192+512}")
    e(f"s_mov_b32 s{S_W+3}, 0x20000")
    e(f"s_mov_b32 s{S_O}, s52")
    e(f"s_mov_b32 s{S_O+1}, s53")
    e(f"s_mov_b32 s{S_O+2}, {144*128*1024}")
    e(f"s_mov_b32 s{S_O+3}, 0x20000")
    e(f"s_lshl_b32 s7, s{S_WAVE}, 1")
    for qt in range(3):
        if qt < 2:
            e(f"s_add_u32 s42, s7, {qt}")
        else:
            e("s_mov_b32 s42, 8")
        e(f"s_mul_i32 s{S_XQ+qt}, s42, 14336")
        e("s_mul_i32 s43, s6, 9")
        e("s_add_u32 s43, s43, s42")
        e("s_lshl_b32 s43, s43, 7")
        e("s_lshl_b32 s42, s5, 3")
        e("s_add_u32 s43, s43, s42")
        e(f"s_lshl_b32 s{S_OQ+qt}, s43, 10")
    e("s_mul_i32 s78, s4, 3")
    e("s_mul_i32 s42, s78, 9363")
    e("s_lshr_b32 s42, s42, 16")
    e("s_mul_i32 s42, s42, 7")
    e("s_sub_u32 s78, s78, s42")
    e("s_lshl_b32 s78, s78, 1")
    if not (ROT & 1):
        e("s_mov_b32 s78, 0")
    for a in range(4):
        e(f"s_xor_b32 s42, s{S_WAVE}, {a}")
        e(f"s_lshl_b32 s{S_XW+a}, s42, 11")
    for k in range(4):
        e(f"s_cmp_eq_u32 s{S_WAVE}, {k}")
        e(f"s_cselect_b64 s[{S_OWN+2*k}:{S_OWN+2*k+1}], -1, 0")
    t0, t1, t2, t3 = V_T, V_T + 1, V_T + 2, V_T + 3
    e(f"v_lshlrev_b32 v{V_ST}, 4, v{V_LANE}")
    e(f"s_lshl_b32 s42, s{S_WAVE}, 1")
    e(f"s_lshl_b32 s{S_KL}, s{S_WAVE}, 10")
    e(f"v_lshrrev_b32 v{t0}, 5, v{V_LANE}")
    e(f"v_add_u32 v{t0}, s42, v{t0}")
    e(f"v_and_b32 v{t1}, 31, v{V_LANE}")
    e(f"v_lshlrev_b32 v{t2}, 1, v{t0}")
    e(f"v_xor_b32 v{t2}, v{t1}, v{t2}")
    e(f"v_lshlrev_b32 v{t2}, 4, v{t2}")
    e(f"v_lshl_add_u32 v{V_KD}, v{t0}, 9, v{t2}")
    e(f"s_and_b32 s42, s{S_WAVE}, 1")
    e("s_lshl_b32 s42, s42, 1")
    e(f"s_lshr_b32 s43, s{S_WAVE}, 1")
    e("s_lshl_b32 s43, s43, 3")
    e("s_add_u32 s42, s42, s43")
    e(f"s_lshl_b32 s{S_WL}, s42, 9")
    e(f"v_lshrrev_b32 v{t0}, 5, v{V_LANE}")
    e(f"v_add_u32 v{t0}, s42, v{t0}")
    e(f"v_and_b32 v{t2}, 3, v{t0}")
    e(f"v_bfe_u32 v{t3}, v{t0}, 3, 1")
    e(f"v_lshl_add_u32 v{t2}, v{t3}, 2, v{t2}")
    e(f"v_lshlrev_b32 v{t2}, 1, v{t2}")
    e(f"v_xor_b32 v{t2}, v{t1}, v{t2}")
    e(f"v_lshlrev_b32 v{t2}, 4, v{t2}")
    e(f"v_lshl_add_u32 v{V_WD}, v{t0}, 13, v{t2}")
    e(f"s_and_b32 s42, s{S_WAVE}, 1")
    e("s_lshl_b32 s42, s42, 2")
    e(f"v_lshrrev_b32 v{t0}, 4, v{V_LANE}")
    e(f"v_or_b32 v{t0}, s42, v{t0}")
    e(f"v_and_b32 v{t1}, 7, v{V_LANE}")
    e(f"v_xor_b32 v{t0}, v{t0}, v{t1}")
    e(f"v_lshrrev_b32 v{t1}, 3, v{V_LANE}")
    e(f"v_mul_u32_u24 v{t1}, 896, v{t1}")
    e(f"v_lshl_add_u32 v{V_XO}, v{t0}, 4, v{t1}")
    e(f"v_and_b32 v{t0}, 15, v{V_LANE}")
    e(f"v_lshrrev_b32 v{t1}, 4, v{V_LANE}")
    e(f"v_bfe_u32 v{t2}, v{t0}, 1, 3")
    e(f"v_xor_b32 v{t1}, v{t1}, v{t2}")
    e(f"v_lshlrev_b32 v{t1}, 4, v{t1}")
    e(f"v_lshl_add_u32 v{t1}, v{t0}, 7, v{t1}")
    e(f"v_add_u32 v{V_X8}, {XB + 8*2048}, v{t1}")
    e(f"v_xor_b32 v{V_X8+1}, 64, v{V_X8}")
    e(f"s_lshl_b32 s42, s{S_WAVE}, 12")
    e(f"s_add_u32 s42, s42, {XB}")
    e(f"v_add_u32 v{V_XR}, s42, v{t1}")
    e(f"v_xor_b32 v{V_XR+1}, 64, v{V_XR}")
    e(f"s_mul_i32 s89, s{S_WAVE}, {8*896}")
    e(f"s_lshl_b32 s90, s{S_WAVE}, 10")
    e(f"s_cmp_lt_u32 s{S_WAVE}, 2")
    e(f"s_cselect_b32 s91, s90, 60000")
    e(f"v_lshlrev_b32 v{V_SC}, 4, v{V_LANE}")
    e(f"v_add_u32 v{V_SC}, {SCR}, v{V_SC}")
    for a in range(4):
        e(f"v_add_u32 v{V_QX+a}, s{S_XW+a}, v{V_SC}")
    for j in range(4):
        e(f"v_mov_b32 v{V_ONE+j}, 0x3f803f80")

    NT = 2
    chunks = [("W", i) for i in range(14)] + [("K", i) for i in range(16)] + [("V", i) for i in range(16)]
    nsteps = len(chunks)
    slot_of = {}
    init = [("W", i) for i in range(NW0)] + [("K", i) for i in range(NK0)]
    for s_, c in enumerate(init):
        slot_of[c] = s_
    later = [c for c in chunks if c not in slot_of]
    dq = []

    def kc(c, dst):
        e(f"s_add_u32 s{dst}, s78, {c}")
        e(f"s_cmp_ge_u32 s{dst}, 14")
        e(f"s_cselect_b32 s79, 14, 0")
        e(f"s_sub_u32 s{dst}, s{dst}, s79")

    def emit_dma(item):
        if item[0] == "X":
            _, p, n = item
            base = XB + (p & 1) * 18432 + n * 4096
            if n == 0:
                kc(2 * p, 81)
                e("s_lshl_b32 s81, s81, 6")
                e("s_add_u32 s81, s81, s89")
            e(f"s_add_u32 m0, s{91 if n == 4 else 90}, {base}")
            e(f"s_add_u32 s{S_T}, s81, {n*32*896}")
            em.vmem(f"buffer_load_dwordx4 v{V_XO}, s[{S_X}:{S_X+3}], s{S_T} offen lds", f"X{p}")
            return
        sl, lds, goff, vo, srd, nt, tag = item
        if srd == S_W:
            ci, jr = goff
            if jr == 0:
                kc(ci, 80)
                e("s_lshl_b32 s80, s80, 18")
            e(f"s_add_u32 m0, s{sl}, {lds}")
            e(f"s_add_u32 s{S_T}, s80, {jr*8192}")
        else:
            e(f"s_add_u32 m0, s{sl}, {lds}")
            e(f"s_mov_b32 s{S_T}, {goff}")
        em.vmem(f"buffer_load_dwordx4 v{vo}, s[{srd}:{srd+3}], s{S_T} offen{nt} lds", tag)

    def issue(chunk, defer=False):
        kind, ci = chunk
        slot = slot_of[chunk]
        tag = f"{kind}{ci}"
        its = []
        if kind == "W":
            for jr in (0, 4, 16, 20):
                its.append((S_WL, slot * 16384 + jr * 512, (ci, jr), V_WD, S_W, "", tag))
        else:
            srd = S_K if kind == "K" else S_V
            for jj in range(4):
                its.append((S_KL, slot * 16384 + jj * 4096, ci * 16384 + jj * 4096, V_KD, srd, KVNT, tag))
        for it in its:
            if defer:
                dq.append(it)
            else:
                emit_dma(it)

    def xdma(p, defer=True):
        if p >= 7:
            return
        for n in range(5):
            it = ("X", p, n)
            if defer:
                dq.append(it)
            else:
                emit_dma(it)

    def XF(qt, c):
        return A_XF + ((c >> 1) & 1) * 24 + (c & 1) * 12 + qt * 4

    def xreads(p):
        off = (p & 1) * 18432
        for ks in range(2):
            c = 2 * p + ks
            em.ds(f"R {ar(XF(0,c),4)}, v{V_XR+ks}, {off}", f"xr{c}")
            em.ds(f"R {ar(XF(1,c),4)}, v{V_XR+ks}, {off+2048}", f"xr{c}")
            em.ds(f"R {ar(XF(2,c),4)}, v{V_X8+ks}, {off}", f"xr{c}")

    for c in range(NW0):
        if c < 2:
            xdma(c, False)
        issue(("W", c))
    KD = int(os.environ.get("KD", "0"))
    if KD == 0:
        issue(("K", 0))
    st = {"base": 0}

    def set_addr(kind):
        e(f"v_lshrrev_b32 v{t0}, 4, v{V_LANE}")
        e(f"v_bfe_u32 v{t1}, v{V_LANE}, 2, 2")
        e(f"v_and_b32 v{t2}, 3, v{V_LANE}")
        if kind == "W":
            e(f"v_lshl_add_u32 v{t3}, v{t0}, 3, v{t1}")
            e(f"v_lshlrev_b32 v{t3}, 9, v{t3}")
            e(f"v_and_b32 v{t0}, 1, v{t0}")
            e(f"v_lshl_add_u32 v{t0}, v{t0}, 2, v{t1}")
            e(f"v_lshl_add_u32 v{t3}, v{t0}, 5, v{t3}")
            e(f"v_lshl_add_u32 v{t3}, v{t2}, 3, v{t3}")
            nb, sh = 16, 5
        elif kind == "V":
            e(f"v_lshl_add_u32 v{t0}, v{t0}, 2, v{t1}")
            e(f"v_lshlrev_b32 v{t3}, 9, v{t0}")
            e(f"v_and_b32 v{t0}, 7, v{t0}")
            e(f"v_lshl_add_u32 v{t3}, v{t0}, 5, v{t3}")
            e(f"v_lshl_add_u32 v{t3}, v{t2}, 3, v{t3}")
            nb, sh = 16, 5
        else:
            e(f"v_and_b32 v{t1}, 15, v{V_LANE}")
            e(f"v_lshlrev_b32 v{t3}, 9, v{t1}")
            e(f"v_and_b32 v{t1}, 7, v{t1}")
            e(f"v_lshlrev_b32 v{t1}, 1, v{t1}")
            e(f"v_xor_b32 v{t1}, v{t0}, v{t1}")
            e(f"v_lshl_add_u32 v{t3}, v{t1}, 4, v{t3}")
            nb, sh = 8, 6
        e(f"s_lshl_b32 s42, s{S_WAVE}, 7")
        e(f"v_xor_b32 v{t3}, s42, v{t3}")
        for b in range(nb):
            e(f"v_xor_b32 v{V_A16+b}, {b << sh}, v{t3}")
        st["base"] = 0
        st["nb"] = nb

    def set_base(grp):
        if grp != st["base"]:
            d = (grp - st["base"]) * 65536
            for b in range(st["nb"]):
                e(f"v_add_u32 v{V_A16+b}, {d & 0xffffffff}, v{V_A16+b}")
            st["base"] = grp

    def frag_reg(G):
        return A_FR + (G % 16) * 4

    def reads(G):
        i, f = divmod(G, 16)
        kind, ci = chunks[i]
        slot = slot_of[chunks[i]]
        sb = (slot & 3) * 16384
        fr = frag_reg(G)
        tag = f"F{G}"
        if kind == "K":
            kt, ks = f >> 3, f & 7
            em.ds(f"R {ar(fr,4)}, v{V_A16+ks}, {sb + kt*8192}", tag)
        else:
            second = 2048 if kind == "W" else 8192
            em.ds(f"T {ar(fr,2)}, v{V_A16+f}, {sb}", tag)
            em.ds(f"T {ar(fr+2,2)}, v{V_A16+f}, {sb + second}", tag)

    def big(qt, idx):
        return V_BIG + (qt * 16 + idx) * 4

    def sacc(kt, qt):
        return V_SACC2 + (kt * 2 + qt) * 4

    def QF(qt, s):
        return (qt * 14 + s) * 4

    def s8reg(ci):
        return V_Q8 + (ci >> 1) * 2

    q = []
    lab = [0]

    def push(instrs, after=None):
        for k, s in enumerate(instrs):
            q.append((after if k == 0 else None, s))

    def drain(cnt):
        k = 0
        while q and k < cnt:
            rdy, s = q[0]
            if rdy is not None and em.n < rdy:
                return
            q.pop(0)
            if isinstance(s, tuple):
                if s[0] == "nop":
                    em.nop(s[1])
                elif s[0] == "st":
                    em.vmem(s[1], "st")
                elif s[0] == "ds":
                    em.ds(s[1], s[2])
                elif s[0] == "blk":
                    for x in s[1]:
                        if x.endswith(":"):
                            em.raw(x)
                        else:
                            e(x)
            else:
                e(s)
            k += 1

    def drain_all():
        while q:
            rdy, s = q[0]
            if rdy is not None and em.n < rdy:
                em.nop(rdy - em.n)
            drain(1)

    def s_items(ci, kt):
        out = []
        for qt in range(NT):
            a, m, dst = sacc(kt, qt), V_M + qt, big(qt, ci) + 2 * kt
            if ci == 0 and kt == 0:
                out.append(f"v_max_f32 v{m}, v{a}, v{a+1}")
            else:
                out.append(f"v_max3_f32 v{m}, v{a}, v{a+1}, v{m}")
            out.append(f"CV v{dst}, v{a}, v{a+1}")
            out.append(f"v_max3_f32 v{m}, v{a+2}, v{a+3}, v{m}")
            out.append(f"CV v{dst+1}, v{a+2}, v{a+3}")
        k = 2 * (ci & 1) + kt
        lab[0] += 1
        L = f"Ls8_{lab[0]}"
        a, m, dst = V_S8, V_M8, s8reg(ci)
        blk = [f"s_mov_b64 vcc, s[{S_OWN+2*k}:{S_OWN+2*k+1}]", f"s_cbranch_vccz {L}",
               f"v_max3_f32 v{m}, v{a}, v{a+1}, v{m}", f"CV v{dst}, v{a}, v{a+1}",
               f"v_max3_f32 v{m}, v{a+2}, v{a+3}, v{m}", f"CV v{dst+1}, v{a+2}, v{a+3}", f"{L}:"]
        out.append(("blk", blk))
        return out

    def qconv_items(s):
        out = []
        tl = [(V_T + qt * 4, big(qt, 2 * s), big(qt, 2 * s + 1), qt) for qt in range(NT)]
        if s < 2:
            tl.append((V_T + 8, V_Q8 + (2 * s) * 4, V_Q8 + (2 * s + 1) * 4, 8))
        for t, p0, p1, qt in tl:
            out += [f"CV v{t}, v{p0}, v{p0+1}", f"CV v{t+1}, v{p0+2}, v{p0+3}",
                    f"CV v{t+2}, v{p1}, v{p1+1}", f"CV v{t+3}, v{p1+2}, v{p1+3}"]
        out.append(("nop", 2))
        for t, *_ in tl:
            out += [f"v_permlane32_swap_b32 v{t}, v{t+2}", f"v_permlane32_swap_b32 v{t+1}, v{t+3}"]
        out.append(("nop", 2))
        for t, *_ in tl:
            out += [f"v_permlane16_swap_b32 v{t}, v{t+2}", f"v_permlane16_swap_b32 v{t+1}, v{t+3}"]
        out.append(("nop", 1))
        for t, p0, p1, qt in tl:
            if qt == 8:
                out.append(("ds", f"ds_write_b128 v{V_QX}, v[{t}:{t+3}] offset:{s*1024}", "q8w"))
            else:
                for j in range(4):
                    out.append(f"v_accvgpr_write_b32 a{QF(qt, s)+j}, v{t+j}")
        return out

    def xreduce(op, regs):
        out = []
        for sw in ("32", "16"):
            for k, r in enumerate(regs):
                out.append(f"v_mov_b32 v{V_T+k}, v{r}")
            out.append(("nop", 2))
            for k, r in enumerate(regs):
                out.append(f"v_permlane{sw}_swap_b32 v{V_T+k}, v{r}")
            out.append(("nop", 1))
            for k, r in enumerate(regs):
                out.append(f"v_{op}_f32 v{r}, v{r}, v{V_T+k}")
        return out

    def p_group(regs):
        n = len(regs)
        T = [(V_T2 + 2 * k, V_T2 + 2 * k + 1) for k in range(n)]
        o = []
        for (R, mc, l), (ta, tb) in zip(regs, T):
            o += [f"v_lshlrev_b32 v{ta}, 16, v{R}", f"v_and_b32 v{tb}, 0xffff0000, v{R}"]
        for (R, mc, l), (ta, tb) in zip(regs, T):
            o += [f"v_fma_f32 v{ta}, v{ta}, s{S_C}, -v{mc}", f"v_fma_f32 v{tb}, v{tb}, s{S_C}, -v{mc}"]
        for (R, mc, l), (ta, tb) in zip(regs, T):
            o += [f"v_exp_f32 v{ta}, v{ta}", f"v_exp_f32 v{tb}, v{tb}"]
        for which in (0, 1):
            for (R, mc, l), tt in zip(regs, T):
                if l is not None:
                    o.append(f"v_add_f32 v{l}, v{l}, v{tt[which]}")
        for (R, mc, l), (ta, tb) in zip(regs, T):
            o.append(f"CV v{R}, v{ta}, v{tb}")
        return o

    def p_items(ci):
        regs = [(big(qt, ci) + j, V_MC + qt, V_L + qt) for j in range(4) for qt in range(NT)]
        return p_group(regs)

    epi_k = [0]

    def epi_block(areg, lreg, soff, sp):
        out = []
        tb = V_EP + (epi_k[0] % 2) * 12
        epi_k[0] += 1
        for j in range(8):
            out.append(f"v_accvgpr_read_b32 v{tb+j}, a{areg+j}")
        for j in range(8):
            out.append(f"v_mul_f32 v{tb+j}, v{tb+j}, v{lreg}")
        for j in range(4):
            out.append(f"CV v{tb+8+j}, v{tb+2*j}, v{tb+2*j+1}")
        out.append(f"s_add_u32 s{S_T2}, s{soff}, s{S_XW + (sp>>1)}")
        out.append(("st", f"buffer_store_dwordx4 v[{tb+8}:{tb+11}], v{V_ST}, s[{S_O}:{S_O+3}], s{S_T2} offen offset:{(sp&1)*1024} sc1"))
        return out

    def epi_items(s):
        out = []
        for qt in range(NT):
            out += epi_block((qt * 16 + 2 * s) * 4, V_L + qt, S_OQ + qt, s)
        return out

    def transition_q8():
        drain_all()
        e(f"v_mov_b32 v{V_M8}, 0xff800000")
        em.wait_lg("q8w")
        e("s_barrier")
        for s in range(8):
            em.ds(f"R {ar(QF(2, s),4)}, v{V_QX + (s>>1)}, {(s&1)*1024}", "q8r")
        em.nop(2)

    def transition_sm():
        drain_all()
        push(xreduce("max", [V_M, V_M + 1, V_M8]))
        drain_all()
        e(f"v_and_b32 v{t0}, 15, v{V_LANE}")
        e(f"v_lshlrev_b32 v{t0}, 2, v{t0}")
        e(f"v_add_u32 v{t0}, {SCR}, v{t0}")
        e(f"s_lshl_b32 s42, s{S_WAVE}, 6")
        e(f"v_add_u32 v{t1}, s42, v{t0}")
        em.ds(f"ds_write_b32 v{t1}, v{V_M8}", "m8w")
        for qt in range(NT):
            e(f"v_mul_f32 v{V_MC+qt}, s{S_C}, v{V_M+qt}")
            e(f"v_mov_b32 v{V_L+qt}, 0")
        e(f"s_lshr_b32 s42, s{S_WAVE}, 1")
        e("s_lshl_b32 s42, s42, 10")
        e(f"s_and_b32 s43, s{S_WAVE}, 1")
        e("s_lshl_b32 s43, s43, 3")
        e("s_add_u32 s42, s42, s43")
        e(f"v_add_u32 v{V_SCW}, s42, v{V_SC}")
        em.wait_lg("m8w")
        e("s_barrier")
        em.ds(f"ds_read2_b32 v[{t2}:{t3}], v{t0} offset0:0 offset1:16", "m8r")
        em.ds(f"ds_read2_b32 v[{t3+1}:{t3+2}], v{t0} offset0:32 offset1:48", "m8r")
        for s in p_items(0):
            e(s)
        em.wait_lg("m8r")
        e("s_barrier")
        e(f"v_max3_f32 v{V_M8}, v{t2}, v{t3}, v{t3+1}")
        e(f"v_max_f32 v{V_M8}, v{V_M8}, v{t3+2}")
        e(f"v_mul_f32 v{V_MC8}, s{S_C}, v{V_M8}")
        for h in range(0, 8, 4):
            regs = [(V_Q8 + 2 * j + k, V_MC8, None) for j in range(h, h + 4) for k in range(2)]
            for s in p_group(regs):
                e(s)
        for j in range(8):
            em.ds(f"ds_write_b64 v{V_SCW}, v[{V_Q8+2*j}:{V_Q8+2*j+1}] offset:{j*2048}", "p8w")
        em.wait_lg("p8w")
        e("s_barrier")
        em.ds(f"R {vr(V_P8,4)}, v{V_SC}, 0", "P8_0")
        em.nop(2)

    def mfmas(G):
        i, f = divmod(G, 16)
        kind, ci = chunks[i]
        fr = frag_reg(G)
        if kind == "V" and ci == 0 and f == 0:
            transition_sm()
        if kind == "W" and f == 0:
            em.wait_lg(f"xr{ci}")
        if kind == "V" and f == 0 and ci > 0:
            drain_all()
            em.nop(2)
        em.wait_lg(f"F{G}")
        per = {"W": 3, "K": 2, "V": 3}[kind]
        for qt in range(NT):
            if kind == "W":
                d = vr(big(qt, f), 4)
                c = "0" if ci == 0 else d
                e(f"M {d}, {ar(fr,4)}, {ar(XF(qt,ci),4)}, {c}")
            elif kind == "K":
                kt, ks = f >> 3, f & 7
                if ks == 0:
                    assert not any(isinstance(x[1], str) and f"v{sacc(kt,qt)}," in x[1] for x in q), "pending S items"
                d = vr(sacc(kt, qt), 4)
                c = "0" if ks == 0 else d
                e(f"M {d}, {ar(fr,4)}, {ar(QF(qt,ks),4)}, {c}")
            else:
                d = ar((qt * 16 + f) * 4, 4)
                c = "0" if ci == 0 else d
                e(f"M {d}, {ar(fr,4)}, {vr(big(qt,ci),4)}, {c}")
            drain(per)
        if kind == "W" and f < 4:
            d = vr(V_Q8 + f * 4, 4)
            c = "0" if ci == 0 else d
            e(f"M {d}, {ar(fr,4)}, {ar(XF(2,ci),4)}, {c}")
            drain(per)
        elif kind == "K":
            kt, ks = f >> 3, f & 7
            if ks == 0:
                while any(isinstance(x[1], tuple) and x[1][0] == "blk" for x in q):
                    rdy, _ = q[0]
                    if rdy is not None and em.n < rdy:
                        em.nop(rdy - em.n)
                    drain(1)
            d = vr(V_S8, 4)
            c = "0" if ks == 0 else d
            if os.environ.get("ALLM", "1") == "1":
                e(f"M {d}, {ar(fr,4)}, {ar(QF(2,ks),4)}, {c}")
                drain(per)
            elif not FORK:
                k = 2 * (ci & 1) + kt
                lab[0] += 1
                L = f"Lk8_{lab[0]}"
                e(f"s_mov_b64 vcc, s[{S_OWN+2*k}:{S_OWN+2*k+1}]")
                e(f"s_cbranch_vccz {L}")
                e(f"M {d}, {ar(fr,4)}, {ar(QF(2,ks),4)}, {c}")
                em.raw(f"{L}:")
            elif st.get("extra"):
                e(f"M {d}, {ar(fr,4)}, {ar(QF(2,ks),4)}, {c}")
                em.n -= 1
        elif kind == "V":
            p8 = V_P8 + (ci & 1) * 4
            if f == 0 and ci + 1 < 16:
                em.ds(f"R {vr(V_P8 + ((ci+1)&1)*4, 4)}, v{V_SC}, {(ci+1)*1024}", f"P8_{ci+1}")
            if f < 4:
                em.wait_lg(f"P8_{ci}")
                d = ar(A_O8 + f * 4, 4)
                c = "0" if ci == 0 else d
                e(f"M {d}, {ar(fr,4)}, {vr(p8,4)}, {c}")
                drain(per)
                if f == 3:
                    d = ar(A_L8, 4)
                    c = "0" if ci == 0 else d
                    e(f"M {d}, {vr(V_ONE,4)}, {vr(p8,4)}, {c}")
                    drain(per)
        if kind == "W" and ci == 13 and (f & 1):
            push(qconv_items(f >> 1), after=em.n + 9)
        if kind == "K" and (f & 7) == 7:
            push(s_items(ci, f >> 3), after=em.n + 13)
        if kind == "V":
            if f == 0 and ci + 1 < 16:
                push(p_items(ci + 1))
            if ci == 15:
                if f == 0:
                    push(xreduce("add", [V_L, V_L + 1]))
                    push([f"v_rcp_f32 v{V_L+qt}, v{V_L+qt}" for qt in range(NT)])
                    push([("nop", 1)])
                if f == 5:
                    push([f"v_accvgpr_read_b32 v{V_M8}, a{A_L8}", f"v_rcp_f32 v{V_M8}, v{V_M8}", ("nop", 1)], after=em.n + 9)
                    for k in range(2):
                        push(epi_block(A_O8 + k * 8, V_M8, S_OQ + 2, k))
                if f & 1:
                    push(epi_items(f >> 1), after=em.n + 9)

    total = nsteps * 16
    st["li"] = 0

    def body(G):
        if G < total:
            i, f = divmod(G, 16)
            if f == 0:
                kind, ci = chunks[i]
                em.wait_vm(f"{kind}{ci}")
                if kind == "W" and (ci & 1) == 0:
                    em.wait_vm(f"X{ci >> 1}")
                e("s_barrier")
                if PROF:
                    e("s_memtime s[60:61]")
                    e("s_waitcnt lgkmcnt(0)")
                    em.lg = []
                    e(f"v_writelane_b32 v49, s60, {i}")
                while dq:
                    emit_dma(dq.pop(0))
                if kind == "W" and (ci & 1) == 0:
                    xreads(ci >> 1)
                    if ci >= 2:
                        xdma((ci >> 1) + 1)
                frees = []
                if i >= 2:
                    frees.append(slot_of[chunks[i - 2]])
                if i == 14:
                    frees += [7, 8]
                for fs_ in frees:
                    if st["li"] < len(later):
                        c = later[st["li"]]
                        st["li"] += 1
                        slot_of[c] = fs_
                        issue(c, True)
                if KD == 0:
                    if i + 1 < NK0:
                        issue(("K", i + 1), True)
                elif KD - 1 <= i < KD - 1 + NK0:
                    issue(("K", i - KD + 1), True)
                if i == 0 or chunks[i - 1][0] != kind:
                    drain_all()
                    set_addr(kind)
                set_base(slot_of[chunks[i]] >> 2)
            reads(G)
        m = G - DREAD
        if m >= 0:
            mfmas(m)
        FS = int(os.environ.get("FS", "35"))
        if PROF and FS * 16 <= G < FS * 16 + 24:
            e("s_memtime s[60:61]")
            e("s_waitcnt lgkmcnt(0)")
            em.lg = []
            e(f"v_writelane_b32 v48, s60, {2*(G - FS*16)}")
        if dq:
            emit_dma(dq.pop(0))
        if PROF and FS * 16 <= G < FS * 16 + 24:
            e("s_memtime s[60:61]")
            e("s_waitcnt lgkmcnt(0)")
            em.lg = []
            e(f"v_writelane_b32 v48, s60, {2*(G - FS*16)+1}")

    import copy
    G = 0
    while G < total + DREAD:
        m = G - DREAD
        if not FORK and m == 14 * 16:
            transition_q8()
            em.wait_lg("q8r")
        if FORK and m >= 0 and chunks[m // 16][0] == "K" and (m & 7) == 0:
            ci, kt = chunks[m // 16][1], (m >> 3) & 1
            k = 2 * (ci & 1) + kt
            if ci == 0 and kt == 0:
                transition_q8()
                em.wait_lg("q8r")
            while any(isinstance(x[1], tuple) and x[1][0] == "blk" for x in q):
                rdy, _ = q[0]
                if rdy is not None and em.n < rdy:
                    em.nop(rdy - em.n)
                drain(1)
            lab[0] += 1
            LP, LJ = f"Lkp_{lab[0]}", f"Lkj_{lab[0]}"
            e(f"s_mov_b64 vcc, s[{S_OWN+2*k}:{S_OWN+2*k+1}]")
            e(f"s_cbranch_vccz {LP}")
            snap = (list(em.vm), list(em.lg), em.n, list(q), list(dq), dict(st), dict(slot_of), lab[0], list(epi_k))
            st["extra"] = True
            for g2 in range(G, G + 8):
                body(g2)
            e(f"s_branch {LJ}")
            em.raw(f"{LP}:")
            nA = em.n
            em.vm, em.lg, em.n = list(snap[0]), list(snap[1]), snap[2]
            q[:] = snap[3]
            dq[:] = snap[4]
            st.clear(); st.update(snap[5])
            slot_of.clear(); slot_of.update(snap[6])
            lab[0] = snap[7] + 1000
            st["extra"] = False
            for g2 in range(G, G + 8):
                body(g2)
            em.raw(f"{LJ}:")
            G += 8
        else:
            body(G)
            G += 1
    drain_all()
    if PROF:
        e("s_memtime s[60:61]")
        e("s_waitcnt lgkmcnt(0)")
        e("v_writelane_b32 v49, s60, 46")
        e("s_waitcnt vmcnt(0)")
        e("s_memtime s[60:61]")
        e("s_waitcnt lgkmcnt(0)")
        e("v_writelane_b32 v49, s60, 47")
        e("v_writelane_b32 v49, s62, 48")
        e("s_memrealtime s[60:61]")
        e("s_waitcnt lgkmcnt(0)")
        e("v_writelane_b32 v49, s60, 49")
        e("v_writelane_b32 v49, s64, 50")
        e("s_lshl_b32 s60, s2, 2")
        e(f"s_add_u32 s60, s60, s{S_WAVE}")
        e("s_lshl_b32 s60, s60, 8")
        e(f"s_add_u32 s60, s60, {32<<20}")
        e(f"v_lshlrev_b32 v50, 2, v{V_LANE}")
        e(f"s_mov_b32 s{S_O+2}, {64<<20}")
        e(f"buffer_store_dword v49, v50, s[{S_O}:{S_O+3}], s60 offen")
        e(f"s_add_u32 s60, s60, {2<<20}")
        e(f"buffer_store_dword v48, v50, s[{S_O}:{S_O+3}], s60 offen")
    tail(em)
    em.raw("L_k1_exit:")
    e("s_endpgm")


def tail(em):
    e = em.e
    NS = 9
    S_WO, S_OS, S_OUT, S_DB = 8, 12, 16, 20
    S_WG, S_WLD, S_TT, S_ST = 30, 31, 32, 33
    V_L, V_DMA, V_B, V_O, V_A = 1, 2, 3, 4, 6
    V_ACC = 12
    V_FR = 32
    V_BF = 64
    e("s_load_dwordx4 s[44:47], s[0:1], 32")
    e("s_load_dwordx2 s[48:49], s[0:1], 48")
    e("s_mov_b32 s87, s6")
    e("s_mov_b32 s88, s5")
    e("s_waitcnt vmcnt(0) lgkmcnt(0)")
    em.lg = []
    em.vm = []
    e(f"s_mov_b32 s{S_DB}, s48")
    e(f"s_mov_b32 s{S_DB+1}, s49")
    e(f"s_mov_b32 s{S_DB+2}, 256")
    e(f"s_mov_b32 s{S_DB+3}, 0x20000")

    def signal(lbl):
        e("s_barrier")
        e(f"s_cmp_lg_u32 s{S_WAVE}, 0")
        e(f"s_cbranch_scc1 {lbl}")
        e("s_lshl_b32 s42, s87, 2")
        e("v_mov_b32 v10, s42")
        e("s_lshl_b32 s42, 1, s88")
        e("v_mov_b32 v11, s42")
        e("s_mov_b64 exec, 1")
        e(f"buffer_atomic_or v11, v10, s[{S_DB}:{S_DB+3}], 0 offen sc1")
        e("s_mov_b64 exec, -1")
        em.raw(f"{lbl}:")

    signal("L_nosig1")
    if PROF:
        e("s_memtime s[60:61]")
        e("s_waitcnt lgkmcnt(0)")
        e("v_writelane_b32 v5, s60, 40")
    e("s_and_b32 s3, s2, 7")
    e("s_lshr_b32 s4, s2, 3")
    e("s_lshl_b32 s3, s3, 5")
    e("s_add_u32 s3, s3, s4")
    e("s_cmp_ge_u32 s3, 252")
    e("s_cbranch_scc1 L_k1_exit")
    e("s_mul_i32 s4, s3, 9363")
    e("s_lshr_b32 s4, s4, 16")
    e("s_mul_i32 s5, s4, 7")
    e("s_sub_u32 s5, s3, s5")
    e("s_lshl_b32 s6, s5, 7")
    e(f"s_add_u32 s{S_WO}, s44, s6")
    e(f"s_addc_u32 s{S_WO+1}, s45, 0")
    e(f"s_sub_u32 s{S_WO+2}, {4096*896}, s6")
    e(f"s_mov_b32 s{S_WO+3}, 0x20000")
    e("s_lshl_b32 s7, s4, 2")
    e(f"s_add_u32 s7, s7, s{S_WAVE}")
    e("s_lshl_b32 s25, s7, 17")
    e(f"s_add_u32 s{S_OS}, s52, s25")
    e(f"s_addc_u32 s{S_OS+1}, s53, 0")
    e(f"s_mov_b32 s{S_OS+2}, 131072")
    e(f"s_mov_b32 s{S_OS+3}, 0x20000")
    e(f"s_mov_b32 s{S_OUT}, s46")
    e(f"s_mov_b32 s{S_OUT+1}, s47")
    e(f"s_mov_b32 s{S_OUT+2}, {2304*896}")
    e(f"s_mov_b32 s{S_OUT+3}, 0x20000")
    e(f"s_mul_i32 s{S_ST}, s7, {16*896}")
    e(f"s_add_u32 s{S_ST}, s{S_ST}, s6")
    e(f"s_mul_i32 s{S_WG}, s{S_WAVE}, {32*896}")
    e(f"s_lshl_b32 s{S_WLD}, s{S_WAVE}, 12")
    e(f"v_lshrrev_b32 v10, 3, v{V_L}")
    e("v_mul_u32_u24 v10, 896, v10")
    e(f"v_bfe_u32 v11, v{V_L}, 1, 2")
    e(f"v_lshrrev_b32 v12, 4, v{V_L}")
    e("v_xor_b32 v11, v11, v12")
    e("v_lshl_add_u32 v10, v11, 5, v10")
    e(f"v_and_b32 v11, 1, v{V_L}")
    e(f"v_lshl_add_u32 v{V_DMA}, v11, 4, v10")
    e(f"v_lshlrev_b32 v{V_B}, 4, v{V_L}")
    e(f"v_and_b32 v10, 15, v{V_L}")
    e("v_mul_u32_u24 v10, 896, v10")
    e(f"v_lshl_add_u32 v{V_O}, v12, 3, v10")
    e(f"v_bfe_u32 v10, v{V_L}, 2, 2")
    e("v_lshl_add_u32 v10, v12, 2, v10")
    e("v_bfe_u32 v11, v10, 1, 2")
    e("v_lshlrev_b32 v10, 7, v10")
    e("v_lshl_add_u32 v10, v11, 5, v10")
    e(f"v_and_b32 v11, 3, v{V_L}")
    e("v_lshl_add_u32 v10, v11, 3, v10")
    for u in range(4):
        e(f"v_xor_b32 v{V_A+u}, {u<<5}, v10")
    st = {"base": 0}
    NB = int(os.environ.get("NB", "6"))
    PD = int(os.environ.get("PD", "7"))
    RV = os.environ.get("RV", "A")
    if ROT & 2 and RV == "B":
        e("s_lshl_b32 s78, s5, 1")
        e("s_and_b32 s79, s4, 1")
        e("s_add_u32 s78, s78, s79")
    elif ROT & 2 and RV == "C":
        e("s_mov_b32 s78, s5")
    elif ROT & 2 and RV == "D":
        e("s_mul_i32 s78, s3, 3")
        e("s_and_b32 s78, s78, 31")
    elif ROT & 2 and RV == "E":
        e("s_lshl_b32 s78, s5, 2")
        e("s_and_b32 s79, s4, 3")
        e("s_add_u32 s78, s78, s79")
    elif ROT & 2:
        e("s_and_b32 s78, s3, 31")
    else:
        e("s_mov_b32 s78, 0")

    def dma_ops(cc):
        slot = cc % NS
        pre = [f"s_add_u32 s80, s78, {cc}", "s_and_b32 s80, s80, 31", f"s_mul_i32 s80, s80, {128*896}", f"s_add_u32 s80, s80, s{S_WG}"]
        return [(pre if jj == 0 else []) + [f"s_add_u32 m0, s{S_WLD}, {slot*16384 + jj*1024}",
                 f"s_add_u32 s{S_TT}, s80, {jj*8*896}",
                 (f"buffer_load_dwordx4 v{V_DMA}, s[{S_WO}:{S_WO+3}], s{S_TT} offen lds", f"D{cc}")] for jj in range(4)]

    def b_ops(cc):
        rs = cc % NB
        pre = [f"s_add_u32 s81, s78, {cc}", "s_and_b32 s81, s81, 31", "s_lshl_b32 s81, s81, 12"]
        return [(pre if jj == 0 else []) +
                [(f"buffer_load_dwordx4 {vr(V_BF + rs*16 + jj*4, 4)}, v{V_B}, s[{S_OS}:{S_OS+3}], s81 offen offset:{jj*1024} sc1", f"B{cc}")] for jj in range(4)]

    def emit_op(op):
        for x in op:
            if isinstance(x, tuple):
                em.vmem(x[0], x[1])
            else:
                e(x)

    I0 = int(os.environ.get("I0", "6"))
    for cc in range(I0):
        for op in dma_ops(cc):
            emit_op(op)
    nxt = {"d": I0, "b": I0}
    e("s_lshl_b32 s42, s4, 2")
    e("s_mul_i32 s43, s42, 7282")
    e("s_lshr_b32 s43, s43, 16")
    e("s_add_u32 s42, s42, 3")
    e("s_mul_i32 s42, s42, 7282")
    e("s_lshr_b32 s42, s42, 16")
    e("s_lshl_b32 s42, s42, 2")
    e("s_lshl_b32 s43, s43, 2")
    e("v_mov_b32 v30, s43")
    e("v_writelane_b32 v30, s42, 1")
    e("s_mov_b32 s85, 0")
    plab = [0]

    def need(p):
        plab[0] += 1
        n = plab[0]
        e(f"s_add_u32 s83, s78, {p}")
        e("s_and_b32 s83, s83, 31")
        e("s_lshr_b32 s83, s83, 1")
        e("s_mov_b32 s86, 0")
        em.raw(f"L_pc{n}:")
        e("s_lshr_b32 s84, s85, s83")
        e("s_and_b32 s84, s84, 1")
        e(f"s_cbranch_scc1 L_pd{n}")
        e("s_mov_b64 exec, 3")
        e(f"buffer_load_dword v31, v30, s[{S_DB}:{S_DB+3}], 0 offen sc1")
        e("s_waitcnt vmcnt(0)")
        e("s_mov_b64 exec, -1")
        e("v_readlane_b32 s84, v31, 0")
        e("v_readlane_b32 s85, v31, 1")
        e("s_and_b32 s85, s85, s84")
        e(f"s_sleep {os.environ.get('SLP', '1')}")
        e("s_add_u32 s86, s86, 1")
        e("s_cmp_lt_u32 s86, 0x400000")
        e(f"s_cbranch_scc1 L_pc{n}")
        em.raw(f"L_pd{n}:")

    e(f"s_cmp_lg_u32 s{S_WAVE}, 0")
    e("s_cbranch_scc1 L_nopoll")
    for p in range(I0):
        need(p)
    em.raw("L_nopoll:")
    e("s_barrier")
    if PROF:
        e("s_memtime s[60:61]")
        e("s_waitcnt lgkmcnt(0)")
        e("v_writelane_b32 v5, s60, 41")
    for cc in range(I0):
        for op in b_ops(cc):
            emit_op(op)
    D = 4
    total = 32 * 16
    pend = []

    def reads(G):
        cc, f = divmod(G, 16)
        ss, u = f >> 2, f & 3
        slot = cc % NS
        if f == 0:
            grp = slot >> 2
            if grp != st["base"]:
                d = (grp - st["base"]) * 65536
                for b in range(4):
                    e(f"v_add_u32 v{V_A+b}, {d & 0xffffffff}, v{V_A+b}")
                st["base"] = grp
        off = (slot & 3) * 16384 + ss * 4096
        fr = V_FR + (G % 8) * 4
        em.ds(f"T {vr(fr,2)}, v{V_A+u}, {off}", f"F{G}")
        em.ds(f"T {vr(fr+2,2)}, v{V_A+u}, {off+2048}", f"F{G}")

    def mfma(G):
        cc, f = divmod(G, 16)
        ss, u = f >> 2, f & 3
        fr = V_FR + (G % 8) * 4
        if f == 0:
            em.wait_vm(f"B{cc}")
        em.wait_lg(f"F{G}")
        d = vr(V_ACC + u * 4, 4)
        c = "0" if (cc == 0 and ss == 0) else d
        e(f"M {d}, {vr(fr,4)}, {vr(V_BF + (cc % NB)*16 + ss*4, 4)}, {c}")
        if f == 0:
            for p in st.pop("bq", []):
                pend.extend(b_ops(p))

    for G in range(total + D):
        if G < total:
            cc, f = divmod(G, 16)
            if f == 0:
                bq = []
                while len(bq) < 2 and nxt["b"] < 32 and nxt["b"] - NB <= cc - 1:
                    bq.append(nxt["b"])
                    nxt["b"] += 1
                if bq:
                    e(f"s_cmp_lg_u32 s{S_WAVE}, 0")
                    e(f"s_cbranch_scc1 L_np{cc}")
                    for p in bq:
                        need(p)
                    em.raw(f"L_np{cc}:")
                st["bq"] = bq
                em.wait_vm(f"D{cc}")
                e("s_barrier")
                if PROF:
                    e("s_memtime s[60:61]")
                    e("s_waitcnt lgkmcnt(0)")
                    em.lg = []
                    e(f"v_writelane_b32 v5, s60, {cc}")
                k_ = 0
                while k_ < 2 and nxt["d"] < 32 and nxt["d"] <= cc + PD:
                    pend.extend(dma_ops(nxt["d"]))
                    nxt["d"] += 1
                    k_ += 1
            reads(G)
        if G - D >= 0:
            mfma(G - D)
        if pend and ((G & 1) or len(pend) > 8):
            emit_op(pend.pop(0))
    em.nop(9)
    for u in range(4):
        a = V_ACC + u * 4
        e(f"CV v{28+ (u%2)*2}, v{a}, v{a+1}")
        e(f"CV v{29+ (u%2)*2}, v{a+2}, v{a+3}")
        e(f"buffer_store_dwordx2 v[{28+(u%2)*2}:{29+(u%2)*2}], v{V_O}, s[{S_OUT}:{S_OUT+3}], s{S_ST} offen offset:{u*32}")
    if PROF:
        e("s_waitcnt vmcnt(0)")
        e("s_memtime s[60:61]")
        e("s_waitcnt lgkmcnt(0)")
        e("v_writelane_b32 v5, s60, 47")
        e("v_writelane_b32 v5, s62, 48")
        e("s_lshl_b32 s60, s2, 2")
        e(f"s_add_u32 s60, s60, s{S_WAVE}")
        e("s_lshl_b32 s60, s60, 8")
        e(f"s_add_u32 s60, s60, {33<<20}")
        e(f"v_lshlrev_b32 v10, 2, v{V_L}")
        e(f"s_mov_b32 s{S_OS}, s52")
        e(f"s_mov_b32 s{S_OS+1}, s53")
        e(f"s_mov_b32 s{S_OS+2}, {64<<20}")
        e(f"buffer_store_dword v5, v10, s[{S_OS}:{S_OS+3}], s60 offen")


def kd(name, vgpr, acc):
    return f""".p2align 6
.amdhsa_kernel {name}
  .amdhsa_next_free_vgpr {vgpr}
  .amdhsa_next_free_sgpr 102
  .amdhsa_accum_offset {acc}
  .amdhsa_group_segment_fixed_size 0
  .amdhsa_kernarg_size 64
  .amdhsa_user_sgpr_count 2
  .amdhsa_user_sgpr_kernarg_segment_ptr 1
  .amdhsa_system_sgpr_workgroup_id_x 1
.end_amdhsa_kernel
"""


def main():
    em = Em()
    k1(em)
    for t in range(96):
        assert (t * 4682) >> 16 == t // 14
    for t in range(144):
        assert (t * 7282) >> 16 == t // 9
    txt = HEADER + "\n".join(em.lines) + "\n"
    txt += '.section .rodata,"a"\n' + kd("standalone__mha_block_cached__near_ridge_kernel", 512, 256)
    open(OUT, "w").write(txt)
    print("wrote", OUT, len(txt), "bytes")


main()
```
